```python
import torch

def _softmax(x, axis=-1):
    return torch.softmax(x, dim=axis)

def _gelu(x):
    return torch.nn.functional.gelu(x, approximate='tanh')

def _silu(x):
    return torch.nn.functional.silu(x)

def _sigmoid(x):
    return torch.sigmoid(x)

def _layernorm(x, axis=-1, eps=1e-05):
    m = x.mean(dim=axis, keepdim=True)
    v = x.var(dim=axis, keepdim=True, unbiased=False)
    return (x - m) / torch.sqrt(v + eps)

def _scatter_add(tgt, idx, src, axis=0):
    return tgt.clone().index_add_(axis, idx, src)

def _segment_sum(src, seg, n):
    out = torch.zeros((n,) + src.shape[1:], dtype=src.dtype)
    return out.index_add_(0, seg, src)

def _pad(x, pw):
    flat = tuple((v for pair in reversed(pw) for v in pair))
    return torch.nn.functional.pad(x, flat)
kernel_name = 'gated_mix__compressed_kv_cla__memory_aug_recurrent_mem_tr__prompt'

def setup_inputs():

    _w = lambda a: (lambda t: t.to(torch.bfloat16) if t.is_floating_point() else t)(torch.as_tensor(a))

    def _A_setup():
        B, H, Sq, Sk, D, M = (1, 32, 2048, 2048, 128, 512)
        Dc = 4 * D
        return {'x': _w((lambda *s: torch.randn(*s, dtype=torch.bfloat16) * 0.05)(B, Sq, M)), 'c_kv': _w((lambda *s: torch.randn(*s, dtype=torch.bfloat16) * 0.8)(B, Sk, Dc)), 'w_q': _w((lambda *s: torch.randn(*s, dtype=torch.bfloat16) * 6.4)(M, H, D) * M ** (-0.5)), 'w_uk': _w((lambda *s: torch.randn(*s, dtype=torch.bfloat16) * 6.4)(Dc, H, D) * Dc ** (-0.5)), 'w_uv': _w((lambda *s: torch.randn(*s, dtype=torch.bfloat16) * 0.8)(Dc, H, D) * Dc ** (-0.5)), 'w_o': _w((lambda *s: torch.randn(*s, dtype=torch.bfloat16) * 0.8)(H, D, M) * (H * D) ** (-0.5))}
    _A_in = _A_setup()

    def _B_setup():
        B, S, Dm = (1, 2048, 512)
        H, Dh = (32, 128)
        M, seg = (8, 32)
        seg = min(seg, S)
        S = S // seg * seg
        return {'x': _w((lambda *s: torch.randn(*s, dtype=torch.bfloat16) * 0.05)(B, S, Dm)), 'mem0': _w((lambda *s: torch.randn(*s, dtype=torch.bfloat16) * 0.8)(B, M, Dm)), 'Wq': _w((lambda *s: torch.randn(*s, dtype=torch.bfloat16) * 3.2)(Dm, H, Dh) * Dm ** (-0.5)), 'Wk': _w((lambda *s: torch.randn(*s, dtype=torch.bfloat16) * 3.2)(Dm, H, Dh) * Dm ** (-0.5)), 'Wv': _w((lambda *s: torch.randn(*s, dtype=torch.bfloat16) * 0.8)(Dm, H, Dh) * Dm ** (-0.5)), 'Wo': _w((lambda *s: torch.randn(*s, dtype=torch.bfloat16) * 0.8)(H, Dh, Dm) * (H * Dh) ** (-0.5)), 'seg_len': seg}
    _B_in = _B_setup()
    return {'A_x': _A_in['x'], 'A_c_kv': _A_in['c_kv'], 'A_w_q': _A_in['w_q'], 'A_w_uk': _A_in['w_uk'], 'A_w_uv': _A_in['w_uv'], 'A_w_o': _A_in['w_o'], 'B_x': _B_in['x'], 'B_mem0': _B_in['mem0'], 'B_Wq': _B_in['Wq'], 'B_Wk': _B_in['Wk'], 'B_Wv': _B_in['Wv'], 'B_Wo': _B_in['Wo'], 'B_seg_len': _B_in['seg_len'], 'gate_w': _w((lambda *s: torch.randn(*s, dtype=torch.bfloat16) * 0.05)(512) * 16.0)}

def reference(A_x, A_c_kv, A_w_q, A_w_uk, A_w_uv, A_w_o, B_x, B_mem0, B_Wq, B_Wk, B_Wv, B_Wo, B_seg_len, gate_w):

    def _A_ref(x, c_kv, w_q, w_uk, w_uv, w_o):
        B, Sq, M = (x.shape[0], x.shape[1], x.shape[2])
        Sk = c_kv.shape[1]
        H, D = (w_q.shape[1], w_q.shape[2])
        q = torch.einsum('bqm,mhd->bhqd', x, w_q)
        k = torch.einsum('bkc,chd->bhkd', c_kv, w_uk)
        v = torch.einsum('bkc,chd->bhkd', c_kv, w_uv)
        scores = torch.einsum('bhqd,bhkd->bhqk', q, k) * D ** (-0.5)
        off = Sk - Sq
        qi = torch.arange(Sq)[:, None]
        kj = torch.arange(Sk)[None, :]
        cmask = kj <= qi + off
        scores = torch.where(cmask[None, None], scores, -1000000000.0)
        p = _softmax(scores, axis=-1)
        ctx = torch.einsum('bhqk,bhkd->bhqd', p, v)
        return torch.einsum('bhqd,hdm->bqm', ctx, w_o)

    def _B_ref(x, mem0, Wq, Wk, Wv, Wo, seg_len):
        B, S, Dm = x.shape
        H, Dh = (Wq.shape[1], Wq.shape[2])
        M = mem0.shape[1]
        scale = Dh ** (-0.5)
        n_seg = S // seg_len
        L = M + seg_len
        idx = torch.arange(L)
        mask = (idx[:, None] < M) | (idx[:, None] >= idx[None, :])
        mem = mem0
        outs = []
        for s in range(n_seg):
            xs = x[:, s * seg_len:(s + 1) * seg_len, :].clone()
            h = torch.concatenate([mem, xs], axis=1)
            q = torch.einsum('btd,dhe->bhte', h, Wq)
            k = torch.einsum('btd,dhe->bhte', h, Wk)
            v = torch.einsum('btd,dhe->bhte', h, Wv)
            scores = torch.einsum('bhqe,bhke->bhqk', q, k) * scale
            scores = torch.where(mask[None, None], scores, -1000000000.0)
            p = _softmax(scores, axis=-1)
            o = torch.einsum('bhqk,bhke->bhqe', p, v)
            o = torch.einsum('bhte,hed->btd', o, Wo)
            mem = o[:, :M, :].clone()
            outs.append(o[:, M:, :])
        return torch.concatenate(outs, axis=1)
    x = A_x
    g = _sigmoid((x * gate_w).sum(-1, keepdims=True))
    a = _A_ref(x, A_c_kv, A_w_q, A_w_uk, A_w_uv, A_w_o)
    b = _B_ref(x, B_mem0, B_Wq, B_Wk, B_Wv, B_Wo, B_seg_len)
    return g * a + (1 - g) * b
```

```python
from common import *

A16, W16, RA, ORA, T0, T1, EX, ONES, GT, T2 = 2, 3, 4, 5, 6, 7, 8, 16, 20, 24
S, P, C, O = 32, (64, 80), 96, 128
AQ, AK, AV, AL = 0, 64, 96, 128
L_K01 = 131072
sH, sQB, sB, sNA, sNW, sKO, sVO, sKB, sKMAX, sSLOT, sM0, sT0, sT1, sMK1, sMK2, sQO, sCO, sBIT, sRET = range(56, 75)
sMASK = 76
sSPIN = 84
TOFF_DEFAULT = 16.0
NINF = "0xff800000"

def mf(D, A, B, Cc): return f"v_mfma_f32_16x16x32_bf16 {D}, {A}, {B}, {Cc}"
def qk_list():
    l = []
    for qt in range(4):
        for kt in range(2):
            d = vr(S + 8*qt + 4*kt, 4)
            for t in range(4):
                l.append(mf(d, ar(AK + 4*(2*t+kt), 4), ar(AQ + 16*qt + 4*t, 4), vr(C + 8*qt + 4*kt, 4) if t == 0 else d))
    return l
def pv_list(par):
    l = [mf(ar(AL + 4*qt, 4), vr(ONES, 4), vr(P[par] + 4*qt, 4), ar(AL + 4*qt, 4)) for qt in range(4)]
    for f in range(8):
        for qt in range(4):
            d = vr(O + 32*qt + 4*f, 4)
            l.append(mf(d, ar(AV + 4*f, 4), vr(P[par] + 4*qt, 4), d))
    return l
vrd = lambda f: f"ds_read_b128 {ar(AV + 4*f, 4)}, v{RA} offset:{f*1024}"
krd = lambda f: f"ds_read_b128 {ar(AK + 4*f, 4)}, v{RA} offset:{8192 + f*1024}"

def dma_stage():
    return [([f"s_add_u32 m0, s{sSLOT}, s{sM0}"], f"buffer_load_dwordx4 v{W16}, {WSR}, s{sVO} offen sc1 lds"),
            ([f"s_min_u32 s{sT0}, s{sKB}, s{sKMAX}"], f"buffer_load_dwordx4 v{W16}, {WSR}, s{sVO} offen offset:1024 sc1 lds"),
            ([f"s_add_u32 m0, m0, 0x2000"], f"buffer_load_dwordx4 v{W16}, {WSR}, s{sT0} offen sc1 lds"),
            ([f"s_add_u32 s{sVO}, s{sVO}, 0x2000"], f"buffer_load_dwordx4 v{W16}, {WSR}, s{sT0} offen offset:1024 sc1 lds"),
            ([f"s_add_u32 s{sKB}, s{sKB}, 0x2000", f"s_add_u32 s{sSLOT}, s{sSLOT}, 0x4000", f"s_and_b32 s{sSLOT}, s{sSLOT}, 0x1ffff"], None)]

def softmax_items(par):
    items = []
    for tl in range(8):
        s = S + 4*tl; e = EX + 4*(tl & 1); p = P[par] + 2*tl
        for i in range(4): items.append(("e", tl, [f"v_exp_f32 v{e+i}, v{s+i}"]))
        items.append(("c", tl, [f"v_cvt_pk_bf16_f32 v{p}, v{e}, v{e+1}"]))
        items.append(("c", tl, [f"v_cvt_pk_bf16_f32 v{p+1}, v{e+2}, v{e+3}"]))
        items.append(("c", tl, [f"v_or_b32 v{ORA}, v{p}, v{p+1}" if tl == 0 else f"v_or3_b32 v{ORA}, v{ORA}, v{p}, v{p+1}"]))
    return items

def body(a, par, sync):
    name = f"L_a_{'s' if sync else 'f'}{par}"
    a(name + ":")
    G = Gaps(qk_list() + pv_list(par))
    sc = {}; mem = {}
    a("s_waitcnt vmcnt(24) lgkmcnt(0)" if sync else "s_waitcnt lgkmcnt(0)")
    if sync: sc[0] = ["s_barrier"]
    for f in range(8): mem[f if f < 6 else 4*f - 13] = vrd(f)
    for f in range(8): mem[33 + 3*f] = krd(f)
    sc.setdefault(31, []).append("s_waitcnt lgkmcnt(0)")
    if sync:
        d = dma_stage()
        for k in range(4):
            g = 19 + 3*k
            sc.setdefault(g - 1, []).extend(d[k][0]); mem[g] = d[k][1]
        for k, x in enumerate(d[4][0]): sc.setdefault(40 + k, []).append(x)
    sc.setdefault(44, []).append(f"s_add_u32 s{sB}, s{sB}, 1")
    items = softmax_items(1 - par)
    tail = [("c", 0, [f"v_and_b32 v{ORA}, s{sBIT}, v{ORA}"]), ("c", 0, [f"v_cmp_ne_u32 vcc, 0, v{ORA}"]),
            ("r", 0, [f"v_add_u32 v{RA}, 0x4000, v{RA}"]), ("r", 0, [f"v_and_b32 v{RA}, 0x1ffff, v{RA}"])]
    items += tail
    k = 0
    for g in range(68):
        cap = 1 if g in mem else 2
        va = []
        while k < len(items):
            ty, tl, ins = items[k]
            cost = 2 if ty == "e" else 1
            if ty == "e" and g < 4*tl + 3 + 3: break
            if ty == "r" and g < 55: break
            if cost > cap:
                break
            if ty != "e" and va and va[-1].startswith("v_exp"): break
            va += ins; cap -= cost; k += 1
        s_ = sc.get(g, [])
        if g in (3, 4, 5) and not s_: s_ = ["s_nop 0"]
        G.add(g, *(s_ + ([mem[g]] if g in mem else []) + va))
    assert k == len(items), (k, len(items))
    G.g[65].insert(0, f"s_mov_b32 s{sRET}, {2*sync + par}")
    G.g[66].insert(0, f"s_sub_u32 s{sT1}, s{sB}, s{sMK1}")
    G.emit(a)
    a(f"s_cbranch_vccnz L_a_slow{1-par}")
    a(f"{name}_r:")
    a(f"s_cmp_lt_u32 s{sT1}, 2\ns_cbranch_scc1 L_a_mask")
    a(f"{name}_m:")
    if sync:
        if par == 0: a(f"s_cmp_eq_u32 s{sB}, s{sNA}\ns_cbranch_scc1 L_a_final")
        else: a("s_branch L_a_s0")
    else:
        if par == 0: a(f"s_cmp_eq_u32 s{sB}, s{sNW}\ns_cbranch_scc0 L_a_f1")

def ret_dispatch(a, sfx):
    for v, n in ((0, "f0"), (1, "f1"), (2, "s0"), (3, "s1")):
        a(f"s_cmp_eq_u32 s{sRET}, {v}\ns_cbranch_scc1 L_a_{n}_{sfx}")
    a(f"s_branch L_a_pre_{sfx}")

def rescale(a, par, init):
    for qt in range(4):
        s = S + 8*qt
        a(f"""
        v_max3_f32 v{T0}, v{s}, v{s+1}, v{s+2}
        v_max3_f32 v{T1}, v{s+3}, v{s+4}, v{s+5}
        v_max3_f32 v{T0}, v{T0}, v{s+6}, v{s+7}
        v_max_f32 v{T0}, v{T0}, v{T1}
        """)
        for sw in ("v_permlane32_swap_b32", "v_permlane16_swap_b32"):
            a(f"v_mov_b32 v{T1}, v{T0}\ns_nop 1\n{sw} v{T1}, v{T0}\nv_max_f32 v{T0}, v{T0}, v{T1}")
        a(f"v_add_f32 v{T0}, {fbits(float(OPTS.get('toff', TOFF_DEFAULT)))}, v{T0}")
        if not init:
            a(f"v_max_f32 v{T0}, 0, v{T0}\nv_exp_f32 v{T1}, -v{T0}")
        for i in range(8): a(f"v_sub_f32 v{C+8*qt+i}, v{C+8*qt+i}, v{T0}")
        if not init:
            for i in range(32): a(f"v_mul_f32 v{O+32*qt+i}, v{O+32*qt+i}, v{T1}")
            for i in range(4):
                a(f"v_accvgpr_read_b32 v{T2}, a{AL+4*qt+i}\nv_mul_f32 v{T2}, v{T2}, v{T1}\nv_accvgpr_write_b32 a{AL+4*qt+i}, v{T2}")
        for i in range(8): a(f"v_sub_f32 v{EX+i}, v{s+i}, v{T0}")
        for i in range(8): a(f"v_exp_f32 v{EX+i}, v{EX+i}")
        for i in range(4): a(f"v_cvt_pk_bf16_f32 v{P[par]+4*qt+i}, v{EX+2*i}, v{EX+2*i+1}")

def gen_att(a, next_label):
    w = S_WAVE
    a("L_att:")
    a(f"""
    v_lshlrev_b32 v{A16}, 4, v0
    s_lshl_b32 s{sM0}, s{w}, 11
    v_add_u32 v{W16}, s{sM0}, v{A16}
    s_mov_b32 s{sSPIN}, 0
    v_and_b32 v{T0}, 7, v0
    v_min_u32 v{T0}, s{sQB}, v{T0}
    v_mov_b32 v{T1}, s{sQB}
    v_add_u32 v{T1}, 8, v{T1}
    v_cmp_gt_u32 vcc, 8, v0
    s_lshl_b32 s{sT0}, s{sH}, 7
    s_add_u32 s{sT0}, s{sT0}, {hex(WS_FLAG)}
    v_cndmask_b32 v{T0}, v{T1}, v{T0}, vcc
    v_cndmask_b32 v{T1}, 2, 4, vcc
    v_lshl_add_u32 v{T0}, v{T0}, 2, s{sT0}
    s_lshl_b32 s{sT0}, s{sQB}, 7
    s_add_u32 s{sT0}, s{sT0}, {hex(CNT_GATE)}
    v_writelane_b32 v{T0}, s{sT0}, 63
    v_writelane_b32 v{T1}, 1, 63
    L_a_wait:
    buffer_load_dword v{T2}, v{T0}, {WSR}, 0 offen sc1
    s_add_u32 s{sSPIN}, s{sSPIN}, 1
    s_cmp_gt_u32 s{sSPIN}, {1 << 20}
    s_cbranch_scc1 L_exit
    s_waitcnt vmcnt(0)
    v_cmp_ne_u32 vcc, v{T1}, v{T2}
    s_cbranch_vccnz L_a_wait
    """)
    stamp(a, 8)
    a(f"""
    s_lshl_b32 s{sT0}, s{sH}, 19
    s_add_u32 s{sKO}, s{sT0}, {hex(WS_PROJ + (1 << 24))}
    s_add_u32 s{sVO}, s{sT0}, {hex(WS_PROJ + (2 << 24))}
    s_lshl_b32 s{sNA}, s{sQB}, 3
    s_lshl_b32 s{sT1}, s{w}, 1
    s_add_u32 s{sT1}, s{sT1}, s{sNA}            ; B0
    s_add_u32 s{sNW}, s{sT1}, 1
    s_sub_u32 s{sMK1}, s{sT1}, 1
    s_lshl_b32 s{sQO}, s{sT1}, 13
    s_add_u32 s{sQO}, s{sQO}, s{sT0}
    s_lshl_b32 s{sCO}, s{sT1}, 19
    s_lshl_b32 s{sT0}, s{sH}, 13
    s_add_u32 s{sCO}, s{sCO}, s{sT0}
    s_add_u32 s{sCO}, s{sCO}, {hex(WS_CTX)}
    s_add_u32 s{sKMAX}, s{sNA}, 7
    s_lshl_b32 s{sKMAX}, s{sKMAX}, 13
    s_add_u32 s{sKMAX}, s{sKMAX}, s{sKO}
    s_add_u32 s{sNA}, s{sNA}, 1
    s_add_u32 s{sKB}, s{sKO}, 0x4000
    s_mov_b32 s{sSLOT}, 0
    s_mov_b32 s{sBIT}, 0x40004000
    s_add_u32 m0, s{sM0}, {L_K01}
    s_add_u32 s{sT0}, s{sKO}, 0x2000
    buffer_load_dwordx4 v{W16}, {WSR}, s{sKO} offen sc1 lds
    buffer_load_dwordx4 v{W16}, {WSR}, s{sKO} offen offset:1024 sc1 lds
    """)
    for qt in range(4):
        if qt == 2: a(f"s_add_u32 s{sQO}, s{sQO}, 0x2000")
        a(f"s_add_u32 s{sB}, s{sQO}, 0x1000")
        for t in range(4):
            a(f"buffer_load_dwordx4 {ar(AQ+16*qt+4*t,4)}, v{A16}, {WSR}, s{sQO if t < 2 else sB} offen offset:{((2*t + (qt&1))*1024) & 4095} sc1")
    a(f"""
    s_add_u32 m0, s{sM0}, {L_K01 + 8192}
    v_and_b32 v{T0}, 15, v0
    v_lshlrev_b32 v{T0}, 2, v{T0}
    buffer_load_dwordx4 v{W16}, {WSR}, s{sT0} offen sc1 lds
    buffer_load_dwordx4 v{W16}, {WSR}, s{sT0} offen offset:1024 sc1 lds
    s_lshl_b32 s{sT1}, s{sT1}, 7
    s_add_u32 s{sT1}, s{sT1}, {hex(WS_GATE)}
    """)
    for qt in range(4): a(f"buffer_load_dword v{GT+qt}, v{T0}, {WSR}, s{sT1} offen offset:{64*qt} sc1")
    for st in range(7):
        for sc_, ld in dma_stage():
            a.emit(sc_)
            if ld: a("s_nop 0\n" + ld)
    for i in range(64): a(f"v_mov_b64 {vr(O+2*i,2)}, 0")
    for i in range(16): a(f"v_mov_b64 {vr(C+2*i,2)}, 0\nv_accvgpr_write_b32 a{AL+i}, 0")
    for i in range(4): a(f"v_mov_b32 v{ONES+i}, 0x3f803f80")
    a(f"v_lshrrev_b32 v{T0}, 4, v0\nv_lshlrev_b32 v{T0}, 2, v{T0}\nv_and_b32 v{T1}, 15, v0\nv_sub_u32 v{T0}, v{T1}, v{T0}")
    for i in range(4): a(f"v_cmp_gt_i32 s[{sMASK+2*i}:{sMASK+2*i+1}], {i}, v{T0}")
    a(f"""
    v_add_u32 v{RA}, {L_K01 - 8192}, v{A16}
    s_mov_b32 s{sB}, -1
    s_mov_b32 s{sRET}, 4
    s_waitcnt vmcnt(28)
    s_sub_u32 s{sT1}, s{sB}, s{sMK1}
    s_cmp_lt_u32 s{sT1}, 2
    s_cbranch_scc1 L_a_mask
    L_a_pre_m:
    s_cmp_eq_u32 s{sB}, 0
    s_cbranch_scc1 L_a_s0
    s_barrier
    """)
    for f in range(8): a(krd(f))
    a(f"v_add_u32 v{RA}, 0x2000, v{RA}\ns_waitcnt lgkmcnt(0)")
    for m in qk_list(): a(m)
    for f in range(8): a(krd(f))
    a(f"v_mov_b32 v{RA}, v{A16}")
    rescale(a, 0, True)
    stamp(a, 9)
    a(f"""
    s_mov_b32 s{sB}, 0
    s_sub_u32 s{sT1}, s{sB}, s{sMK1}
    s_cmp_lt_u32 s{sT1}, 2
    s_cbranch_scc1 L_a_mask
    """)
    body(a, 0, 1); body(a, 1, 1)
    a(f"""
    L_a_final:
    s_waitcnt vmcnt(0)
    s_barrier
    s_cmp_eq_u32 s{sB}, s{sNW}
    s_cbranch_scc1 L_a_last
    """)
    body(a, 1, 0); body(a, 0, 0)
    a("L_a_last:")
    stamp(a, 10)
    for f in range(8): a(vrd(f))
    pv = pv_list(1)
    for m in pv[:4]: a(m)
    for f in range(8):
        a(f"s_waitcnt lgkmcnt({7-f})")
        for m in pv[4+4*f:8+4*f]: a(m)
    for qt in range(4):
        a(f"v_accvgpr_read_b32 v{T0}, a{AL+4*qt}\nv_rcp_f32 v{T0}, v{T0}\ns_nop 0\nv_mul_f32 v{GT+qt}, v{GT+qt}, v{T0}")
    for qt in range(4):
        if qt == 2: a(f"s_add_u32 s{sCO}, s{sCO}, 0x80000")
        a(f"s_add_u32 s{sT0}, s{sCO}, 0x1000")
        for t in range(4):
            b = O + 32*qt + 8*t; q = S + 4*((4*qt + t) & 7)
            for i in range(8): a(f"v_mul_f32 v{b+i}, v{b+i}, v{GT+qt}")
            for i in range(4): a(f"v_cvt_pk_bf16_f32 v{q+i}, v{b+2*i}, v{b+2*i+1}")
            a(f"buffer_store_dwordx4 {vr(q,4)}, v{A16}, {WSR}, s{sCO if t < 2 else sT0} offen offset:{((2*t + (qt&1))*1024) & 4095} sc1")
    a(f"""
    s_lshl_b32 s{sT0}, s{sQB}, 7
    s_add_u32 s{sT0}, s{sT0}, {hex(CNT_CTX)}
    s_cmp_eq_u32 s{w}, 0
    s_cselect_b32 s{sT0}, s{sT0}, {hex(OOB)}
    v_mov_b32 v{T0}, 1
    s_waitcnt vmcnt(0)
    s_barrier
    s_mov_b64 exec, 1
    buffer_atomic_add v{T0}, v{A16}, {WSR}, s{sT0} offen
    s_mov_b64 exec, -1
    s_branch {next_label}
    """)
    for par in range(2):
        a(f"L_a_slow{par}:\ns_nop 7")
        rescale(a, par, False)
        a("s_nop 1")
        for v, n in ((0, "f0"), (2, "s0")) if par == 1 else ((1, "f1"), (3, "s1")):
            if v < 2: a(f"s_cmp_eq_u32 s{sRET}, {v}\ns_cbranch_scc1 L_a_{n}_r")
            else: a(f"s_branch L_a_{n}_r")
    a(f"L_a_mask:\nv_mov_b32 v{T0}, {NINF}\ns_cmp_eq_u32 s{sT1}, 0\ns_cbranch_scc0 L_a_mask2")
    def diag(q0):
        for i in range(4):
            a(f"v_cndmask_b32 v{C+8*q0+i}, v{C+8*q0+i}, v{T0}, s[{sMASK+2*i}:{sMASK+2*i+1}]")
            a(f"v_mov_b32 v{C+8*q0+4+i}, v{T0}")
            a(f"v_cndmask_b32 v{C+8*q0+12+i}, v{C+8*q0+12+i}, v{T0}, s[{sMASK+2*i}:{sMASK+2*i+1}]")
    diag(0)
    a("s_branch L_a_maskret\nL_a_mask2:")
    for i in range(16): a(f"v_mov_b32 v{C+i}, v{T0}")
    diag(2)
    a("L_a_maskret:")
    ret_dispatch(a, "m")
```

```python
import re, sys

def regs(tok):
    tok = tok.strip()
    neg = tok.lstrip("-").replace("abs(", "").replace(")", "").replace("|", "")
    m = re.fullmatch(r"([vas])(\d+)", neg)
    if m: return {(m.group(1), int(m.group(2)))}
    m = re.fullmatch(r"([vas])\[(\d+):(\d+)\]", neg)
    if m: return {(m.group(1), i) for i in range(int(m.group(2)), int(m.group(3)) + 1)}
    if neg == "vcc": return {("s", 106), ("s", 107)}
    if neg == "vcc_lo": return {("s", 106)}
    if neg == "vcc_hi": return {("s", 107)}
    if neg == "exec": return {("s", 126), ("s", 127)}
    if neg in ("exec_lo",): return {("s", 126)}
    if neg in ("exec_hi",): return {("s", 127)}
    if neg == "m0": return {("s", 124)}
    return set()

TRANS = ("v_exp_f32", "v_log_f32", "v_rcp_f32", "v_rsq_f32", "v_sqrt_f32")
class I:
    def __init__(self, text, ln):
        self.text, self.ln = text, ln
        p = text.split(None, 1); self.op = op = p[0]
        rest = p[1] if len(p) > 1 else ""
        ops = [x.strip() for x in rest.split(",")] if rest else []
        if ops:
            last = ops[-1].split()
            self.mods = last[1:]; ops[-1] = last[0] if last else ""
        else: self.mods = []
        self.ops = ops
        R = [regs(x) for x in ops]
        U = lambda l: set().union(*l) if l else set()
        self.mfma = op.startswith("v_mfma") or op.startswith("v_smfmac")
        self.valu = op.startswith("v_") and not self.mfma
        self.salu = op.startswith("s_")
        self.ds = op.startswith("ds_"); self.vmem = op.startswith("buffer_") or op.startswith("global_")
        self.w, self.r = set(), set(); self.srcC = set(); self.ab = set(); self.sdata = set()
        self.lds = "lds" in self.mods
        if self.mfma:
            self.w = R[0]; self.ab = R[1] | R[2]
            if op.startswith("v_smfmac"): self.srcC = R[0]; self.ab |= R[3]
            else: self.srcC = R[3]
            self.r = self.ab | self.srcC
            self.sgemm = op.endswith("_f32") and "bf16" not in op
            if "32x32x16" in op or "32x32x8" in op or "32x32x32" in op: self.passes = 8
            elif "32x32x1_" in op or "32x32x2_" in op: self.passes = 16
            elif "16x16x4_f32" in op or "16x16x1_" in op: self.passes = 8
            else: self.passes = 4
        elif self.valu:
            if op.startswith("v_cmp"): self.w = R[0]; self.r = U(R[1:])
            elif "swap" in op: self.w = R[0] | R[1]; self.r = R[0] | R[1]
            elif op.startswith(("v_add_co", "v_sub_co", "v_addc_co")): self.w = R[0] | R[1]; self.r = U(R[2:])
            else:
                self.w = R[0]; self.r = U(R[1:])
                if op.startswith(("v_fmac", "v_writelane")) or "dpp" in op: self.r |= R[0]
        elif self.ds:
            if op.startswith("ds_read") or "rtn" in op: self.w = R[0]; self.r = U(R[1:])
            else: self.r = U(R)
        elif self.vmem:
            if op in ("buffer_wbl2", "buffer_inv"): pass
            elif "load" in op and not self.lds: self.w = R[0]; self.r = U(R[1:])
            elif "load" in op: self.r = U(R) | {("s", 124)}
            elif "atomic" in op:
                self.r = U(R)
                if "sc0" in self.mods: self.w = R[0]
            else:
                self.r = U(R)
                self.sdata = R[0] if op.startswith("buffer") else R[1]
        elif self.salu:
            if op.startswith(("s_cmp", "s_bitcmp", "s_cbranch", "s_branch", "s_waitcnt", "s_nop", "s_barrier", "s_endpgm", "s_sleep", "s_setprio")):
                self.r = U(R)
                if "vcc" in op: self.r |= regs("vcc")
            else:
                self.w = R[0] if R else set(); self.r = U(R[1:])
                if "saveexec" in op: self.w |= regs("exec")
        self.states = int(ops[0]) + 1 if op == "s_nop" else 1

def parse(text):
    ins, labels = [], {}
    for ln, l in enumerate(text.split("\n"), 1):
        l = l.split(";")[0].strip()
        if not l or l.startswith("."):
            if l.startswith(".section"): break
            continue
        if l.endswith(":"): labels[l[:-1]] = len(ins); continue
        ins.append(I(l, ln))
    succ = []
    for i, x in enumerate(ins):
        if x.op == "s_endpgm": s = []
        elif x.op == "s_branch": s = [labels[x.ops[0]]]
        elif x.op.startswith("s_cbranch"): s = [i + 1, labels[x.ops[0]]]
        else: s = [i + 1]
        succ.append([k for k in s if k < len(ins)])
    return ins, succ

V = lambda s: {x for x in s if x[0] in "va"}
S = lambda s: {x for x in s if x[0] == "s"}
def need(p, c):
    n = 0
    if p.mfma:
        P = {2: 0, 4: 1, 8: 2, 16: 3}[p.passes]
        if not p.sgemm:
            if c.mfma:
                if p.w & c.ab: n = max(n, (5, 8, 12, 20)[P])
                if p.w & c.srcC and not (p.w == c.srcC and p.op == c.op): n = max(n, (4, 6, 10, 18)[P])
                if p.w & c.w and not (p.w & c.srcC): n = max(n, 0)
            elif (c.valu or c.ds or c.vmem) and p.w & (c.r | c.w): n = max(n, (5, 8, 12, 20)[P])
            if c.valu and p.srcC & c.w: n = max(n, (1, 3, 7, 15)[P])
        else:
            if c.mfma:
                if p.w & c.ab: n = max(n, (4, 6, 10, 18)[P])
                if p.w & c.srcC: n = max(n, (2, 4, 8, 16)[P])
            elif (c.valu or c.ds or c.vmem) and p.w & (c.r | c.w): n = max(n, (4, 6, 10, 18)[P])
    if p.valu:
        if c.mfma and V(p.w) & c.r: n = max(n, 2)
        if c.valu and ("dpp" in c.op or "permlane" in c.op) and V(p.w) & c.r: n = max(n, 2)
        if c.op.startswith(("v_readlane", "v_readfirstlane")) and V(p.w) & c.r: n = max(n, 1)
        if p.op in TRANS and (c.valu and c.op not in TRANS or c.vmem or c.ds) and p.w & c.r: n = max(n, 1)
        if c.vmem and S(p.w) & c.r: n = max(n, 5)
        if c.valu and S(p.w) & c.r: n = max(n, 4 if c.op.startswith(("v_readlane", "v_writelane")) else 2)
        if c.salu and S(p.w) & c.r and not c.op.startswith("s_cbranch"): n = max(n, 1)
    if p.salu and ("s", 124) in p.w and c.vmem and c.lds: n = max(n, 1)
    if p.vmem and len(p.sdata) >= 3 and p.sdata & c.w: n = max(n, 2 if c.valu or c.mfma else 1)
    return n

def lint(text, verbose=True):
    ins, succ = parse(text)
    errs = []
    for i, p in enumerate(ins):
        if not (p.mfma or p.valu or p.salu or p.vmem): continue
        lim = 20 if p.mfma else 5
        seen = {}; st = [(k, 0) for k in succ[i]]
        while st:
            k, d = st.pop()
            if d >= lim or seen.get(k, 99) <= d: continue
            seen[k] = d
            c = ins[k]; n = need(p, c)
            if n > d: errs.append(f"line {p.ln}: '{p.text}' -> line {c.ln}: '{c.text}' needs {n}, has {d}")
            for q in succ[k]: st.append((q, d + c.states))
    for i, p in enumerate(ins):
        isds = p.ds and p.w; isvm = p.vmem and p.w; issm = p.op.startswith(("s_load", "s_memtime", "s_memrealtime"))
        if not (isds or isvm or issm): continue
        cname = "vmcnt" if isvm else "lgkmcnt"
        seen = set(); st = [(k, 0) for k in succ[i]]
        while st:
            k, y = st.pop()
            if (k, y) in seen or y > 64: continue
            seen.add((k, y)); c = ins[k]
            if c.op == "s_waitcnt":
                m = re.search(cname + r"\((\d+)\)", c.text)
                if m and (int(m.group(1)) <= (0 if issm else y)): continue
            elif p.w & c.r or (p.w & c.w and not ((isds and c.ds) or (isvm and c.vmem))):
                errs.append(f"line {p.ln}: '{p.text}' not waited before line {c.ln}: '{c.text}'"); continue
            elif p.w <= c.w: continue
            y2 = y + (1 if ((isvm and c.vmem) or (isds and c.ds)) else 0)
            for q in succ[k]: st.append((q, y2))
    errs = sorted(set(errs), key=lambda e: int(e.split()[1][:-1]))
    if verbose:
        for e in errs[:40]: print("LINT", e)
        print(f"lint: {len(ins)} instructions, {len(errs)} findings")
    return errs

if __name__ == "__main__":
    lint(open(sys.argv[1]).read())
```

```python
from common import *

A16, T0, T1, T2, T3 = 2, 3, 4, 5, 6
sG, sCB, sORD, sSPIN, sT0, sT1, sT2, sWO, sCO, sM0, sI, sHALF, sNH, sQO, sKVO, sST = range(56, 72)
sMASK = 76
NINF = "0xff800000"

def mf(D, A, B, Cc): return f"v_mfma_f32_16x16x32_bf16 {D}, {A}, {B}, {Cc}"
def mf16(D, A, B): return f"v_mfma_f32_16x16x16_bf16 {D}, {A}, {B}, {D}"

def wait_ge(a, name, soff, val_is_sreg, val):
    a(f"""
    v_mov_b32 v{T0}, 0
    {name}:
    buffer_load_dword v{T1}, v{T0}, {WSR}, s{soff} offen sc1
    s_add_u32 s{sSPIN}, s{sSPIN}, 1
    s_cmp_gt_u32 s{sSPIN}, {1 << 20}
    s_cbranch_scc1 L_exit
    s_waitcnt vmcnt(0)
    v_cmp_gt_u32 vcc, {'s' if val_is_sreg else ''}{val}, v{T1}
    s_cbranch_vccnz {name}
    """)

XTW, XTR, GT, ONES, CM, PMZ = 8, 9, 10, 16, 20, 32
S, PX, KM, LL, OA, ST = 40, 60, 68, 84, 128, 96
KVM = 192
def xb(a):
    w = S_WAVE
    a(f"""
    s_lshl_b32 s{sT2}, s{sCB}, 2
    s_add_u32 s{sT2}, s{sT2}, s{w}              ; head
    s_lshl_b32 s{sT0}, s{sT2}, 7
    s_lshr_b32 s{sT1}, s{sG}, 2
    s_lshl2_add_u32 s{sT0}, s{sT1}, s{sT0}
    s_add_u32 s{sT0}, s{sT0}, {hex(WS_FLAG + 96)}
    """)
    wait_ge(a, "L_x_w1", sT0, False, 2)
    a(f"s_sub_u32 s{sT0}, s{sT0}, 32")
    wait_ge(a, "L_x_w2", sT0, False, 4)
    a(f"s_lshl_b32 s{sT0}, s{sT1}, 7\ns_add_u32 s{sT0}, s{sT0}, {hex(CNT_GATE)}")
    wait_ge(a, "L_x_w0", sT0, False, 1)
    a(f"""
    s_lshl_b32 s{sQO}, s{sT2}, 19
    s_lshl_b32 s{sT0}, s{sG}, 14
    s_add_u32 s{sQO}, s{sQO}, s{sT0}
    s_add_u32 s{sQO}, s{sQO}, {hex(WS_PROJ + (3 << 24))}
    """)
    for it in range(2):
        for m in range(3):
            for hf in range(2):
                a(f"s_add_u32 s{sT0}, s{sQO}, {hex((m << 24) + it*8192 + hf*4096)}")
                for f in range(4):
                    a(f"buffer_load_dwordx4 {ar(96*it + 32*m + 16*hf + 4*f, 4)}, v{A16}, {WSR}, s{sT0} offen offset:{1024*f} sc1")
    a(f"""
    v_and_b32 v{T2}, 15, v0
    v_lshlrev_b32 v{T3}, 2, v{T2}
    s_lshl_b32 s{sT0}, s{sG}, 8
    s_add_u32 s{sT0}, s{sT0}, {hex(WS_GATE)}
    """)
    for i in range(4): a(f"buffer_load_dword v{GT+i}, v{T3}, {WSR}, s{sT0} offen offset:{64*i} sc1")
    a(f"""
    s_lshl_b32 s{sT0}, s{w}, 12
    v_bfe_u32 v{T3}, v0, 3, 1
    v_lshl_add_u32 v{XTW}, v{T3}, 8, s{sT0}
    v_lshrrev_b32 v{T3}, 4, v0
    v_lshl_add_u32 v{XTW}, v{T3}, 6, v{XTW}
    v_lshlrev_b32 v{T3}, 2, v{T3}
    v_sub_u32 v{T2}, v{T2}, v{T3}
    v_and_b32 v{T3}, 7, v0
    v_lshl_add_u32 v{XTW}, v{T3}, 3, v{XTW}
    v_lshrrev_b32 v{T3}, 5, v0
    v_lshl_add_u32 v{XTR}, v{T3}, 8, s{sT0}
    v_and_b32 v{T3}, 3, v0
    v_lshl_add_u32 v{XTR}, v{T3}, 6, v{XTR}
    v_bfe_u32 v{T3}, v0, 2, 3
    v_lshl_add_u32 v{XTR}, v{T3}, 3, v{XTR}
    v_mov_b32 v{T3}, {NINF}
    """)
    for i in range(4):
        a(f"v_cmp_gt_i32 vcc, {i}, v{T2}\nv_mov_b32 v{ONES+i}, 0x3f803f80\ns_nop 0\nv_cndmask_b32 v{CM+i}, 0, v{T3}, vcc")
    for r in (PMZ+1, PMZ+2, PMZ+5, PMZ+6, PX+2, PX+3): a(f"v_mov_b32 v{r}, 0")
    a(f"""
    s_lshl_b32 s{sT0}, s{sT2}, 7
    s_add_u32 s{sT0}, s{sT0}, {hex(FLAG_T)}
    s_lshl_b32 s{sT1}, s{sG}, 1
    s_add_u32 s{sT1}, s{sT1}, 2
    """)
    wait_ge(a, "L_x_w3", sT0, True, sT1)
    stamp(a, 13)
    a(f"""
    s_lshl_b32 s{sKVO}, s{sG}, 18
    s_lshl_b32 s{sT0}, s{sT2}, 12
    s_add_u32 s{sKVO}, s{sKVO}, s{sT0}
    s_add_u32 s{sKVO}, s{sKVO}, {hex(WS_KVM)}
    s_add_u32 s{sT0}, s{sKVO}, 0x20000
    s_lshl_b32 s{sST}, s{sG}, 20
    s_lshl_b32 s{sT1}, s{sT2}, 13
    s_add_u32 s{sST}, s{sST}, s{sT1}
    s_add_u32 s{sST}, s{sST}, {hex(WS_CTX + 32*8192)}
    """)
    for it in range(2):
        for t in range(4):
            a(f"buffer_load_dwordx4 {vr(KVM + 16*it + 4*t, 4)}, v{A16}, {WSR}, s{sKVO if it == 0 else sT0} offen offset:{1024*t} sc1")
    for i in range(4): a(f"v_sub_f32 v{GT+i}, 1.0, v{GT+i}")
    for it in range(2):
        Q = lambda t, tt: ar(96*it + 4*(2*t+tt), 4)
        K = lambda t, tt: ar(96*it + 32 + 4*(2*t+tt), 4)
        V = lambda f: ar(96*it + 64 + 4*f, 4)
        kv = KVM + 16*it
        D00, D10, D11, DM0, DM1 = S, S + 4, S + 8, S + 12, S + 16
        for D, qt, kt, msk in ((D00, 0, 0, 1), (D10, 1, 0, 0), (D11, 1, 1, 1)):
            for t in range(4):
                a(mf(vr(D,4), K(t,kt), Q(t,qt), (vr(CM,4) if msk else "0") if t == 0 else vr(D,4)))
        a("s_waitcnt vmcnt(4)" if it == 0 else "s_waitcnt vmcnt(8)")
        for t in range(4):
            a(f"ds_write2st64_b32 v{XTW}, v{kv+4*t}, v{kv+4*t+1} offset0:{2*t} offset1:{2*t+8}")
        for t in range(4):
            for x in range(2):
                a(f"ds_read_b64_tr_b16 {vr(KM+4*t+2*x,2)}, v{XTR} offset:{x*2048 + t*512}")
        a("s_waitcnt lgkmcnt(0)")
        for D, qt in ((DM0, 0), (DM1, 1)):
            for t in range(4):
                a(mf(vr(D,4), vr(KM+4*t,4), Q(t,qt), "0" if t == 0 else vr(D,4)))
        a("s_nop 3")
        for qt in range(2):
            vals = ([D00+i for i in range(4)] if qt == 0 else [D10+i for i in range(8)]) + [(DM0, DM1)[qt] + i for i in range(2)]
            a(f"v_max_f32 v{T0}, v{vals[0]}, v{vals[1]}")
            for i in range(2, len(vals), 2): a(f"v_max3_f32 v{T0}, v{T0}, v{vals[i]}, v{vals[i+1]}")
            for sw in ("v_permlane32_swap_b32", "v_permlane16_swap_b32"):
                a(f"v_mov_b32 v{T1}, v{T0}\ns_nop 1\n{sw} v{T1}, v{T0}\nv_max_f32 v{T0}, v{T0}, v{T1}")
            for v in vals: a(f"v_sub_f32 v{v}, v{v}, v{T0}")
            for v in vals: a(f"v_exp_f32 v{v}, v{v}")
            for i in range(0, len(vals) - 2, 2): a(f"v_cvt_pk_bf16_f32 v{PX+4*qt+i//2}, v{vals[i]}, v{vals[i+1]}")
            a(f"v_cvt_pk_bf16_f32 v{PMZ+4*qt}, v{vals[-2]}, v{vals[-1]}\nv_cvt_pk_bf16_f32 v{PMZ+4*qt+3}, v{vals[-2]}, v{vals[-1]}")
        a("s_nop 1")
        for qt in range(2): a(mf(vr(LL+4*qt,4), vr(ONES,4), vr(PX+4*qt,4), "0"))
        for f in range(8):
            for qt in range(2): a(mf(vr(OA+32*qt+4*f,4), V(f), vr(PX+4*qt,4), "0"))
        for qt in range(2): a(mf16(vr(LL+4*qt,4), vr(ONES,2), vr(PMZ+4*qt,2)))
        for qt in range(2):
            for f in range(8): a(mf16(vr(OA+32*qt+4*f,4), vr(kv+4*(f>>1)+2,2), vr(PMZ+4*qt+2*(f&1),2)))
        for qt in range(2):
            a(f"v_rcp_f32 v{T0+qt}, v{LL+4*qt}\ns_nop 0\nv_mul_f32 v{T0+qt}, v{T0+qt}, v{GT+2*it+qt}")
        a(f"s_add_u32 s{sT0}, s{sST}, 0x1000")
        for qt in range(2):
            for t in range(4):
                b = OA + 32*qt + 8*t; q = ST + 4*(4*qt + t)
                for i in range(8): a(f"v_mul_f32 v{b+i}, v{b+i}, v{T0+qt}")
                for i in range(4): a(f"v_cvt_pk_bf16_f32 v{q+i}, v{b+2*i}, v{b+2*i+1}")
                a(f"buffer_store_dwordx4 {vr(q,4)}, v{A16}, {WSR}, s{sST if t < 2 else sT0} offen offset:{((2*t+qt)*1024) & 4095} sc1")
        if it == 0: a(f"s_add_u32 s{sST}, s{sST}, 0x80000")
    a(f"""
    s_lshl_b32 s{sT0}, s{sG}, 7
    s_add_u32 s{sT0}, s{sT0}, {hex(CNT_XB)}
    s_cmp_eq_u32 s{w}, 0
    s_cselect_b32 s{sT0}, s{sT0}, {hex(OOB)}
    v_mov_b32 v{T0}, 1
    s_waitcnt vmcnt(0)
    s_barrier
    s_mov_b64 exec, 1
    buffer_atomic_add v{T0}, v{A16}, {WSR}, s{sT0} offen
    s_mov_b64 exec, -1
    """)
    stamp(a, 14)

ACC = 192
DM_, RB, WF, CX = 8, 12, 32, 128
def stage_loads(slot, hf):
    l = []
    for p in range(8):
        if p & 3 == 0: pass
        l += [f"s_add_u32 m0, s{sM0}, {slot*8192 + p*1024}", f"s_add_u32 s{sT0}, s{sWO}, {(64*hf + 8*p)*1024}",
              f"buffer_load_dwordx4 v{DM_}, s[48:51], s{sT0} offen lds"]
    for b in range(2):
        l.append(f"s_add_u32 s{sT0}, s{sCO}, {hex(b*0x80000 + hf*4096)}")
        for f in range(4):
            l.append(f"buffer_load_dwordx4 {vr(CX + 32*slot + 16*b + 4*f, 4)}, v{A16}, {WSR}, s{sT0} offen offset:{1024*f} sc1")
    if hf:
        l += [f"s_add_u32 s{sWO}, s{sWO}, 0x20000", f"s_add_u32 s{sCO}, s{sCO}, 0x2000", f"s_sub_u32 s{sNH}, s{sNH}, 1",
              f"s_cmp_eq_u32 s{sNH}, 0", f"s_cselect_b32 s{sWO}, {hex(OOB)}, s{sWO}", f"s_cselect_b32 s{sCO}, {hex(OOB)}, s{sCO}"]
    return l

def out_half(a):
    w = S_WAVE
    a(f"""
    s_cmp_eq_u32 s{sHALF}, 0
    s_cselect_b64 s[48:49], s[{S_WOA}:{S_WOA+1}], s[{S_WOB}:{S_WOB+1}]
    s_and_b32 s49, s49, 0xffff
    s_mov_b32 s50, 0x400000
    s_mov_b32 s51, 0x20000
    s_lshr_b32 s{sT0}, s{sG}, 2
    s_lshl_b32 s{sT0}, s{sT0}, 7
    s_add_u32 s{sT0}, s{sT0}, {hex(CNT_CTX)}
    s_lshl_b32 s{sT1}, s{sG}, 7
    s_add_u32 s{sT1}, s{sT1}, {hex(CNT_XB)}
    s_cmp_eq_u32 s{sHALF}, 0
    s_cselect_b32 s{sT2}, s{sT0}, s{sT1}
    s_cselect_b32 s{sT1}, 32, 8
    s_lshl_b32 s{sWO}, s{w}, 20
    s_lshl_b32 s{sT0}, s{sCB}, 7
    s_add_u32 s{sWO}, s{sWO}, s{sT0}
    s_lshl_b32 s{sCO}, s{sG}, 20
    s_lshl_b32 s{sT0}, s{sHALF}, 2
    s_add_u32 s{sT0}, s{sT0}, s{w}
    s_lshl_b32 s{sT0}, s{sT0}, 16
    s_add_u32 s{sCO}, s{sCO}, s{sT0}
    s_add_u32 s{sCO}, s{sCO}, {hex(WS_CTX)}
    s_lshl_b32 s{sM0}, s{w}, 15
    s_mov_b32 s{sNH}, 8
    s_mov_b32 s{sI}, 0
    v_lshrrev_b32 v{T2}, 4, v0
    v_lshlrev_b32 v{T2}, 1, v{T2}
    v_and_b32 v{T3}, 7, v0
    v_xor_b32 v{T2}, v{T2}, v{T3}
    v_lshlrev_b32 v{T2}, 4, v{T2}
    v_lshrrev_b32 v{T3}, 3, v0
    v_lshl_add_u32 v{DM_}, v{T3}, 10, v{T2}
    v_lshrrev_b32 v{T2}, 2, v0
    v_lshl_add_u32 v{RB}, v{T2}, 7, s{sM0}
    v_bfe_u32 v{T2}, v0, 3, 2
    v_lshl_add_u32 v{RB}, v{T2}, 5, v{RB}
    v_and_b32 v{T2}, 3, v0
    v_lshl_add_u32 v{RB}, v{T2}, 3, v{RB}
    v_xor_b32 v{RB+1}, 32, v{RB}
    v_xor_b32 v{RB+2}, 64, v{RB}
    v_xor_b32 v{RB+3}, 96, v{RB}
    """)
    wait_ge(a, "L_o_w", sT2, True, sT1)
    stamp(a, 15)
    for s in range(3): a.emit(stage_loads(s, s & 1))
    a("L_o_loop:")
    for s in range(4):
        wf = WF + 32 * (s & 1)
        a("s_waitcnt vmcnt(32)")
        for t in range(2):
            for ct in range(4):
                for x in range(2):
                    a(f"ds_read_b64_tr_b16 {vr(wf + 16*t + 4*ct + 2*x, 2)}, v{RB+ct} offset:{s*8192 + t*4096 + x*2048}")
        ld = stage_loads((s + 3) & 3, (s + 3) & 1)
        ms = []
        for t in range(2):
            for ct in range(4):
                for tt in range(4):
                    d = ar(ACC + 16*tt + 4*ct, 4)
                    ms.append(mf(d, vr(wf + 16*t + 4*ct, 4), vr(CX + 32*s + 16*(tt >> 1) + 4*(2*t + (tt & 1)), 4), d))
        a.emit(ld[:6]); ld = ld[6:]
        a("s_waitcnt lgkmcnt(8)")
        for i, m in enumerate(ms):
            if i == 16: a("s_waitcnt lgkmcnt(0)")
            a(m)
            a.emit(ld[:2]); ld = ld[2:]
        assert not ld
    a(f"s_add_u32 s{sI}, s{sI}, 1\ns_cmp_lt_u32 s{sI}, 4\ns_cbranch_scc1 L_o_loop\ns_waitcnt vmcnt(0)")

def gen_outx(a, next_label):
    w = S_WAVE
    a("L_outx:")
    a(f"v_lshlrev_b32 v{A16}, 4, v0\ns_mov_b32 s{sSPIN}, 0")
    for i in range(64): a(f"v_accvgpr_write_b32 a{ACC+i}, 0")
    a(f"""
    s_mov_b32 s{sHALF}, 0
    s_cmp_eq_u32 s{sORD}, 0
    s_cbranch_scc1 L_o_half
    L_o_xb:
    """)
    xb(a)
    a(f"""
    s_cmp_eq_u32 s{sORD}, 1
    s_cselect_b32 s{sHALF}, 0, 1
    L_o_half:
    """)
    out_half(a)
    stamp(a, 16)
    a(f"""
    s_cmp_eq_u32 s{sORD}, 4
    s_cbranch_scc1 L_o_fin
    s_xor_b32 s{sHALF}, s{sHALF}, 1
    s_mov_b32 s{sT0}, s{sORD}
    s_mov_b32 s{sORD}, 4
    s_cmp_eq_u32 s{sT0}, 0
    s_cbranch_scc0 L_o_half
    s_barrier
    s_branch L_o_xb
    L_o_fin:
    s_barrier
    s_lshl_b32 s{sT0}, s{w}, 14
    v_add_u32 v{T0}, s{sT0}, v{A16}
    """)
    for i in range(16): a(f"ds_write_b128 v{T0}, {ar(ACC+4*i,4)} offset:{1024*i}")
    set_srd(a, S_SRD1, S_OUT, 2048 * 512 * 2)
    a(f"""
    s_lshl_b32 s{sT0}, s{w}, 12
    v_bfe_u32 v{T1}, v0, 1, 2
    v_lshl_add_u32 v{T0}, v{T1}, 10, s{sT0}
    v_and_b32 v{T1}, 1, v0
    v_lshl_add_u32 v{T0}, v{T1}, 9, v{T0}
    v_lshrrev_b32 v{T1}, 3, v0
    v_lshl_add_u32 v{T0}, v{T1}, 4, v{T0}
    v_and_b32 v{T2}, 7, v0
    v_lshlrev_b32 v{T2}, 4, v{T2}
    v_lshl_add_u32 v{T2}, v{T1}, 10, v{T2}
    s_lshl_b32 s{sT0}, s{sG}, 16
    s_lshl_b32 s{sT1}, s{w}, 14
    s_add_u32 s{sT0}, s{sT0}, s{sT1}
    s_lshl_b32 s{sT1}, s{sCB}, 7
    s_add_u32 s{sT0}, s{sT0}, s{sT1}
    s_add_u32 s{sT1}, s{sT0}, 0x2000
    s_waitcnt lgkmcnt(0)
    s_barrier
    """)
    for r in range(2):
        for sw in range(4):
            for g in range(2):
                a(f"ds_read_b128 {vr(CX + 32*r + 8*sw + 4*g, 4)}, v{T0} offset:{sw*16384 + g*256 + r*128}")
    for r in range(2):
        b = CX + 32*r
        a(f"s_waitcnt lgkmcnt({8 - 8*r})")
        for i in range(8): a(f"v_add_f32 v{b+i}, v{b+i}, v{b+8+i}\nv_add_f32 v{b+16+i}, v{b+16+i}, v{b+24+i}")
        for i in range(8): a(f"v_add_f32 v{b+i}, v{b+i}, v{b+16+i}")
        for i in range(4): a(f"v_cvt_pk_bf16_f32 v{b+8+i}, v{b+2*i}, v{b+2*i+1}")
        a(f"buffer_store_dwordx4 {vr(b+8,4)}, v{T2}, s[48:51], s{sT1 if r else sT0} offen")
    a(f"s_barrier\ns_branch {next_label}")
```

```python
from common import *

V_TAB = 1
V_DMA = 2
V_RD = 16
V_ST = 8
V_FLG = 10
V_ONE = 11
V_T = 12
V_F = 32
V_Q = 64
ACC = (128, 192)
S_U, S_D0, S_D1, S_D2, S_DP, S_DPP = 56, 57, 58, 59, 60, 61
S_DOFF, S_DS, S_M0B, S_OUTP, S_SCP, S_T0, S_T1, S_FOFF, S_TB, S_XO, S_XM = 62, 63, 64, 65, 66, 67, 68, 69, 70, 71, 72

def unit_desc(mat, cb):
    return (mat << 24) | ((cb >> 1) << 19) | ((cb & 1) << 12) | (1 if mat in (2, 5) else 0) | (2 if mat in (0, 3) else 0) | ({1: 0, 2: 0, 0: 1, 4: 2, 5: 2, 3: 3}[mat] << 4)
INVALID = 4

def cursor_switch(d):
    l = [f"s_bfe_u32 s{S_T0}, s{d}, 0x30018",
         f"s_mov_b64 s[48:49], s[{S_WQA}:{S_WQA+1}]"]
    for m, p in ((1, S_WUK), (2, S_WUV), (3, S_WQB), (4, S_WKB), (5, S_WVB)):
        l += [f"s_cmp_eq_u32 s{S_T0}, {m}", f"s_cselect_b64 s[48:49], s[{p}:{p+1}], s[48:49]"]
    l += ["s_and_b32 s49, s49, 0xffff",
          f"s_bfe_u32 s{S_T0}, s{d}, 0x50013", f"s_lshl_b32 s{S_T0}, s{S_T0}, 8",
          f"s_bfe_u32 s{S_T1}, s{d}, 0x1000c", f"s_lshl_b32 s{S_T1}, s{S_T1}, 7",
          f"s_or_b32 s{S_DOFF}, s{S_T0}, s{S_T1}",
          f"s_bitcmp1_b32 s{d}, 2", f"s_cselect_b32 s{S_DOFF}, {hex(OOB)}, s{S_DOFF}"]
    return l

def dma(slot, kq, i):
    return [f"s_add_u32 m0, s{S_M0B}, {slot*16384 + i*1024}",
            f"s_add_u32 s{S_DS}, s{S_DOFF}, {kq*128*8192 + i*65536}",
            f"buffer_load_dwordx4 v{V_DMA + (i & 1)}, s[48:51], s{S_DS} offen lds"]

def prev_decode():
    return [f"s_and_b32 s{S_OUTP}, s{S_DP}, 0x7fff000",
            f"s_bitcmp1_b32 s{S_DP}, 2", f"s_cselect_b32 s{S_OUTP}, {hex(OOB)}, s{S_OUTP}" if not OPTS.get("oobstore") else f"s_mov_b32 s{S_OUTP}, {hex(OOB)}",
            f"s_bitcmp1_b32 s{S_DP}, 1", f"s_cselect_b32 s{S_SCP}, {fbits(SM_SCALE)}, 1.0"]

def flag_ops(d):
    return [f"s_bfe_u32 s{S_T0}, s{d}, 0x50013", f"s_lshl_b32 s{S_T0}, s{S_T0}, 7",
            f"s_bfe_u32 s{S_T1}, s{d}, 0x20004", f"s_lshl_b32 s{S_T1}, s{S_T1}, 5",
            f"s_or_b32 s{S_FOFF}, s{S_T0}, s{S_T1}",
            f"s_bitcmp1_b32 s{d}, 2", f"s_cselect_b32 s{S_FOFF}, {hex(OOB)}, s{S_FOFF}"]
def flag_store():
    return f"buffer_atomic_add v{V_ONE}, v{V_FLG}, {WSR}, s{S_FOFF} offen"

def acc16(par, vtype, tt4, ct4):
    if vtype: piece, sub = 4 * (tt4 >> 1) + ct4, tt4 & 1
    else:     piece, sub = 4 * (tt4 >> 1) + 2 * (ct4 >> 1) + (tt4 & 1), ct4 & 1
    return ACC[par] + 8 * piece + 4 * sub

def epi_tile(par, tile):
    tt, ct = tile >> 1, tile & 1
    b = ACC[par] + 16 * tile
    out = []
    for u in range(2):
        q = V_Q + 4 * ((2 * tile + u) & 3)
        for j in range(4):
            r = b + 8 * u + 2 * j
            out += [f"v_mul_f32 v{r}, s{S_SCP}, v{r}", f"v_mul_f32 v{r+1}, s{S_SCP}, v{r+1}",
                    f"v_cvt_pk_bf16_f32 v{q+j}, v{r}, v{r+1}"]
        out.append(f"buffer_store_dwordx4 {vr(q,4)}, v{V_ST+tt}, {WSR}, s{S_OUTP} offen offset:{ct*2048+u*1024} {OPTS.get('stflag','sc1')}")
    return out

def rd(par, s, j):
    if OPTS.get("m16"):
        ct4, aa = 2 * (s & 1) + (j >> 1), j & 1
        f = V_F + 8 * (s & 3) + 4 * (j >> 1) + 2 * aa
        return f"ds_read_b64_tr_b16 {vr(f,2)}, v{V_RD+4*par+ct4} offset:{(s>>1)*4096+aa*512}"
    ct, aa = j >> 1, j & 1
    f = V_F + 8 * (s & 3) + 4 * ct + 2 * aa
    return f"ds_read_b64_tr_b16 {vr(f,2)}, v{V_RD+4*par+ct} offset:{s*2048+aa*512}"

def body(a, par, vtype):
    a(f"L_p_body_{par}_{vtype}:")
    mf = []
    for s in range(32):
        for ct in range(2):
            for tt in range(2):
                acc = vr(ACC[par] + 16 * (2 * tt + ct), 16)
                w = vr(V_F + 8 * (s & 3) + 4 * ct, 4); x = ar((tt * 32 + s) * 4, 4)
                A, B = (x, w) if vtype else (w, x)
                mf.append(f"v_mfma_f32_32x32x16_bf16 {acc}, {A}, {B}, {acc if s else 0}")
    m16 = OPTS.get("m16")
    if m16:
        mf = []
        for s in range(32):
            for c in range(2):
                ct4 = 2 * (s & 1) + c
                for tt4 in range(4):
                    acc = vr(acc16(par, vtype, tt4, ct4), 4)
                    w = vr(V_F + 8 * (s & 3) + 4 * c, 4); x = ar((tt4 * 16 + (s >> 1)) * 4, 4)
                    A, B = (x, w) if vtype else (w, x)
                    mf.append(f"v_mfma_f32_16x16x32_bf16 {acc}, {A}, {B}, {acc if s > 1 else 0}")
    G = Gaps(mf)
    salu = {}
    def S(i, *l): salu.setdefault(i, []).extend(l)
    mem = {}
    def M(i, *l): mem.setdefault(i, []).extend(l)
    valu = {}
    def V(i, *l): valu.setdefault(i, []).extend(l)
    for s in range(32):
        kq, ks = s >> 3, s & 7
        S(4 * s + 3, "s_waitcnt lgkmcnt(3)")
        for j in range(4):
            s2 = s + 2
            M(4 * s + j, rd(par if s2 < 32 else 1 - par, s2 & 31, j))
        if ks < 4:
            q = kq + 6
            slot = ((par * 4 + q) & 7)
            d = dma(slot, q & 3, ks)
            S(4 * s + 0, d[0]); S(4 * s + 1, d[1])
            if not OPTS.get("nodma"): M(4 * s + 1, d[2])
        if ks == 5:
            S(4 * s + 2, "s_waitcnt vmcnt(%d)" % (20 if OPTS.get("nostore") else 28), "s_barrier")
    pd = prev_decode()
    for i, x in enumerate(pd): S(2, x)
    V(8, f"v_readlane_b32 s{S_D2}, v{V_TAB}, s{S_U}")
    cs = cursor_switch(S_D2)
    for i, x in enumerate(cs): S(50 + i // 2, x)
    for t in range(4):
        g0 = (5 + 14 * t if t < 2 else 33 + 14 * (t - 2)) if not OPTS.get('spread') else 14 + 32 * t
        grp = epi_tile(1 - par, t)
        gi = g0; cnt = 0
        for x in grp:
            if x.startswith("buffer"):
                gi += 1; cnt = 0
                if not OPTS.get("nostore"): M(gi, x)
            else:
                V(gi, x); cnt += 1
                if cnt == 3: gi += 1; cnt = 0
    fo = flag_ops(S_DPP)
    for i, x in enumerate(fo): S(78 + i // 2, x)
    M(4 * 21 + 3, flag_store())
    S(120, f"s_mov_b32 s{S_DPP}, s{S_DP}", f"s_mov_b32 s{S_DP}, s{S_D0}")
    S(121, f"s_mov_b32 s{S_D0}, s{S_D1}", f"s_mov_b32 s{S_D1}, s{S_D2}")
    S(122, f"s_add_u32 s{S_U}, s{S_U}, 1")
    for i in range(128):
        sa, me, va = salu.get(i, []), mem.get(i, []), valu.get(i, [])
        if not m16:
            G.add(i, *(sa + me + va))
        else:
            h = (len(sa) + 1) // 2
            G.add(2 * i, *(sa[:h] + me[:1] + va[:1]))
            G.add(2 * i + 1, *(sa[h:] + me[1:] + va[1:]))
    G.emit(a)
    a(f"""
    s_bitcmp1_b32 s{S_D0}, 2
    s_cbranch_scc1 L_p_done_{par}
    s_bitcmp1_b32 s{S_D0}, 0
    s_cbranch_scc1 L_p_body_{1-par}_1
    s_branch L_p_body_{1-par}_0
    """)

def gen_pphase(a, next_label, src_sel_sreg, gate_sreg):
    a("L_p_start:")
    a(f"""
    s_cmp_eq_u32 s{src_sel_sreg}, 0
    s_cselect_b64 s[52:53], s[{S_X}:{S_X+1}], s[{S_C}:{S_C+1}]
    s_and_b32 s53, s53, 0xffff
    s_mov_b32 s54, 0x200000
    s_mov_b32 s55, 0x20000
    s_mov_b32 s50, 0x400000
    s_mov_b32 s51, 0x20000
    s_lshl_b32 s{S_M0B}, s{S_WAVE}, 12
    v_readlane_b32 s{S_D0}, v{V_TAB}, 0
    v_readlane_b32 s{S_D1}, v{V_TAB}, 1
    s_mov_b32 s{S_DP}, {INVALID}
    s_mov_b32 s{S_DPP}, {INVALID}
    s_mov_b32 s{S_U}, 2
    """)
    m16 = OPTS.get("m16")
    a(f"""
    v_lshrrev_b32 v{V_T}, 3, v0
    v_lshlrev_b32 v{V_DMA}, 13, v{V_T}
    v_and_b32 v{V_T}, 7, v0
    v_lshrrev_b32 v{V_T+1}, {3 if m16 else 2}, v0
    v_and_b32 v{V_T+1}, {2 if m16 else 4}, v{V_T+1}
    v_xor_b32 v{V_T}, v{V_T}, v{V_T+1}
    v_lshl_add_u32 v{V_DMA}, v{V_T}, 4, v{V_DMA}
    s_lshl_b32 s{S_T0}, s{S_WAVE}, 18
    v_add_u32 v{V_DMA}, s{S_T0}, v{V_DMA}
    v_xor_b32 v{V_DMA+1}, {64 if m16 else 0}, v{V_DMA}
    s_lshl_b32 s{S_T0}, s{S_TB}, 8
    s_lshl_b32 s{S_T1}, s{S_WAVE}, 6
    s_add_u32 s{S_T0}, s{S_T0}, s{S_T1}
    v_and_b32 v{V_T+3}, 31, v0
    v_add_u32 v{V_T+3}, s{S_T0}, v{V_T+3}
    v_lshlrev_b32 v{V_T+3}, 2, v{V_T+3}
    s_lshl_b32 s{S_XO}, s{S_T0}, 10
    s_lshl_b32 s{S_XM}, s{S_WAVE}, 15
    s_add_u32 s{S_XM}, s{S_XM}, 0x8000
    v_lshlrev_b32 v{V_T+2}, 4, v0
    """)
    for r in range(16): a(f"v_xor_b32 v{V_F+r}, {r*16}, v{V_T+2}")
    def xdma(tt, r):
        a(f"s_add_u32 m0, s{S_XM}, {r*1024}\ns_add_u32 s{S_DS}, s{S_XO}, {(tt*32+r)*1024}\nbuffer_load_dwordx4 v{V_F+(r&15)}, s[52:55], s{S_DS} offen lds")
    for r in range(32): xdma(0, r)
    a.emit(cursor_switch(S_D0))
    for q in range(2):
        for i in range(4): a.emit(dma(q, q, i))
    if m16:
        a(f"""
        v_and_b32 v{V_T}, 15, v0
        v_lshrrev_b32 v{V_T+1}, 4, v0
        v_xor_b32 v{V_T+1}, v{V_T+1}, v{V_T}
        v_lshlrev_b32 v{V_T+1}, 4, v{V_T+1}
        v_lshl_add_u32 v{V_T}, v{V_T}, 10, v{V_T+1}
        v_add_u32 v{V_Q}, s{S_XM}, v{V_T}
        """)
        for jj in range(1, 4): a(f"v_xor_b32 v{V_Q+jj}, {jj<<6}, v{V_Q}")
        def xread(tt):
            for t2 in range(2):
                for s in range(16):
                    a(f"ds_read_b128 {ar(((2*tt+t2)*16+s)*4,4)}, v{V_Q+(s&3)} offset:{t2*16384+(s>>2)*256}")
    else:
        a(f"""
        v_and_b32 v{V_T}, 15, v0
        v_lshrrev_b32 v{V_T+1}, 5, v0
        v_xor_b32 v{V_T+1}, v{V_T+1}, v{V_T}
        v_lshlrev_b32 v{V_T+1}, 4, v{V_T+1}
        v_and_b32 v{V_T}, 31, v0
        v_lshl_add_u32 v{V_T}, v{V_T}, 10, v{V_T+1}
        v_add_u32 v{V_Q}, s{S_XM}, v{V_T}
        """)
        for jj in range(1, 8): a(f"v_xor_b32 v{V_Q+jj}, {jj<<5}, v{V_Q}")
        def xread(tt):
            for s in range(32):
                a(f"ds_read_b128 {ar((tt*32+s)*4,4)}, v{V_Q+(s&7)} offset:{(s>>3)*256}")
    a("s_waitcnt vmcnt(8)")
    xread(0)
    a("s_waitcnt lgkmcnt(0)")
    for r in range(32): xdma(1, r)
    if m16:
        a(f"""
        v_lshrrev_b32 v{V_T}, 4, v0
        v_lshlrev_b32 v{V_RD}, 10, v{V_T}
        v_bfe_u32 v{V_T}, v0, 2, 2
        v_lshl_add_u32 v{V_RD}, v{V_T}, 7, v{V_RD}
        v_bfe_u32 v{V_T}, v0, 3, 2
        v_lshl_add_u32 v{V_RD}, v{V_T}, 5, v{V_RD}
        v_and_b32 v{V_T}, 3, v0
        v_lshl_add_u32 v{V_RD}, v{V_T}, 3, v{V_RD}
        """)
        for c in range(1, 4): a(f"v_xor_b32 v{V_RD+c}, {c*32}, v{V_RD}")
        for c in range(4): a(f"v_add_u32 v{V_RD+4+c}, 0x10000, v{V_RD+c}")
    else:
        a(f"""
        v_lshrrev_b32 v{V_T}, 5, v0
        v_lshlrev_b32 v{V_RD}, 10, v{V_T}
        v_bfe_u32 v{V_T}, v0, 2, 2
        v_lshl_add_u32 v{V_RD}, v{V_T}, 7, v{V_RD}
        v_bfe_u32 v{V_T}, v0, 3, 1
        v_lshl_add_u32 v{V_RD}, v{V_T}, 6, v{V_RD}
        v_bfe_u32 v{V_T}, v0, 4, 1
        v_lshl_add_u32 v{V_RD}, v{V_T}, 5, v{V_RD}
        v_and_b32 v{V_T}, 3, v0
        v_lshl_add_u32 v{V_RD}, v{V_T}, 3, v{V_RD}
        v_xor_b32 v{V_RD+1}, 64, v{V_RD}
        v_add_u32 v{V_RD+4}, 0x10000, v{V_RD}
        v_add_u32 v{V_RD+5}, 0x10000, v{V_RD+1}
        """)
    a(f"""
    s_lshl_b32 s{S_T0}, s{S_TB}, 3
    s_lshl_b32 s{S_T1}, s{S_WAVE}, 1
    s_add_u32 s{S_T0}, s{S_T0}, s{S_T1}
    s_lshl_b32 s{S_T0}, s{S_T0}, 13
    v_lshl_add_u32 v{V_ST}, v0, 4, s{S_T0}
    v_add_u32 v{V_ST+1}, 0x2000, v{V_ST}
    s_lshl_b32 s{S_T0}, s{S_TB}, 2
    s_add_u32 s{S_T0}, s{S_T0}, {hex(WS_FLAG)}
    s_cmp_eq_u32 s{S_WAVE}, 0
    s_cselect_b32 s{S_T0}, s{S_T0}, {hex(OOB)}
    v_mov_b32 v{V_FLG}, {hex(OOB)}
    v_mov_b32 v{V_ONE}, 1
    v_writelane_b32 v{V_FLG}, s{S_T0}, 0
    s_waitcnt vmcnt(0)
    """)
    xread(1)
    a("s_waitcnt lgkmcnt(0)\ns_barrier")
    for q in range(2, 4):
        for i in range(4): a.emit(dma(q, q, i))
    a.emit(cursor_switch(S_D1))
    for q in range(2):
        for i in range(4): a.emit(dma(4 + q, q, i))
    a(f"s_cmp_eq_u32 s{gate_sreg}, 0\ns_cbranch_scc1 L_p_nogate")
    set_srd(a, S_SRD2, S_GATEW, 1024)
    if m16:
        a(f"v_lshrrev_b32 v{V_T}, 4, v0\nv_lshlrev_b32 v{V_T}, 4, v{V_T}")
        for s in range(16):
            a(f"buffer_load_dwordx4 {vr(128+4*s,4)}, v{V_T}, s[52:55], 0 offen offset:{s*64}")
        a(f"v_and_b32 v{V_T+3}, {hex(0xffffffff ^ 64)}, v{V_T+3}\ns_waitcnt vmcnt(0)")
        for s in range(16):
            for tt in range(4):
                acc = vr(80 + 4 * tt, 4)
                a(f"v_mfma_f32_16x16x32_bf16 {acc}, {vr(128+4*s,4)}, {ar((tt*16+s)*4,4)}, {acc if s else 0}")
        gl = [(80 + 4 * tt, 64 * tt) for tt in range(4)]
    else:
        a(f"v_lshrrev_b32 v{V_T}, 5, v0\nv_lshlrev_b32 v{V_T}, 4, v{V_T}")
        for s in range(32):
            a(f"buffer_load_dwordx4 {vr(128+4*s,4)}, v{V_T}, s[52:55], 0 offen offset:{s*32}")
        a("s_waitcnt vmcnt(0)")
        for s in range(32):
            for tt in range(2):
                acc = vr(80 + 16 * tt, 16)
                a(f"v_mfma_f32_32x32x16_bf16 {acc}, {vr(128+4*s,4)}, {ar((tt*32+s)*4,4)}, {acc if s else 0}")
        gl = [(80 + 16 * tt, 128 * tt) for tt in range(2)]
    a(f"s_nop 15\ns_mov_b32 s{S_T0}, {hex(WS_GATE)}")
    for r, off in gl:
        a(f"""
        v_mul_f32 v{r}, {fbits(-1.4426950408889634)}, v{r}
        v_exp_f32 v{r}, v{r}
        s_nop 0
        v_add_f32 v{r}, 1.0, v{r}
        v_rcp_f32 v{r}, v{r}
        s_nop 0
        buffer_store_dword v{r}, v{V_T+3}, {WSR}, s{S_T0} offen offset:{off} sc1
        """)
    a("L_p_nogate:")
    set_srd(a, S_SRD2, S_DBG, 256)
    a(f"""
    v_mov_b32 v{V_T}, 0
    s_mov_b32 s{S_T0}, 0
    L_p_init:
    buffer_load_dword v{V_T+1}, v{V_T}, s[52:55], 0 offen sc1
    s_add_u32 s{S_T0}, s{S_T0}, 1
    s_cmp_gt_u32 s{S_T0}, {SPIN_MAX}
    s_cbranch_scc1 L_exit
    s_waitcnt vmcnt(0)
    v_cmp_ne_u32 vcc, 32, v{V_T+1}
    s_cbranch_vccnz L_p_init
    s_barrier
    s_mul_i32 s{S_FOFF}, s{S_TB}, 124
    s_add_u32 s{S_FOFF}, s{S_FOFF}, {hex(CNT_GATE - WS_FLAG)}
    s_cmp_eq_u32 s{gate_sreg}, 0
    s_cselect_b32 s{S_FOFF}, {hex(OOB)}, s{S_FOFF}
    """)
    a(flag_store())
    stamp(a, 1)
    for s in range(2):
        for j in range(4): a(rd(0, s, j))
    a(f"""
    s_waitcnt lgkmcnt(4)
    s_bitcmp1_b32 s{S_D0}, 0
    s_cbranch_scc1 L_p_body_0_1
    """)
    body(a, 0, 0); body(a, 0, 1); body(a, 1, 0); body(a, 1, 1)
    for par in range(2):
        a(f"L_p_done_{par}:")
        a.emit(prev_decode())
        a("s_nop 7")
        for t in range(4): a.emit(epi_tile(par, t))
        if par == 0: a("s_branch L_p_fin")
    a("L_p_fin:")
    a("s_waitcnt vmcnt(0) lgkmcnt(0)\ns_barrier")
    a.emit(flag_ops(S_DPP)); a(flag_store())
    a.emit(flag_ops(S_DP)); a(flag_store())
    a(f"s_branch {next_label}")
```

```python
from common import *

LB = 131072
L_QT, L_KT, L_VX, L_X = 0, 4096, 8192, 16384
A16, IDX, W16, WVB, DUM, XTW, XTR, OXW, H1ST, H1LD, H2ST, WT = range(12)
ONES = 12
PM0, ZERO, PM1 = 16, 17, 18
M, AQ, AK, AV, QF, KW, ST, KV = 20, 52, 60, 68, 76, 92, 108, 124
WO = 128
sS, sKX, sVX, sWARM, sFLG, sKVM, sH1L, sH2L, sH2S, sTAG, sTF, sSPIN, sT0, sT1, sMK, sMV, sKB0 = range(56, 73)
sH1 = 74
sSENT = 78
sSEL = 80
sC = 88; sLO = 89; sFFFE = 90; sRANGE = 91; sFL0 = 92; sTV = 93; sODD = 94; sWD = 73

class LG:
    def __init__(self): self.n = 0; self.t = {}; self.done = 0
    def op(self, tag, ins):
        self.n += 1; self.t[tag] = self.n; return ins
    def need(self, *tags):
        m = max(self.t[t] for t in tags)
        if m <= self.done: return []
        self.done = m
        return [f"s_waitcnt lgkmcnt({min(15, self.n - m)})"]

def nops(cyc):
    r = []; n = cyc // 4
    while n > 0:
        k = min(n, 16); r.append(f"s_nop {k-1}"); n -= k
    return r

def sm(acc, A, B): return f"v_smfmac_f32_16x16x64_bf16 {vr(acc,4)}, {vr(A,4)}, {B}, v{IDX}"
def d32(D, A, B, first): return f"v_mfma_f32_16x16x32_bf16 {vr(D,4)}, {vr(A,4)}, {vr(B,4)}, {'0' if first else vr(D,4)}"
def d16(D, A, B): return f"v_mfma_f32_16x16x16_bf16 {vr(D,4)}, {vr(A,2)}, {vr(B,2)}, {vr(D,4)}"

VORD = [(k >> 1, k & 1) for k in range(12)] + [(6, 0), (7, 0), (6, 1), (7, 1)]
VBUF = [QF, QF + 8, KW, KW + 8, ST, ST + 8, QF, QF + 8, ST, ST + 8, QF, QF + 8, ST, ST + 8, ST, ST + 8]
def wv_read(lg, k, u):
    j, tl = VORD[k]
    if OPTS.get("nowv") and k >= 6:
        lg.t[("wv", k, u)] = 0
        return "s_nop 0"
    return lg.op(("wv", k, u), f"ds_read_b128 {vr(VBUF[k] + 4*u, 4)}, v{WVB} offset:{(j&1)*16384 + tl*2048 + u*1024}")
def wv_next(cl):
    return f"v_xor_b32 v{WVB}, {hex(32768 * (1 if cl & 1 else 3))}, v{WVB}"
def wv_prefetch():
    lg = LG()
    return [wv_read(lg, k, u) for k in range(4) for u in range(2)] + [wv_next(1)] + [wv_read(lg, k, u) for k in (4, 5) for u in range(2)]
def ms_addrs():
    return [f"v_xor_b32 v{M + 8*cl + 4}, {cl*2048}, v{WT}" for cl in range(1, 4)]

def spin_check(a):
    a(f"s_add_u32 s{sSPIN}, s{sSPIN}, 1\ns_cmp_gt_u32 s{sSPIN}, {SPIN_MAX}\ns_cbranch_scc1 L_exit")

def step_loop(a_, sfx, stf):
    lg = LG()
    drop = [f"s{r} offen" for k, r in (("nokvm", sKVM), ("nowarm", sWARM), ("noflg", sFLG), ("notf", sTF), ("nodma", sKX), ("nodma", sVX)) if OPTS.get(k)]
    if OPTS.get("nohop"): drop += [f"s{sH1L} offen", f"s{sH2L} offen", f"s{sH2S} offen", "L_retry2", "vccnz L_poll1", "L_smslow", "L_fs"]
    if OPTS.get("nost"): drop += [f"s{sH1+n} offen" for n in range(4)]
    kill = []
    if OPTS.get("nobar"): kill += ["s_barrier"]
    if OPTS.get("nods"): kill += ["ds_read", "ds_write", "lgkmcnt"]
    if OPTS.get("nodsw"): kill += ["lgkmcnt"]
    if OPTS.get("novm"): kill += ["buffer_"]
    if OPTS.get("novalu"): kill += ["v_add", "v_mul", "v_cvt", "v_exp", "v_max", "v_mov", "v_xor", "v_cnd", "v_cmp", "v_rcp", "v_sub", "v_and", "v_lsh", "v_or", "v_bit", "v_min", "v_perm"]
    if OPTS.get("nonop"): kill += ["s_nop"]
    a0 = a_
    def a(x):
        for l in x.split("\n"):
            if not any(k in l for k in kill): a0(l)
    E = lambda *l: [a(x if not any(d in x for d in drop) else "s_nop 0") for y in l for x in (y if isinstance(y, list) else [y])]
    Q = lambda j, tl: sm(AQ + 4*tl, M + 4*j, ar((tl*8 + j)*8, 8))
    K = lambda j, tl: sm(AK + 4*tl, M + 4*j, ar(128 + (tl*8 + j)*8, 8))
    Vv = lambda k: sm(AV + 4*VORD[k][1], M + 4*VORD[k][0], vr(VBUF[k], 8))
    kxreg = lambda t, tt: (M if tt else KW) + 4*t
    kxr = lambda t, tt: lg.op(("kx", t, tt), f"ds_read_b128 {vr(kxreg(t,tt),4)}, v{A16} offset:{(2*t+tt)*1024}")
    qr = lambda t, x: lg.op(("q", t, x), f"ds_read_b64_tr_b16 {vr(QF + 4*t + 2*x, 2)}, v{XTR} offset:{L_QT + x*2048 + t*512}")
    kr = lambda t, x: lg.op(("k", t, x), f"ds_read_b64_tr_b16 {vr(KW + 4*t + 2*x, 2)}, v{XTR} offset:{L_KT + x*2048 + t*512}")
    mr = lambda j: lg.op(("m", j), f"ds_read_b128 {vr(M+4*j,4)}, v{M + 8*(j>>1) + 4} offset:{(j&1)*1024}")
    wr = lambda k, u: wv_read(lg, k, u)
    nv = lambda k: lg.need(("wv", k, 0), ("wv", k, 1))
    add = lambda d, x, y: f"v_add_f32 v{d}, v{x}, v{y}"
    mulc = lambda d: f"v_mul_f32 v{d}, s{sC}, v{d}"
    cvt = lambda d, x, y: f"v_cvt_pk_bf16_f32 v{d}, v{x}, v{y}"
    ex = lambda d, s_: f"v_exp_f32 v{d}, v{s_}"
    N0, N1 = "s_nop 0", "s_nop 1"
    prof = OPTS.get("tprof") and sfx == "_f"
    PSET = {1: [0,1,2,3,4,5,6,7,8], 2: [0,1,6,7,"a","b","c","d",8], 3: [0,5,"e","f","g",6,"h",7,8], 4: [0,2,"i","j",3,"k",4,"l",8]}.get(OPTS.get("tprof"), [])
    def P(k):
        if prof and k in PSET: k = PSET.index(k); a(f"s_memtime s[{8+2*k}:{9+2*k}]")
    def warm(cyc):
        if not OPTS.get("warm"): return nops(cyc)
        r = []
        for i in range(cyc // 16): r += [f"v_mov_b32 v{M+26}, 0", "s_nop 2"]
        return r + nops(cyc % 16)
    g2 = OPTS.get("g2", 100)
    B0_, B1_ = M + 8, M + 16
    def ld2(x, y): E(f"buffer_load_dwordx4 {vr(x,4)}, v{WT}, {WSR}, s{sH2L} offen sc1", f"buffer_load_dwordx4 {vr(y,4)}, v{WT}, {WSR}, s{sH2L} offen offset:1024 sc1")
    a(f"L_poll2{sfx}:")
    ld2(M, M + 4)
    spin_check(a)
    n2 = 2 if g2 else 0
    if g2:
        E(warm(g2 - 20))
        ld2(B0_, B1_)
    E(warm(OPTS.get("w2", 0)))
    a(f"L_entry{sfx}:")
    C0 = M + 24
    E(f"s_waitcnt vmcnt({n2+1})", f"ds_write_b128 v{WT}, {vr(M,4)}")
    P(0)
    E(Q(0,0), f"s_waitcnt vmcnt({n2})", f"ds_write_b128 v{WT}, {vr(M+4,4)} offset:1024", f"v_max3_u32 v{C0}, v{M}, v{M+1}, v{M+2}")
    E(Q(0,1), f"v_max3_u32 v{C0+1}, v{M+3}, v{M+4}, v{M+5}", f"v_max3_u32 v{C0}, v{C0}, v{M+6}, v{M+7}")
    E(Q(1,0), f"v_max_u32 v{C0}, v{C0}, v{C0+1}", f"v_cmp_eq_u32 vcc, -1, v{C0}")
    dmaV = lambda x: f"buffer_load_dwordx4 v{W16}, {WSR}, s{sVX} offen offset:{1024*x} sc1 lds"
    dmaK = lambda x: f"buffer_load_dwordx4 v{W16}, {WSR}, s{sKX} offen offset:{1024*x} sc1 lds"
    E(Q(1,1), f"s_mov_b32 m0, s{sMV}", f"v_lshlrev_b32 v{DUM}, 1, v{W16}", K(0,0), f"s_cbranch_vccnz L_retry2{sfx}", "s_waitcnt vmcnt(0)" if g2 else N0)
    E(K(0,1), dmaV(0), K(1,0), "s_waitcnt lgkmcnt(0)", "s_barrier")
    P(1)
    E(mr(2), K(1,1), mr(3), mr(4), Vv(0), mr(5), mr(6), Vv(1), mr(7))
    E(Vv(2), dmaV(1), f"v_mov_b32 v{PM0}, s{sTV}")
    E(Vv(3), lg.need(("m",2)), wr(6,0), Q(2,0), lg.need(("m",3)), wr(6,1), Q(3,0), lg.need(("m",4)), wr(7,0))
    E(Q(4,0), lg.need(("m",5)), wr(7,1), wv_next(2), Q(5,0), lg.need(("m",7)), kxr(0,0), f"buffer_load_dword v{DUM}, v{DUM}, {WSR}, s{sWARM} offen sc1")
    E(Q(6,0), kxr(1,0), Q(7,0), kxr(2,0), f"buffer_store_dword v{PM0}, v{ZERO}, {WSR}, s{sTF} offen sc1")
    E(Vv(4), f"s_mov_b32 m0, s{sMK}", kxr(3,0), Q(2,1), N0, wr(8,0), add(AQ,AQ,AQ+1))
    E(Q(3,1), wr(8,1), add(AQ+2,AQ+2,AQ+3), Vv(5), kxr(0,1), mulc(AQ), Q(4,1), wr(9,0), mulc(AQ+2))
    E(Q(5,1), wr(9,1), cvt(AQ,AQ,AQ), Q(6,1), kxr(1,1), cvt(AQ+1,AQ+2,AQ+2), Q(7,1), nv(7), f"buffer_load_dword v{DUM}, v{ZERO}, {WSR}, s{sFLG} offen sc1")
    P(2)
    E(Vv(6), N0, f"buffer_store_dwordx4 {vr(KV,4)}, v{W16}, {WSR}, s{sKVM} offen sc1", Vv(7), N0, wr(10,0), add(AQ+4,AQ+4,AQ+5))
    E(K(2,0), wr(10,1), add(AQ+6,AQ+6,AQ+7), K(3,0), nv(9), wr(11,0), mulc(AQ+4))
    E(Vv(8), wr(11,1), mulc(AQ+6), K(4,0), wv_next(3), cvt(AQ+4,AQ+4,AQ+4), Vv(9), wr(12,0), cvt(AQ+5,AQ+6,AQ+6))
    E(K(5,0), nv(10), lg.op("qw", f"ds_write2st64_b64 v{XTW}, {vr(AQ,2)}, {vr(AQ+4,2)} offset0:{L_QT//512} offset1:{L_QT//512+4}"))
    P("i")
    E(Vv(10), wr(12,1), K(6,0), nv(11), wr(13,0), Vv(11), wr(13,1), K(7,0), K(2,1), lg.need("qw"), "s_barrier")
    P("j")
    E(K(3,1), nv(12), qr(0,0), qr(0,1), Vv(12), qr(1,0), qr(1,1), K(4,1), nv(13), qr(2,0), qr(2,1))
    E(Vv(13), qr(3,0), qr(3,1), K(5,1), kxr(2,1), add(AK,AK,AK+1))
    E(K(6,1), kxr(3,1), add(AK+2,AK+2,AK+3), K(7,1), lg.need(("q",0,1)), wr(14,0), cvt(KV,AK,AK+2))
    P(3)
    SX = lambda t, tt: d32(AQ + 4*tt, kxreg(t,tt), QF + 4*t, t == 0)
    EX, PX, VX = M, M + 4, M + 16
    DM, LL = AK, AK + 4
    E(SX(0,0), lg.need(("q",3,1)), wr(14,1), dmaK(0), SX(1,0), add(AK+4,AK+4,AK+5), add(AK+6,AK+6,AK+7))
    E(SX(2,0), wr(15,0), cvt(KV+1,AK+4,AK+6))
    E(SX(3,0), lg.op("kw", f"ds_write2st64_b32 v{XTW}, v{KV}, v{KV+1} offset0:{L_KT//256} offset1:{L_KT//256+8}"), add(AV,AV,AV+1))
    E(SX(0,1), lg.need(("kx",3,1)), wr(15,1), add(AV+2,AV+2,AV+3), SX(1,1), N0, ex(EX,AQ), SX(2,1), "s_waitcnt vmcnt(5)", ex(EX+1,AQ+1))
    E(SX(3,1), lg.need("kw"), "s_barrier")
    P("k")
    E(kr(0,0), kr(0,1), kr(1,0), kr(1,1), Vv(14), nv(15), kr(2,0), kr(2,1), Vv(15), kr(3,0), kr(3,1))
    E(ex(EX+2,AQ+2), ex(EX+3,AQ+3), cvt(PX,EX,EX+1), ex(EX,AQ+4))
    P(4)
    SM = lambda t: d32(DM, KW + 4*t, QF + 4*t, t == 0)
    OA, OP = QF + 4, QF + 12
    vxr = lambda x: lg.op(("vx",x), f"ds_read_b128 {vr(VX+4*x,4)}, v{W16} offset:{L_VX+1024*x}")
    E(lg.need(("k",1,1)), SM(0), vxr(0), vxr(1), SM(1), lg.need(("k",3,1)), cvt(PX+1,EX+2,EX+3), ex(EX+1,AQ+5))
    E(SM(2), ex(EX+2,AQ+6), SM(3), f"s_cmp_eq_u32 s{sS}, 63", ex(EX+3,AQ+7), cvt(PX+2,EX,EX+1), cvt(PX+3,EX+2,EX+3))
    P("l")
    E(add(AV+4,AV+4,AV+5), add(AV+6,AV+6,AV+7))
    E(d32(LL, ONES, PX, True), lg.need(("vx",1)), ex(EX,DM))
    E(d32(OA, VX, PX, True), ex(EX+1,DM+1))
    E(d32(OA+4, VX+4, PX, True), cvt(PM0,EX,EX+1), cvt(KV+2,AV,AV+2), cvt(KV+3,AV+4,AV+6))
    E(d16(LL, ONES, PM0), "s_cbranch_scc1 L_team_last", cvt(PM1+1,EX,EX+1), wv_next(0))
    P(5)
    RI = LL + 1
    WA = M + 16
    zw = [f"v_mov_b64 {vr(WA+2*i,2)}, 0" for i in range(8)]
    E(d16(OA, KV+2, PM0), dmaK(1), zw[4], zw[5])
    E(d16(OA+4, KV+2, PM1), f"v_rcp_f32 v{RI}, v{LL}", f"v_subrev_u32 v{LL+2}, s{sLO}, v{LL}", f"v_cmp_le_u32 vcc, s{sRANGE}, v{LL+2}", zw[6])
    a(f"L_smback{sfx}:")
    for i in range(4): a(f"v_mul_f32 v{OA+i}, v{OA+i}, v{RI}")
    E(cvt(OP, OA, OA+1), cvt(OP+1, OA+2, OA+3))
    for i in range(4, 8): a(f"v_mul_f32 v{OA+i}, v{OA+i}, v{RI}")
    E(cvt(OP+2, OA+4, OA+5), cvt(OP+3, OA+6, OA+7), f"s_cbranch_vccnz L_smslow{sfx}")
    OF = [OP, KW + 4, KW + 8, KW + 12]
    WOm = lambda n, il: sm(WA + 4*n, OF[il], vr(WO + (n*4 + il)*8, 8))
    SEL, RD, HD = M, M + 4, M + 8
    sel = [f"v_lshrrev_b32 v{RD}, 16, v{ONES}", f"v_cndmask_b32 v{RD}, v{RD}, 1.0, s[{sODD}:{sODD+1}]"] + [f"v_cndmask_b32 v{SEL+i}, 0, v{RD}, s[{sSEL+2*i}:{sSEL+2*i+1}]" for i in range(4)]
    P("e")
    E(lg.op("ow", f"ds_write_b128 v{OXW}, {vr(OP,4)}"), zw[7], zw[:4])
    for il in range(1, 4): a(f"v_xor_b32 v{OF[il]}, {il*512}, v{OXW}")
    E(sel[:2])
    P("f")
    E(lg.need("ow"), "s_barrier")
    P("g")
    for il in range(1, 4): a(lg.op(("o", il), f"ds_read_b128 {vr(OF[il],4)}, v{OF[il]}"))
    E(WOm(0,0), sel[2], WOm(1,0), sel[3], WOm(2,0), sel[4], WOm(3,0), sel[5], lg.need(("o",1)))
    P(6)
    def post(n):
        b = WA + 4*n
        return [cvt(b, b, b+1), cvt(b+1, b+2, b+3), f"v_and_or_b32 v{b}, v{b}, -2, s{sTAG}",
                f"buffer_store_dwordx2 {vr(b,2)}, v{H1ST}, {WSR}, s{sH1+n} offen {stf}"]
    z = [f"v_mov_b64 {vr(AQ+2*i,2)}, 0" for i in range(12)]
    p0, p1, p2, p3 = post(0), post(1), post(2), post(3)
    E(WOm(0,1), lg.need(("o",2)), z[0], WOm(0,2), lg.need(("o",3)), z[1], WOm(0,3), N1, z[2])
    E(WOm(1,1), N1, z[3], WOm(1,2), p0[0], WOm(1,3), N1, p0[1])
    E(WOm(2,1), N1, p0[2], WOm(2,2), p0[3], p1[0], WOm(2,3), N1, p1[1])
    E(WOm(3,1), N1, p1[2], WOm(3,2), p1[3], p2[0], WOm(3,3))
    P("h")
    E(N1, p2[1], p2[2], p2[3], "s_nop 2", p3)
    P(7)
    d1, d1s, d2 = OPTS.get("d1", 250), OPTS.get("d1s", 48), OPTS.get("d2", 200)
    prev = 0
    for w in range(4):
        want = max(0, d1 - (3 - w) * d1s)
        if w > 0 and want > prev: a(f"s_cmp_lt_u32 s{S_WAVE}, {w}\ns_cbranch_scc1 L_poll1{sfx}"); prev += 8
        E(warm(max(0, want - prev))); prev = max(prev, want)
    g1, g2 = OPTS.get("g1", 120), OPTS.get("g2", 100)
    T1 = M + 24
    def ld1(b): E(f"buffer_load_dwordx4 {vr(b,4)}, v{H1LD}, {WSR}, s{sH1L} offen sc1", f"buffer_load_dwordx4 {vr(b+4,4)}, v{H1LD}, {WSR}, s{sH1L} offen offset:1024 sc1")
    def try1(b, n):
        E(f"s_waitcnt vmcnt({n+1})")
        if b == HD: P("b")
        E(d32(RD, b, SEL, True), f"v_bitop3_b32 v{T1}, v{b}, v{b+2}, s{sTAG} bitop3:0x7e", f"s_waitcnt vmcnt({n})")
        if b == HD: P("c")
        E(d32(RD, b+4, SEL, False), f"v_bitop3_b32 v{T1+1}, v{b+4}, v{b+6}, s{sTAG} bitop3:0x7e",
          f"v_or_b32 v{T1}, v{T1}, v{T1+1}", f"v_and_b32 v{T1}, 1, v{T1}", f"v_cmp_ne_u32 vcc, 0, v{T1}", "s_nop 2")
    a(f"L_poll1{sfx}:")
    P("a")
    ld1(HD)
    if not g1:
        spin_check(a)
        E(z[4:], warm(OPTS.get("w1", 0)))
        try1(HD, 0)
        E(f"s_cbranch_vccnz L_poll1{sfx}")
    else:
        E(z[4:], warm(g1 - 40))
        ld1(HD + 8)
        E(warm(OPTS.get("w1", 0)))
        a(f"L_poll1b{sfx}:")
        try1(HD, 2)
        E(f"s_cbranch_vccnz L_retry1{sfx}")
        a(f"L_got1{sfx}:")
    P("d")
    E(add(RD,RD,RD+1), add(RD+2,RD+2,RD+3), N1, f"v_permlane16_swap_b32 v{RD}, v{RD+2}", add(RD,RD,RD+2), cvt(RD, RD, ZERO),
      f"v_min_u32 v{RD}, s{sFFFE}, v{RD}", f"v_cndmask_b32 v{RD}, v{RD}, -1, s[{sSENT}:{sSENT+1}]")
    E(f"buffer_store_short v{RD}, v{H2ST}, {WSR}, s{sH2S} offen {stf}")
    P(8)
    E(wv_prefetch())
    E(f"v_cmp_ne_u32 vcc, 4, v{DUM}", f"v_xor_b32 v{H2ST}, 0x2000, v{H2ST}", f"v_xor_b32 v{WT}, 0x2000, v{WT}", f"v_xor_b32 v{A16}, 0x2000, v{A16}",
      "s_waitcnt vmcnt(1)", ms_addrs(), f"s_cbranch_vccnz L_fs{sfx}")
    a(f"L_fsback{sfx}:")
    advance(a)
    if prof:
        a("s_waitcnt lgkmcnt(0)\ns_sub_u32 s4, s8, s26\ns_add_u32 s36, s36, s4\ns_mov_b32 s26, s24")
        for k in range(8): a(f"s_sub_u32 s4, s{10+2*k}, s{8+2*k}\ns_add_u32 s{28+k}, s{28+k}, s4")
    E(warm(max(0, d2 - 160)), f"s_branch L_poll2{sfx}")
    a(f"L_retry2{sfx}:")
    if not g2:
        E("s_nop 7", z[:6], f"s_branch L_poll2{sfx}")
    else:
        E("s_waitcnt vmcnt(0)", f"v_max3_u32 v{C0}, v{B0_}, v{B0_+1}, v{B0_+2}", f"v_max3_u32 v{C0+1}, v{B0_+3}, v{B1_}, v{B1_+1}",
          f"v_max3_u32 v{C0}, v{C0}, v{B1_+2}, v{B1_+3}", f"v_max_u32 v{C0}, v{C0}, v{C0+1}", f"v_cmp_eq_u32 vcc, -1, v{C0}",
          [f"v_mov_b64 {vr(M+2*i,2)}, {vr((B0_ if i < 2 else B1_ - 4)+2*i,2)}" for i in range(4)], z[:6])
        if prof: a("s_add_u32 s37, s37, 1")
        E(f"s_cbranch_vccnz L_poll2{sfx}", f"s_branch L_entry{sfx}")
    if g1:
        a(f"L_retry1{sfx}:")
        ld1(HD)
        spin_check(a)
        try1(HD + 8, 2)
        E(f"s_cbranch_vccz L_got1{sfx}")
        ld1(HD + 8)
        E(f"s_branch L_poll1b{sfx}")
    a(f"L_smslow{sfx}:")
    E(f"v_max3_f32 v{EX+2}, v{AQ}, v{AQ+1}, v{AQ+2}", f"v_max3_f32 v{EX+2}, v{EX+2}, v{AQ+3}, v{AQ+4}",
      f"v_max3_f32 v{EX+2}, v{EX+2}, v{AQ+5}, v{AQ+6}", f"v_max3_f32 v{EX+2}, v{EX+2}, v{AQ+7}, v{DM}", f"v_max_f32 v{EX+2}, v{EX+2}, v{DM+1}")
    for sw in ("v_permlane32_swap_b32", "v_permlane16_swap_b32"):
        E(f"v_mov_b32 v{EX}, v{EX+2}", N1, f"{sw} v{EX}, v{EX+2}", f"v_max_f32 v{EX+2}, v{EX+2}, v{EX}")
    for i in range(5):
        s0 = AQ + 2*i if i < 4 else DM
        E(f"v_sub_f32 v{EX}, v{s0}, v{EX+2}", f"v_sub_f32 v{EX+1}, v{s0+1}, v{EX+2}", ex(EX, EX), ex(EX+1, EX+1), N0)
        if i < 4: E(cvt(PX+i, EX, EX+1))
        else: E(cvt(PM0, EX, EX+1), cvt(PM1+1, EX, EX+1))
    E(N1, d32(LL, ONES, PX, True), d32(OA, VX, PX, True), d32(OA+4, VX+4, PX, True), "s_nop 3",
      d16(LL, ONES, PM0), d16(OA, KV+2, PM0), d16(OA+4, KV+2, PM1), "s_nop 7",
      f"v_rcp_f32 v{RI}, v{LL}", "s_mov_b64 vcc, 0", f"s_branch L_smback{sfx}")
    flag_spin(a, sfx, sFLG)
    a(f"s_branch L_fsback{sfx}")

def flag_spin(a, sfx, reg):
    a(f"""
    L_fs{sfx}:
    buffer_load_dword v{DUM}, v{ZERO}, {WSR}, s{reg} offen sc1
    """)
    spin_check(a)
    a(f"""
    s_waitcnt vmcnt(0)
    v_cmp_ne_u32 vcc, 4, v{DUM}
    s_cbranch_vccnz L_fs{sfx}
    """)

def advance(a):
    a(f"""
    s_max_i32 s{sTV}, s{sS}, 0
    s_add_u32 s{sS}, s{sS}, 1
    s_xor_b32 s{sTAG}, s{sTAG}, 1
    s_add_u32 s{sVX}, s{sKX}, 0x1000000
    s_add_u32 s{sT0}, s{sS}, 1
    s_min_u32 s{sT0}, s{sT0}, 63
    s_lshl_b32 s{sT0}, s{sT0}, 13
    s_add_u32 s{sKX}, s{sKB0}, s{sT0}
    s_add_u32 s{sWARM}, s{sKX}, s{sWD}
    s_add_u32 s{sT0}, s{sS}, 2
    s_min_u32 s{sT0}, s{sT0}, 63
    s_lshr_b32 s{sT0}, s{sT0}, 3
    s_lshl2_add_u32 s{sFLG}, s{sT0}, s{sFL0}
    s_add_u32 s{sKVM}, s{sKVM}, 0x20000
    s_xor_b32 s{sMK}, s{sMK}, 0x2000
    """)

def gen_team(a):
    h, w = S_RANK, S_WAVE
    T = 20
    a("L_team:")
    a(f"""
    s_mov_b32 s{sSPIN}, 0
    v_lshrrev_b32 v{T}, 4, v0          ; g
    v_and_b32 v{T+1}, 15, v0           ; r
    v_and_b32 v{T+2}, 1, v0
    v_cmp_eq_u32 vcc, 1, v{T+2}
    v_mov_b32 v{T+3}, 0x44444444
    v_mov_b32 v{T+4}, 0xeeeeeeee
    v_cndmask_b32 v{IDX}, v{T+3}, v{T+4}, vcc
    s_lshl_b32 s{sT0}, s{w}, 11
    s_add_u32 s{sT0}, s{sT0}, {LB}
    v_lshl_add_u32 v{W16}, v0, 4, s{sT0}
    v_add_u32 v{WT}, {L_X + 0x2000}, v{W16}
    s_sub_u32 s{sWD}, 0x1000000, s{sT0}
    s_lshl_b32 s{sT0}, s{w}, 12
    v_lshl_add_u32 v{WVB}, v0, 4, s{sT0}
    s_lshl_b32 s{sT0}, s{w}, 9
    s_add_u32 s{sT0}, s{sT0}, {LB}
    v_bfe_u32 v{T+2}, v0, 3, 1
    v_lshl_add_u32 v{XTW}, v{T+2}, 8, s{sT0}
    v_lshl_add_u32 v{XTW}, v{T}, 6, v{XTW}
    v_and_b32 v{T+2}, 7, v0
    v_lshl_add_u32 v{XTW}, v{T+2}, 3, v{XTW}
    v_lshrrev_b32 v{T+2}, 5, v0
    v_lshlrev_b32 v{XTR}, 8, v{T+2}
    v_and_b32 v{T+2}, 3, v0
    v_lshl_add_u32 v{XTR}, v{T+2}, 6, v{XTR}
    v_bfe_u32 v{T+2}, v0, 2, 3
    v_lshl_add_u32 v{XTR}, v{T+2}, 3, v{XTR}
    v_add_u32 v{XTR}, {LB}, v{XTR}
    s_lshl_b32 s{sT0}, s{w}, 9
    s_add_u32 s{sT0}, s{sT0}, {LB + L_QT}
    v_lshrrev_b32 v{T+2}, 1, v0
    v_lshl_add_u32 v{OXW}, v{T+2}, 4, s{sT0}
    ; H1ST = (8w + (l>>3))*2048 + h*64 + (l&7)*8
    s_lshl_b32 s{sT0}, s{w}, 14
    s_lshl_b32 s{sT1}, s{h}, 6
    s_add_u32 s{sT0}, s{sT0}, s{sT1}
    v_lshrrev_b32 v{T+2}, 3, v0
    v_lshl_add_u32 v{H1ST}, v{T+2}, 11, s{sT0}
    v_and_b32 v{T+2}, 7, v0
    v_lshl_add_u32 v{H1ST}, v{T+2}, 3, v{H1ST}
    v_lshlrev_b32 v{H1LD}, 8, v{T}
    v_bfe_u32 v{T+2}, v0, 2, 1
    v_lshl_add_u32 v{H1LD}, v{T+2}, 7, v{H1LD}
    v_and_b32 v{T+2}, 1, v0
    v_lshl_add_u32 v{H1LD}, v{T+2}, 6, v{H1LD}
    v_bfe_u32 v{T+2}, v0, 3, 1
    v_lshl_add_u32 v{H1LD}, v{T+2}, 5, v{H1LD}
    v_bfe_u32 v{T+2}, v0, 1, 1
    v_lshl_add_u32 v{H1LD}, v{T+2}, 4, v{H1LD}
    s_lshl_b32 s{sT0}, s{w}, 16
    s_lshl_b32 s{sT1}, s{h}, 11
    s_add_u32 s{sT0}, s{sT0}, s{sT1}
    s_add_u32 s{sH1L}, s{sT0}, {hex(WS_HOP1)}
    v_bfe_u32 v{T+2}, v0, 3, 1
    v_lshlrev_b32 v{H2ST}, 13, v{T+2}
    v_lshl_add_u32 v{H2ST}, v{T}, 3, v{H2ST}
    v_bfe_u32 v{T+2}, v0, 1, 1
    v_lshl_add_u32 v{H2ST}, v{T+2}, 5, v{H2ST}
    v_bfe_u32 v{T+2}, v0, 2, 1
    v_lshl_add_u32 v{H2ST}, v{T+2}, 2, v{H2ST}
    v_and_b32 v{T+2}, 1, v0
    v_lshl_add_u32 v{H2ST}, v{T+2}, 1, v{H2ST}
    s_lshl_b32 s{sH2S}, s{w}, 11
    s_lshr_b32 s{sT0}, s{h}, 3
    s_lshl_b32 s{sT0}, s{sT0}, 9
    s_add_u32 s{sH2S}, s{sH2S}, s{sT0}
    s_and_b32 s{sT0}, s{h}, 1
    s_lshl_b32 s{sT0}, s{sT0}, 8
    s_add_u32 s{sH2S}, s{sH2S}, s{sT0}
    s_bfe_u32 s{sT0}, s{h}, 0x20001
    s_lshl_b32 s{sT0}, s{sT0}, 6
    s_add_u32 s{sH2S}, s{sH2S}, s{sT0}
    s_add_u32 s{sH2S}, s{sH2S}, {hex(WS_HOP2)}
    s_mov_b32 s{sH2L}, {hex(WS_HOP2 - LB - L_X)}
    s_lshl_b32 s{sFL0}, s{h}, 7
    s_add_u32 s{sFL0}, s{sFL0}, {hex(WS_FLAG + 64)}
    s_lshl_b32 s{sKB0}, s{h}, 19
    s_add_u32 s{sKB0}, s{sKB0}, {hex(WS_PROJ + (4 << 24) - LB)}
    s_mov_b32 s{sODD}, 0xaaaaaaaa
    s_mov_b32 s{sODD+1}, 0xaaaaaaaa
    v_mov_b32 v{ZERO}, 0
    v_mov_b32 v{PM1}, 0
    v_mov_b32 v{PM0}, 0
    v_mov_b32 v{ONES+0}, 0x3f803f80
    v_mov_b32 v{ONES+1}, 0x3f803f80
    v_mov_b32 v{ONES+2}, 0x3f803f80
    v_mov_b32 v{ONES+3}, 0x3f803f80
    s_mov_b32 s{sSENT}, 0xff00ff00
    s_mov_b32 s{sSENT+1}, 0xff00ff00
    s_mov_b32 s{sC}, {fbits(SM_SCALE)}
    s_mov_b32 s{sLO}, {hex((127 - 60) << 23)}
    s_mov_b32 s{sRANGE}, {hex(OPTS.get('smrange', 120) << 23)}
    s_mov_b32 s{sFFFE}, 0xfffe
    s_lshl_b32 s{sT0}, s{w}, 11
    s_add_u32 s{sMK}, s{sT0}, {LB + L_X}
    s_add_u32 s{sMV}, s{sT0}, {LB + L_VX}
    s_lshl_b32 s{sT0}, s{h}, 7
    s_add_u32 s{sT0}, s{sT0}, {hex(FLAG_T)}
    s_cmp_eq_u32 s{w}, 0
    s_cselect_b32 s{sTF}, s{sT0}, {hex(OOB)}
    """)
    for i in range(4):
        a(f"s_mov_b32 s{sSEL+2*i}, {hex(0x03030303 << (2*i))}\ns_mov_b32 s{sSEL+2*i+1}, {hex(0x03030303 << (2*i))}\ns_mov_b32 s{sH1+i}, {hex(WS_HOP1 + i*65536)}")
    for n in range(4): a(f"buffer_store_dwordx2 {vr(PM0,2)}, v{H1ST}, {WSR}, s{sH1+n} offen sc1")
    a(f"""
    v_mov_b32 v{T+2}, 0xffff
    buffer_store_short v{T+2}, v{H2ST}, {WSR}, s{sH2S} offen sc1
    s_mul_i32 s{sT0}, s{w}, 4
    s_lshr_b32 s{sT0}, 0x7640, s{sT0}
    s_and_b32 s{sT0}, s{sT0}, 15
    s_lshl_b32 s{sT0}, s{sT0}, 12
    s_lshl_b32 s{sT1}, s{h}, 7
    s_add_u32 s{sT0}, s{sT0}, s{sT1}
    s_add_u32 s{sT0}, s{sT0}, {hex(WS_FLAG + OPTS.get('noclear', 0) * OOB)}
    v_and_b32 v{T+3}, 31, v0
    v_lshlrev_b32 v{T+3}, 2, v{T+3}
    buffer_store_dword v{ZERO}, v{T+3}, {WSR}, s{sT0} offen sc1
    """)
    set_srd(a, S_SRD2, S_DBG, 256)
    a(f"""
    s_lshl_b32 s{sT0}, 1, s{S_XCC}
    v_mov_b32 v{T+2}, s{sT0}
    s_cmp_eq_u32 s{w}, 0
    s_cselect_b32 s{sT1}, 0, {hex(OOB)}
    s_mov_b64 exec, 1
    buffer_atomic_or v{T+2}, v{ZERO}, s[52:55], s{sT1} offen offset:128
    s_mov_b64 exec, -1
    """)
    D0, D1, R0 = T + 6, T + 7, T + 8
    a(f"""
    v_bfe_u32 v{T+2}, v0, 4, 1          ; lo
    v_lshrrev_b32 v{T+3}, 5, v0         ; a
    s_lshl_b32 s{sT0}, s{w}, 1
    v_or_b32 v{T+4}, s{sT0}, v{T+2}
    v_lshlrev_b32 v{T+4}, 1, v{T+4}
    v_xor_b32 v{T+4}, v{T+4}, v{T+1}
    v_lshlrev_b32 v{T+4}, 4, v{T+4}
    v_lshl_add_u32 v{T+5}, v{T+2}, 4, v{T+3}
    v_add_u32 v{T+5}, s{sT0}, v{T+5}
    v_lshl_add_u32 v{D0}, v{T+5}, 13, v{T+4}
    s_lshl_b32 s{sT1}, s{h}, 8
    v_add_u32 v{D0}, s{sT1}, v{D0}
    s_lshl_b32 s{sT0}, s{w}, 4
    v_add_u32 v{T+5}, s{sT0}, v{T}
    v_lshl_add_u32 v{D1}, v{T+5}, 10, v{T+4}
    s_lshl_b32 s{sT1}, s{h}, 17
    v_add_u32 v{D1}, s{sT1}, v{D1}
    v_lshrrev_b32 v{T+2}, 5, v0
    v_lshlrev_b32 v{R0}, 12, v{T+2}
    v_bfe_u32 v{T+2}, v0, 3, 1          ; hf
    v_lshl_add_u32 v{R0}, v{T+2}, 11, v{R0}
    v_lshlrev_b32 v{T+4}, 2, v{T+2}
    v_bfe_u32 v{T+2}, v0, 4, 1          ; gl
    v_lshl_add_u32 v{R0}, v{T+2}, 10, v{R0}
    v_lshl_add_u32 v{T+4}, v{T+2}, 1, v{T+4}
    v_bfe_u32 v{T+2}, v0, 2, 1          ; lo
    v_lshl_add_u32 v{R0}, v{T+2}, 8, v{R0}
    v_add_u32 v{T+4}, v{T+4}, v{T+2}
    s_lshl_b32 s{sT0}, s{w}, 1
    v_xor_b32 v{T+4}, s{sT0}, v{T+4}
    v_lshl_add_u32 v{R0}, v{T+4}, 5, v{R0}
    v_and_b32 v{T+2}, 3, v0
    v_lshl_add_u32 v{R0}, v{T+2}, 3, v{R0}
    v_xor_b32 v{R0+1}, 32, v{R0}
    v_bfe_u32 v{T+2}, v0, 3, 1
    v_mul_u32_u24 v{T+2}, {2048 + 128 + 32}, v{T+2}
    v_xor_b32 v{R0+4}, v{T+2}, v{R0}
    v_xor_b32 v{R0+5}, {2048 + 128}, v{R0+4}
    s_mov_b32 s50, 0x400000
    s_mov_b32 s51, 0x20000
    s_lshl_b32 s{sS}, s{w}, 10
    """)
    ptr = [S_WQB, S_WKB, S_WOB, S_WVB]
    def wdma(q):
        mt, j = q >> 3, q & 7
        if j == 0: a(f"s_mov_b32 s48, s{ptr[mt]}\ns_and_b32 s49, s{ptr[mt]+1}, 0xffff")
        for i in range(4):
            u, gh = i >> 1, i & 1
            if mt == 2: so = (64 * (j & 1) + 8 * u + 4 * gh) * 1024 + (j >> 1) * 256
            else: so = (64 * j + 32 * u + 8 * gh) * 8192
            a(f"s_add_u32 m0, s{sS}, {j*16384 + i*4096}\ns_mov_b32 s{sT0}, {so}\nbuffer_load_dwordx4 v{D1 if mt == 2 else D0}, s[48:51], s{sT0} offen lds")
    for q in range(7): wdma(q)
    for q in range(32):
        mt, j = q >> 3, q & 7
        a(f"s_waitcnt vmcnt({4*min(6, 31-q)})\ns_barrier")
        if q == 0:
            a(f"""
            v_mov_b32 v{T+2}, 1
            s_cmp_eq_u32 s{w}, 0
            s_cselect_b32 s{sT1}, 0, {hex(OOB)}
            s_mov_b64 exec, 1
            buffer_atomic_add v{T+2}, v{ZERO}, s[52:55], s{sT1} offen
            s_mov_b64 exec, -1
            """)
        if q + 7 < 32: wdma(q + 7)
        rb = R0 + 4 if mt == 2 else R0
        a(f"v_add_u32 v{R0+2}, {j*16384}, v{rb}\nv_add_u32 v{R0+3}, {j*16384}, v{rb+1}")
        def reads(wv):
            for tl in range(2):
                for u in range(2):
                    for x in range(2):
                        o = 4 * u + 2 * x
                        if mt == 0: d = ar((tl*8 + (j ^ 2*wv))*8 + o, 2)
                        elif mt == 1: d = ar(128 + (tl*8 + (j ^ 2*wv))*8 + o, 2)
                        elif mt == 2: d = vr(WO + ((j >> 1)*4 + ((2*(j & 1) + tl) ^ wv))*8 + o, 2)
                        else: d = vr(ST + 8*tl + o, 2)
                        a(f"ds_read_b64_tr_b16 {d}, v{R0+2+tl} offset:{u*8192 + x*512}")
        if mt == 3: reads(0)
        else:
            for wv in range(4):
                if wv < 3: a(f"s_cmp_lg_u32 s{w}, {wv}\ns_cbranch_scc1 L_wr_{q}_{wv+1}")
                reads(wv)
                if wv < 3: a(f"s_branch L_wr_{q}_e\nL_wr_{q}_{wv+1}:")
            a(f"L_wr_{q}_e:")
        a("s_waitcnt lgkmcnt(0)")
        if mt == 3:
            a(f"s_barrier\nv_add_u32 v{R0+2}, {j*16384}, v{WVB}")
            for tl in range(2):
                for u in range(2):
                    a(f"ds_write_b128 v{R0+2}, {vr(ST + 8*tl + 4*u, 4)} offset:{tl*2048 + u*1024}")
            a("s_waitcnt lgkmcnt(0)")
    a(f"s_lshl_b32 s{sT0}, s{w}, 15\nv_add_u32 v{WVB}, s{sT0}, v{WVB}")
    stamp(a, 1)
    set_srd(a, S_SRD1, S_MEM0, 8192)
    a(f"""
    v_bfe_u32 v{T+2}, v0, 1, 3
    v_lshlrev_b32 v{T+3}, 10, v{T+2}
    v_lshrrev_b32 v{T+2}, 5, v0
    v_lshl_add_u32 v{T+3}, v{T+2}, 6, v{T+3}
    v_bfe_u32 v{T+2}, v0, 4, 1
    v_lshl_add_u32 v{T+3}, v{T+2}, 4, v{T+3}
    v_and_b32 v{T+2}, 1, v0
    v_lshl_add_u32 v{T+3}, v{T+2}, 3, v{T+3}
    s_lshl_b32 s{sT0}, s{w}, 8
    buffer_load_dwordx2 {vr(KW,2)}, v{T+3}, s[48:51], s{sT0} offen
    buffer_load_dwordx2 {vr(KW+2,2)}, v{T+3}, s[48:51], s{sT0} offen offset:32
    buffer_load_dwordx2 {vr(KW+4,2)}, v{T+3}, s[48:51], s{sT0} offen offset:128
    buffer_load_dwordx2 {vr(KW+6,2)}, v{T+3}, s[48:51], s{sT0} offen offset:160
    v_lshlrev_b32 v{A16}, 4, v0
    v_add_u32 v{A16}, {LB + L_X}, v{A16}
    s_mov_b32 s{sT0}, 0x05040100
    s_mov_b32 s{sT1}, 0x07060302
    s_waitcnt vmcnt(0)
    """)
    for jj in range(2):
        x, y, d = KW + 4*jj, KW + 4*jj + 2, M + 4*jj
        a(f"""
        v_perm_b32 v{d}, v{y}, v{x}, s{sT0}
        v_perm_b32 v{d+1}, v{y}, v{x}, s{sT1}
        v_perm_b32 v{d+2}, v{y+1}, v{x+1}, s{sT0}
        v_perm_b32 v{d+3}, v{y+1}, v{x+1}, s{sT1}
        v_min_u32 v{d}, -2, v{d}
        v_min_u32 v{d+1}, -2, v{d+1}
        v_min_u32 v{d+2}, -2, v{d+2}
        v_min_u32 v{d+3}, -2, v{d+3}
        """)
    a(f"""
    L_team_init:
    buffer_load_dword v{AQ}, v{ZERO}, s[52:55], 0 offen sc1
    """)
    spin_check(a)
    a(f"""
    s_waitcnt vmcnt(0)
    v_cmp_ne_u32 vcc, 32, v{AQ}
    s_cbranch_vccnz L_team_init
    buffer_load_dword v{AQ}, v{ZERO}, s[52:55], 0 offen offset:128 sc1
    s_mov_b32 s{sFLG}, s{sFL0}
    """)
    flag_spin(a, "_pre", sFLG)
    a(f"""
    v_readfirstlane_b32 s{sT1}, v{AQ}
    s_mov_b32 m0, s{sMK}
    s_mov_b32 s{sKX}, s{sKB0}
    buffer_load_dwordx4 v{W16}, {WSR}, s{sKX} offen sc1 lds
    buffer_load_dwordx4 v{W16}, {WSR}, s{sKX} offen offset:1024 sc1 lds
    s_mov_b32 s{sS}, -1
    s_mov_b32 s{sTAG}, 0
    s_lshl_b32 s{sKVM}, s{h}, 12
    s_lshl_b32 s{sT0}, s{w}, 10
    s_sub_u32 s{sKVM}, s{sKVM}, s{sT0}
    s_add_u32 s{sKVM}, s{sKVM}, {hex(WS_KVM - 2*0x20000 - LB)}
    """)
    advance(a)
    a.emit(wv_prefetch())
    for i in range(12): a(f"v_mov_b64 {vr(AQ+2*i,2)}, 0")
    a("s_waitcnt vmcnt(0) lgkmcnt(0)")
    stamp(a, 2)
    if OPTS.get("tprof"):
        for k in range(10): a(f"s_mov_b32 s{28+k}, 0")
        a("s_memtime s[26:27]\ns_waitcnt lgkmcnt(0)")
    a.emit(ms_addrs())
    a(f"""
    s_bcnt1_i32_b32 s{sT1}, s{sT1}
    s_cmp_eq_u32 s{sT1}, {2 if OPTS.get('forceslow') else 1}
    s_cbranch_scc0 L_entry_x
    s_branch L_entry_f
    """)
    step_loop(a, "_f", "")
    step_loop(a, "_x", "sc1")
    a(f"""
    L_team_last:
    s_waitcnt vmcnt(0)
    s_add_u32 s{sKVM}, s{sKVM}, 0x20000
    v_mov_b32 v{DUM}, 64
    buffer_store_dwordx4 {vr(KV,4)}, v{W16}, {WSR}, s{sKVM} offen sc1
    s_waitcnt vmcnt(0)
    s_barrier
    buffer_store_dword v{DUM}, v{ZERO}, {WSR}, s{sTF} offen sc1
    """)
    stamp(a, 3)
    if OPTS.get("tprof"):
        a(f"s_lshl_b32 s4, s{h}, 2\ns_add_u32 s4, s4, s{w}\ns_lshl_b32 s4, s4, 6\ns_add_u32 s4, s4, {hex(WS_STAMP + 0x10000)}")
        for k in range(9): a(f"v_mov_b32 v20, s{28+k}\nbuffer_store_dword v20, v{ZERO}, {WSR}, s4 offen offset:{4*k}")
        a(f"v_mov_b32 v20, s{sSPIN}\nbuffer_store_dword v20, v{ZERO}, {WSR}, s4 offen offset:36")
        a(f"v_mov_b32 v20, s37\nbuffer_store_dword v20, v{ZERO}, {WSR}, s4 offen offset:40")
    a("s_waitcnt vmcnt(0)\ns_endpgm")
```

```python
import sys
from common import *
import pgemm, team, att, outx, lint

def p_schedule():
    xs = [(m, cb) for m in (4, 5) for cb in range(64)]
    xs = sorted(xs, key=lambda t: (t[1] >> 1, t[0], t[1]))
    xs += [(0, cb) for cb in range(64)] + [(3, cb) for cb in range(64)]
    cs = sorted([(m, cb) for m in (1, 2) for cb in range(64)], key=lambda t: (t[1] >> 1, t[0], t[1]))
    NX = 19
    slots = []
    for i in range(NX): slots.append((0, 1 if i == NX - 1 else 0, xs[i::NX]))
    for i in range(28 - NX): slots.append((1, 0, cs[i::28 - NX]))
    return slots

def post_tasks(sl):
    cl, st = sl % 7, sl // 7
    ATT = lambda qb: 1 | (st << 2) | (qb << 4)
    OUTX = lambda g, o: 2 | (o << 2) | (g << 4)
    t = [ATT(7 - cl)] + ([ATT(0)] if cl == 6 else [])
    t += {5: [OUTX(4 + st, 1), OUTX(28 + st, 0)], 4: [OUTX(8 + st, 1)], 6: [OUTX(st, 1)], 3: [OUTX(12 + st, 1)],
          2: [OUTX(16 + st, 0)], 1: [OUTX(20 + st, 0)], 0: [OUTX(24 + st, 0)]}[cl]
    return t

def build(opts):
    a = Asm()
    OPTS.clear(); OPTS.update(opts)
    kernel_head(a)
    prologue(a)
    stamp(a, 0)
    a(f"""
    s_cmp_eq_u32 s{S_GRP}, 0
    s_cbranch_scc1 L_team
    """)
    if opts.get("teamonly"): a("s_branch L_exit")
    if opts.get("attonly") or opts.get("outonly"):
        a(f"s_branch L_att_test")
    a(f"""
    s_sub_u32 s3, s{S_GRP}, 1
    s_lshl_b32 s3, s3, 2
    s_lshr_b32 s4, s{S_RANK}, 3
    s_add_u32 s3, s3, s4
    s_and_b32 s{pgemm.S_TB}, s{S_RANK}, 7
    s_getpc_b64 s[4:5]
    L_pc0:
    s_add_u32 s4, s4, L_ptab-L_pc0
    s_addc_u32 s5, s5, 0
    s_lshl_b32 s3, s3, 8
    v_lshl_add_u32 v2, v0, 2, s3
    global_load_dword v{pgemm.V_TAB}, v2, s[4:5]
    s_waitcnt vmcnt(0)
    v_readlane_b32 s6, v{pgemm.V_TAB}, 63
    s_nop 3
    s_and_b32 s7, s6, 2
    s_and_b32 s6, s6, 1
    """)
    pgemm.gen_pphase(a, "L_p_end", 6, 7)
    a("L_p_end:")
    stamp(a, 3)
    full = not (opts.get("attonly") or opts.get("outonly") or opts.get("ponly"))
    if full:
        a(f"""
        s_mov_b32 s95, 32
        L_next:
        v_readlane_b32 s3, v{pgemm.V_TAB}, s95
        s_add_u32 s95, s95, 1
        s_and_b32 s5, s{S_RANK}, 7
        s_and_b32 s4, s3, 3
        s_cmp_eq_u32 s4, 0
        s_cbranch_scc1 L_after_p
        s_cmp_eq_u32 s4, 2
        s_cbranch_scc1 L_go_outx
        s_bfe_u32 s4, s3, 0x20002
        s_lshl3_add_u32 s{att.sH}, s4, s5
        s_bfe_u32 s{att.sQB}, s3, 0x30004
        """)
        att.gen_att(a, "L_att_end")
        a("L_att_end:")
        stamp(a, 11)
        a(f"""
        s_branch L_next
        L_go_outx:
        s_bfe_u32 s{outx.sORD}, s3, 0x20002
        s_bfe_u32 s{outx.sG}, s3, 0x50004
        s_mov_b32 s{outx.sCB}, s5
        """)
        outx.gen_outx(a, "L_next")
    a("L_after_p:")
    stamp(a, 2)
    a("s_waitcnt vmcnt(0)\ns_endpgm")
    if opts.get("attonly"):
        a(f"""
        L_team:
        L_att_test:
        s_lshl_b32 s{att.sH}, s{S_GRP}, 2
        s_lshr_b32 s3, s{S_RANK}, 3
        s_add_u32 s{att.sH}, s{att.sH}, s3
        s_and_b32 s{att.sQB}, s{S_RANK}, 7
        """)
        att.gen_att(a, "L_after_p")
    elif opts.get("outonly"):
        a(f"""
        L_team:
        L_att_test:
        s_lshl_b32 s{outx.sG}, s{S_GRP}, 2
        s_lshr_b32 s3, s{S_RANK}, 3
        s_add_u32 s{outx.sG}, s{outx.sG}, s3
        s_and_b32 s{outx.sCB}, s{S_RANK}, 7
        s_mov_b32 s{outx.sORD}, {opts.get('ord', 0)}
        """)
        outx.gen_outx(a, "L_after_p")
    else:
        team.gen_team(a)
    a("L_exit:\ns_endpgm")
    a.lines.append(".p2align 8\n.type L_ptab,@object\nL_ptab:")
    for sl, (src, gate, units) in enumerate(p_schedule()):
        row = [pgemm.unit_desc(m, cb) for m, cb in units]
        row += [pgemm.INVALID] * (32 - len(row))
        row += post_tasks(sl)
        row += [0] * (63 - len(row)) + [src | (gate << 1)]
        a.lines.append(".long " + ",".join(hex(x) for x in row))
    kernel_tail(a)
    return a.text()

if __name__ == "__main__":
    out = sys.argv[1]
    opts = dict(kv.split("=") for kv in sys.argv[2:])
    opts = {k: (int(v) if v.lstrip('-').isdigit() else v) for k, v in opts.items()}
    opts.setdefault('m16', 1)
    t = build(opts)
    open(out, "w").write(t)
    lint.lint(t)
```

```python
from common import *

A16, W16, RA, ORA, T0, T1, EX, ONES, GT, T2, XM, WD = 2, 3, 4, 5, 6, 7, 8, 16, 20, 24, 25, 26
S, P, C, O = 32, (64, 80), 96, 128
AQ, AK, AV, AL = 0, 64, 96, 128
L_K01 = 131072
sH, sQB, sB, sNA, sKO, sVO, sKB, sKMAX, sSLOT, sM0, sT0, sT1, sQO, sPO, sBIT, sRET, sWO, sM1, sSPIN = range(56, 75)
sPQ = 76
TOFF_DEFAULT = 16.0
NINF = "0xff800000"

def mf(D, A, B, Cc): return f"v_mfma_f32_16x16x32_bf16 {D}, {A}, {B}, {Cc}"
def qk_list(q0):
    l = []
    for qt in range(q0, 4):
        for kt in range(2):
            d = vr(S + 8*qt + 4*kt, 4)
            for t in range(4):
                l.append(mf(d, ar(AK + 4*(2*t+kt), 4), ar(AQ + 16*qt + 4*t, 4), vr(C + 8*qt + 4*kt, 4) if t == 0 else d))
    return l
def pv_list(par, q0):
    l = [mf(ar(AL + 4*qt, 4), vr(ONES, 4), vr(P[par] + 4*qt, 4), ar(AL + 4*qt, 4)) for qt in range(q0, 4)]
    for f in range(8):
        for qt in range(q0, 4):
            d = vr(O + 32*qt + 4*f, 4)
            l.append(mf(d, ar(AV + 4*f, 4), vr(P[par] + 4*qt, 4), d))
    return l
vrd = lambda f: f"ds_read_b128 {ar(AV + 4*f, 4)}, v{RA} offset:{f*1024}"
krd = lambda f: f"ds_read_b128 {ar(AK + 4*f, 4)}, v{RA} offset:{8192 + f*1024}"

def dma_kv():
    return [([f"s_add_u32 m0, s{sSLOT}, s{sM0}"], f"buffer_load_dwordx4 v{W16}, {WSR}, s{sVO} offen sc1 lds"),
            ([f"s_min_u32 s{sT0}, s{sKB}, s{sKMAX}"], f"buffer_load_dwordx4 v{W16}, {WSR}, s{sVO} offen offset:1024 sc1 lds"),
            ([f"s_add_u32 m0, m0, 0x2000"], f"buffer_load_dwordx4 v{W16}, {WSR}, s{sT0} offen sc1 lds"),
            ([f"s_add_u32 s{sVO}, s{sVO}, 0x2000"], f"buffer_load_dwordx4 v{W16}, {WSR}, s{sT0} offen offset:1024 sc1 lds"),
            ([f"s_add_u32 s{sKB}, s{sKB}, 0x2000", f"s_add_u32 s{sSLOT}, s{sSLOT}, 0x4000", f"s_and_b32 s{sSLOT}, s{sSLOT}, 0x1ffff"], None)]
def dma_w(k):
    return [([f"s_add_u32 m0, s{sM1}, {k*16384 + i*1024}", f"s_add_u32 s{sT0}, s{sWO}, {i*8192 + k*128}"],
             f"buffer_load_dwordx4 v{WD}, s[48:51], s{sT0} offen lds") for i in range(4)] + [([], None)]
def emit_dma(a, d):
    for sc_, ld in d:
        a.emit(sc_)
        if ld: a(("s_nop 0\n" if len(sc_) < 2 else "") + ld)

def mask_ops(j):
    q0 = j >> 1; l = []
    for kt in range(2):
        for i in range(4):
            r = C + 8*q0 + 4*kt + i; m = 80 + 2*((4*kt + i) & 3)
            l.append((f"v_cmp_gt_i32 s[{m}:{m+1}], {16*(2*(j&1)+kt) + i}, v{XM}", f"v_cndmask_b32 v{r}, v{r}, v{T2}, s[{m}:{m+1}]"))
    out = []
    for h in range(2): out += [x[0] for x in l[4*h:4*h+4]] + [x[1] for x in l[4*h:4*h+4]]
    return out

SITES = []
def body(a, name, par, qa, qb_, dma, nextmask=None, kreads=True):
    a(name + ":")
    qk = qk_list(qa); pv = pv_list(par, qb_)
    nq, n = len(qk), len(qk) + len(pv)
    G = Gaps(qk + pv)
    a("s_waitcnt vmcnt(24) lgkmcnt(0)")
    mem = [(f, [], vrd(f)) for f in range(8)]
    gap = 3 if qa == 0 else 1
    mem += [(8 + (11 if qa == 0 else 0) + gap*k, dma[k][0], dma[k][1]) for k in range(4)]
    if kreads: mem += [(nq + (1 + 3*f if qb_ == 0 else f), [], krd(f)) for f in range(8)]
    items = []
    for qt in range(qa, 4):
        for kt in range(2):
            tl = 2*qt + kt; s = S + 4*tl; e = EX + 4*kt; p = P[1-par] + 2*tl; rdy = 4*(tl - 2*qa) + 3 + 3
            items += [("e", rdy, f"v_exp_f32 v{e+i}, v{s+i}") for i in range(4)]
            items += [("c", 0, f"v_cvt_pk_bf16_f32 v{p}, v{e}, v{e+1}"), ("c", 0, f"v_cvt_pk_bf16_f32 v{p+1}, v{e+2}, v{e+3}"),
                      ("c", 0, f"v_or_b32 v{ORA}, v{p}, v{p+1}" if tl == 2*qa else f"v_or3_b32 v{ORA}, v{ORA}, v{p}, v{p+1}")]
    items += [("c", 0, f"v_and_b32 v{ORA}, s{sBIT}, v{ORA}"), ("c", 0, f"v_cmp_ne_u32 vcc, 0, v{ORA}")]
    if nextmask is not None: items += [("c", nq, x) for x in mask_ops(nextmask)]
    items += [("r", 0, f"v_add_u32 v{RA}, 0x4000, v{RA}"), ("r", 0, f"v_and_b32 v{RA}, 0x1ffff, v{RA}")]
    late = list(dma[4][0]) + [f"s_add_u32 s{sB}, s{sB}, 1"]
    vwait = nq + (4 - qb_) - 1
    k = mi = 0; nds_after_v = 0
    for g in range(n):
        last = g == n - 1
        sc, me, va = [], [], []
        if g == 0: sc.append("s_barrier")
        cap = 2
        while mi < len(mem) and (last or (mem[mi][0] <= g and len(me) == 0)):
            pre = mem[mi][1]
            if pre: me += pre + (["s_nop 0"] if len(pre) < 2 and "m0" in pre[0] else [])
            me.append(mem[mi][2])
            if mi >= 8 and mem[mi][2].startswith("ds_") and g <= vwait: nds_after_v += 1
            mi += 1; cap -= 1
        while k < len(items):
            ty, rdy, ins = items[k]
            cost = 2 if ty == "e" else 1
            if not last:
                if g < rdy or cost > cap: break
                if ty == "r" and mi < len(mem): break
                if ty != "e" and va and va[-1].startswith("v_exp"): break
            elif ty != "e" and va and va[-1].startswith("v_exp"): va.append("s_nop 0")
            va.append(ins); cap -= cost; k += 1
        if not sc and not (me and me[0].startswith("s_")):
            if late and mi >= 12: sc.append(late.pop(0))
            elif g < nq + 4: sc.append("s_nop 0")
        if last: va += late
        if g == vwait:
            assert mi >= 8
            va.append(f"s_waitcnt lgkmcnt({nds_after_v})")
        G.add(g, *(sc + me + va))
    G.emit(a)
    SITES.append((name, 1 - par, qa))
    a(f"s_cbranch_vccnz {name}_t\n{name}_r:")

def rescale(a, par, init):
    for qt in range(4):
        s = S + 8*qt
        if not init: a(f"L_a_slow{par}_{qt}:")
        a(f"""
        v_max3_f32 v{T0}, v{s}, v{s+1}, v{s+2}
        v_max3_f32 v{T1}, v{s+3}, v{s+4}, v{s+5}
        v_max3_f32 v{T0}, v{T0}, v{s+6}, v{s+7}
        v_max_f32 v{T0}, v{T0}, v{T1}
        """)
        for sw in ("v_permlane32_swap_b32", "v_permlane16_swap_b32"):
            a(f"v_mov_b32 v{T1}, v{T0}\ns_nop 1\n{sw} v{T1}, v{T0}\nv_max_f32 v{T0}, v{T0}, v{T1}")
        a(f"v_add_f32 v{T0}, {fbits(float(OPTS.get('toff', TOFF_DEFAULT)))}, v{T0}")
        if not init:
            a(f"v_max_f32 v{T0}, 0, v{T0}\nv_exp_f32 v{T1}, -v{T0}")
        for i in range(8): a(f"v_sub_f32 v{C+8*qt+i}, v{C+8*qt+i}, v{T0}")
        if not init:
            for i in range(32): a(f"v_mul_f32 v{O+32*qt+i}, v{O+32*qt+i}, v{T1}")
            for i in range(4):
                a(f"v_accvgpr_read_b32 v{EX}, a{AL+4*qt+i}\nv_mul_f32 v{EX}, v{EX}, v{T1}\nv_accvgpr_write_b32 a{AL+4*qt+i}, v{EX}")
        for i in range(8): a(f"v_sub_f32 v{EX+i}, v{s+i}, v{T0}")
        for i in range(8): a(f"v_exp_f32 v{EX+i}, v{EX+i}")
        for i in range(4): a(f"v_cvt_pk_bf16_f32 v{P[par]+4*qt+i}, v{EX+2*i}, v{EX+2*i+1}")
        if init: emit_dma(a, dma_kv())

def out_proj(a):
    CF, RB, SQ = S, EX, C
    wf = lambda ct, t: AK + 16*ct + 4*t
    def rd(u, j):
        t, x = j >> 1, j & 1
        return f"ds_read_b64_tr_b16 {ar(wf(u & 3, t) + 2*x, 2)}, v{RB + 4*(u >> 4) + (u & 3)} offset:{((u >> 2) & 3)*16384 + t*4096 + x*2048}"
    acc = lambda u, qt: O + 32*((u >> 1) & 1) + 8*qt + 4*(u & 1)
    def epi(c):
        l = []
        for qt in range(4):
            b = acc(2*c, qt); q = SQ + 4*qt + 16*(c & 1)
            l += [f"v_cvt_pk_bf16_f32 v{q+i}, v{b+2*i}, v{b+2*i+1}" for i in range(4)]
            l.append(f"buffer_store_dwordx4 {vr(q,4)}, v{A16}, {WSR}, s{sPQ+qt} offen offset:{(c & 3)*1024} sc1")
        return l
    for u in range(2):
        for j in range(8): a(rd(u, j))
    a("s_waitcnt lgkmcnt(8)")
    ms = []
    for u in range(32):
        for qt in range(4):
            d = vr(acc(u, qt), 4)
            for t in range(4): ms.append(mf(d, ar(wf(u & 3, t), 4), vr(CF + 16*qt + 4*t, 4), "0" if t == 0 else d))
    G = Gaps(ms)
    for u in range(32):
        g0 = 16*u
        if u == 25: G.add(g0 + 14, "s_waitcnt vmcnt(32)", "s_barrier")
        if u + 2 < 32:
            for j in range(8): G.add(g0 + 2*j, rd(u + 2, j))
        if u < 31: G.add(g0 + 15, f"s_waitcnt lgkmcnt({8 if u + 2 < 32 else 0})")
        if u >= 2 and not u & 1:
            c = u//2 - 1; g = g0 + 3
            if c and not c & 3:
                for qt in range(4): G.add(g0 + 1, f"s_add_u32 s{sPQ+qt}, s{sPQ+qt}, 0x1000")
            else: G.add(g0 + 1, "s_nop 1")
            e = epi(c)
            for qt in range(4):
                G.add(g, *e[5*qt:5*qt+2]); G.add(g + 2, *e[5*qt+2:5*qt+4]); G.add(g + 4, e[5*qt+4]); g += 6
    G.emit(a)
    a("s_nop 7"); a.emit(epi(15))

def gen_att(a, next_label):
    w = S_WAVE
    SITES.clear()
    a("L_att:")
    a(f"""
    v_lshlrev_b32 v{A16}, 4, v0
    s_lshl_b32 s{sM0}, s{w}, 11
    v_add_u32 v{W16}, s{sM0}, v{A16}
    s_mov_b32 s{sSPIN}, 0
    v_and_b32 v{T0}, 7, v0
    v_min_u32 v{T0}, s{sQB}, v{T0}
    v_mov_b32 v{T1}, s{sQB}
    v_add_u32 v{T1}, 8, v{T1}
    v_cmp_gt_u32 vcc, 8, v0
    s_lshl_b32 s{sT0}, s{sH}, 7
    s_add_u32 s{sT0}, s{sT0}, {hex(WS_FLAG)}
    v_cndmask_b32 v{T0}, v{T1}, v{T0}, vcc
    v_cndmask_b32 v{T1}, 2, 4, vcc
    v_lshl_add_u32 v{T0}, v{T0}, 2, s{sT0}
    s_lshl_b32 s{sT0}, s{sQB}, 7
    s_add_u32 s{sT0}, s{sT0}, {hex(CNT_GATE)}
    v_writelane_b32 v{T0}, s{sT0}, 63
    v_writelane_b32 v{T1}, 1, 63
    buffer_load_dword v{T2}, v{T0}, {WSR}, 0 offen sc1
    """)
    for i in range(64): a(f"v_mov_b64 {vr(O+2*i,2)}, 0")
    for i in range(16): a(f"v_mov_b64 {vr(C+2*i,2)}, 0\nv_accvgpr_write_b32 a{AL+i}, 0")
    for i in range(4): a(f"v_mov_b32 v{ONES+i}, 0x3f803f80")
    set_srd(a, S_SRD1, S_WOA, 0x400000)
    a(f"""
    s_lshl_b32 s{sT0}, s{sH}, 19
    s_add_u32 s{sKO}, s{sT0}, {hex(WS_PROJ + (1 << 24))}
    s_add_u32 s{sVO}, s{sT0}, {hex(WS_PROJ + (2 << 24))}
    s_lshl_b32 s{sNA}, s{sQB}, 3
    s_lshr_b32 s{sT1}, s{w}, 1
    s_add_u32 s{sT1}, s{sT1}, s{sNA}
    s_lshl_b32 s{sQO}, s{sT1}, 13
    s_add_u32 s{sQO}, s{sQO}, s{sT0}
    s_and_b32 s{sT1}, s{w}, 1
    s_lshl_b32 s{sT1}, s{sT1}, 10
    s_add_u32 s{sQO}, s{sQO}, s{sT1}
    s_lshl4_add_u32 s{sPO}, s{sQB}, s{w}
    s_add_u32 s{sKMAX}, s{sNA}, 7
    s_lshl_b32 s{sKMAX}, s{sKMAX}, 13
    s_add_u32 s{sKMAX}, s{sKMAX}, s{sKO}
    s_sub_u32 s{sNA}, s{sNA}, 1
    s_add_u32 s{sKB}, s{sKO}, 0x4000
    s_mov_b32 s{sSLOT}, 0
    s_mov_b32 s{sBIT}, 0x40004000
    s_lshl_b32 s{sM1}, s{w}, 12
    s_lshl_b32 s{sWO}, s{sH}, 17
    s_lshl_b32 s{sT1}, s{w}, 15
    s_add_u32 s{sWO}, s{sWO}, s{sT1}
    v_lshrrev_b32 v{EX}, 4, v0
    v_and_b32 v{EX+1}, 15, v0
    s_lshl_b32 s{sT1}, s{w}, 4
    v_add_u32 v{XM}, s{sT1}, v{EX+1}
    v_lshlrev_b32 v{EX+2}, 2, v{EX}
    v_sub_u32 v{XM}, v{XM}, v{EX+2}
    v_lshlrev_b32 v{EX}, 1, v{EX}
    v_and_b32 v{EX+2}, 7, v0
    v_xor_b32 v{EX}, v{EX}, v{EX+2}
    v_lshlrev_b32 v{EX}, 4, v{EX}
    v_lshrrev_b32 v{EX+2}, 3, v0
    v_lshl_add_u32 v{WD}, v{EX+2}, 10, v{EX}
    v_lshlrev_b32 v{EX+1}, 2, v{EX+1}
    v_add_u32 v{RA}, {L_K01 - 8192}, v{A16}
    L_a_wait:
    s_waitcnt vmcnt(0)
    v_cmp_ne_u32 vcc, v{T1}, v{T2}
    s_cbranch_vccz L_a_go
    buffer_load_dword v{T2}, v{T0}, {WSR}, 0 offen sc1
    s_add_u32 s{sSPIN}, s{sSPIN}, 1
    s_cmp_gt_u32 s{sSPIN}, {SPIN_MAX}
    s_cbranch_scc1 L_exit
    s_branch L_a_wait
    L_a_go:
    """)
    stamp(a, 8)
    a(f"""
    s_add_u32 m0, s{sM0}, {L_K01}
    s_add_u32 s{sT0}, s{sKO}, 0x2000
    buffer_load_dwordx4 v{W16}, {WSR}, s{sKO} offen sc1 lds
    buffer_load_dwordx4 v{W16}, {WSR}, s{sKO} offen offset:1024 sc1 lds
    s_add_u32 m0, s{sM0}, {L_K01 + 8192}
    s_lshl_b32 s{sT1}, s{sPO}, 6
    buffer_load_dwordx4 v{W16}, {WSR}, s{sT0} offen sc1 lds
    buffer_load_dwordx4 v{W16}, {WSR}, s{sT0} offen offset:1024 sc1 lds
    s_add_u32 s{sT1}, s{sT1}, {hex(WS_GATE)}
    """)
    for qt in range(4):
        a(f"s_add_u32 s{sB}, s{sQO}, 0x1000")
        for t in range(4):
            a(f"buffer_load_dwordx4 {ar(AQ+16*qt+4*t,4)}, v{A16}, {WSR}, s{sQO if t < 2 else sB} offen offset:{(t&1)*2048} sc1")
        a(f"s_add_u32 s{sQO}, s{sQO}, 0x4000")
    for qt in range(4): a(f"buffer_load_dword v{GT+qt}, v{EX+1}, {WSR}, s{sT1} offen offset:{256*qt} sc1")
    for st in range(2): emit_dma(a, dma_kv())
    a(f"""
    s_mul_i32 s{sPO}, s{sPO}, {PART_T}
    s_lshl_b32 s{sT1}, s{sH}, 14
    s_add_u32 s{sPO}, s{sPO}, s{sT1}
    """)
    for qt in range(4): a(f"s_add_u32 s{sPQ+qt}, s{sPO}, {hex(WS_PART + 4*qt*PART_T)}")
    a(f"v_mov_b32 v{T2}, {NINF}\ns_cmp_lg_u32 s{sQB}, 0\ns_cbranch_scc1 L_a_nomask0")
    a.emit(mask_ops(0))
    a("L_a_nomask0:\ns_waitcnt vmcnt(28)\ns_barrier")
    for f in range(8): a(krd(f))
    a(f"v_add_u32 v{RA}, 0x2000, v{RA}")
    qk = qk_list(0)
    for qt in range(4):
        a(f"s_waitcnt vmcnt({24 - 4*qt}) lgkmcnt(0)")
        for m in qk[8*qt:8*qt+8]: a(m)
    for f in range(8): a(krd(f))
    a(f"v_mov_b32 v{RA}, v{A16}")
    emit_dma(a, dma_kv())
    rescale(a, 0, True)
    stamp(a, 9)
    a(f"s_mov_b32 s{sB}, 0\ns_cmp_lg_u32 s{sQB}, 0\ns_cbranch_scc1 L_a_s0")
    a.emit(mask_ops(1))
    a("s_branch L_a_d1")
    body(a, "L_a_s1", 1, 0, 0, dma_kv())
    body(a, "L_a_s0", 0, 0, 0, dma_kv())
    a(f"s_cmp_eq_u32 s{sB}, s{sNA}\ns_cbranch_scc0 L_a_s1")
    a.emit(mask_ops(0))
    a("s_nop 0")
    for j in range(8):
        body(a, f"L_a_d{j}", (j - 1) & 1, j >> 1, max(j - 1, 0) >> 1, dma_kv() if j < 2 else dma_w(j - 2),
             nextmask=j + 1 if j < 7 else None, kreads=j < 7)
    stamp(a, 10)
    a("s_waitcnt vmcnt(24)\ns_barrier")
    for f in range(8): a(vrd(f))
    emit_dma(a, dma_w(6))
    pv = pv_list(1, 3)
    a(pv[0])
    for f in range(8): a(f"s_waitcnt lgkmcnt({7-f})\n" + pv[1+f])
    a("s_barrier")
    emit_dma(a, dma_w(7))
    for qt in range(4):
        a(f"v_accvgpr_read_b32 v{T0}, a{AL+4*qt}\nv_rcp_f32 v{T0}, v{T0}\ns_nop 0\nv_mul_f32 v{GT+qt}, v{GT+qt}, v{T0}")
    for qt in range(4):
        for t in range(4):
            b = O + 32*qt + 8*t; q = S + 16*qt + 4*t
            for i in range(8): a(f"v_mul_f32 v{b+i}, v{b+i}, v{GT+qt}")
            for i in range(4): a(f"v_cvt_pk_bf16_f32 v{q+i}, v{b+2*i}, v{b+2*i+1}")
    RB = EX
    a(f"""
    v_lshrrev_b32 v{T0}, 2, v0
    v_lshlrev_b32 v{RB}, 7, v{T0}
    v_bfe_u32 v{T0}, v0, 3, 2
    v_lshl_add_u32 v{RB}, v{T0}, 5, v{RB}
    v_and_b32 v{T0}, 3, v0
    v_lshl_add_u32 v{RB}, v{T0}, 3, v{RB}
    """)
    for c in range(1, 4): a(f"v_xor_b32 v{RB+c}, {32*c}, v{RB}")
    for c in range(4): a(f"v_add_u32 v{RB+4+c}, 0x10000, v{RB+c}")
    a("s_waitcnt vmcnt(4)\ns_barrier")
    stamp(a, 12)
    out_proj(a)
    a(f"""
    s_lshl_b32 s{sT0}, s{sQB}, 7
    s_add_u32 s{sT0}, s{sT0}, {hex(CNT_CTX)}
    s_cmp_eq_u32 s{w}, 0
    s_cselect_b32 s{sT0}, s{sT0}, {hex(OOB)}
    v_mov_b32 v{T0}, 1
    s_waitcnt vmcnt(0)
    s_barrier
    s_mov_b64 exec, 1
    buffer_atomic_add v{T0}, v{A16}, {WSR}, s{sT0} offen
    s_mov_b64 exec, -1
    s_branch {next_label}
    """)
    for k, (name, par, q0) in enumerate(SITES):
        a(f"{name}_t:\ns_mov_b32 s{sRET}, {k}\ns_nop 6\ns_branch L_a_slow{par}_{q0}")
    for par in range(2):
        rescale(a, par, False)
        mine = [(k, n) for k, (n, p, _) in enumerate(SITES) if p == par]
        for k, n in mine[:-1]: a(f"s_cmp_eq_u32 s{sRET}, {k}\ns_cbranch_scc1 {n}_r")
        a(f"s_branch {mine[-1][1]}_r")
```

```python
from common import *
from pgemm import V_TAB

NINF = "0xff800000"
def mf(D, A, B, Cc): return f"v_mfma_f32_16x16x32_bf16 {D}, {A}, {B}, {Cc}"
def mf16(D, A, B): return f"v_mfma_f32_16x16x16_bf16 {D}, {A}, {B}, {D}"

A16, T0, T1, T2, T3, ZERO, XTW, XTR, GT, GTN, QA, CW, CR, FL = 2, 3, 4, 5, 6, 7, 8, 9, 10, 11, 12, 13, 14, 15
ONES, CM, GA, PMZ, PX, S, LL, KVM, KM, Q, K, V, OA, ACC, SQ = 16, 20, 31, 32, 36, 40, 52, 56, 72, 88, 104, 136, 168, 200, 232
sHP, sSPIN, sT0, sT1, sT2, sHD, sSEG, sNXT, sPRV, sRDY, sM0, sSRC, sTF, sKV0, sPB, sP0, sCB = range(56, 73)
L_CTX, L_XT = 98304, 131072

def spin(a): a(f"s_add_u32 s{sSPIN}, s{sSPIN}, 1\ns_cmp_gt_u32 s{sSPIN}, {SPIN_MAX}\ns_cbranch_scc1 L_exit")

def qkv_dma(a, seg):
    l = a.newlabel("b_nodma")
    a(f"s_bitcmp1_b32 s{seg}, 2\ns_cbranch_scc1 {l}\ns_lshl_b32 s{sT0}, s{seg}, 9\ns_add_u32 s{sT0}, s{sT0}, s{sSRC}")
    for m in range(3):
        a(f"s_add_u32 m0, s{sM0}, {m*8192}\ns_add_u32 s{sT1}, s{sT0}, {hex(m << 24)}")
        for i in range(4): a(f"buffer_load_dwordx4 v{A16}, {WSR}, s{sT1} offen offset:{1024*i} sc1 lds")
    a(f"s_lshl_b32 s{sT0}, s{seg}, 3\nbuffer_load_dword v{GTN}, v{GA}, {WSR}, s{sT0} offen sc1\n{l}:")

def kvm_loads(seg):
    return [f"s_lshl_b32 s{sT0}, s{seg}, 13", f"s_add_u32 s{sT0}, s{sT0}, s{sKV0}"] + \
           [f"buffer_load_dwordx4 {vr(KVM+4*t,4)}, v{A16}, {WSR}, s{sT0} offen offset:{1024*t} sc1" for t in range(4)]

def signal(a):
    a(f"""
    s_lshl_b32 s{sT0}, s{sPRV}, 2
    s_add_u32 s{sT0}, s{sT0}, s{sCB}
    s_bitcmp1_b32 s{sPRV}, 2
    s_cselect_b32 s{sT0}, {hex(OOB)}, s{sT0}
    v_mov_b32 v{T0}, 1
    s_mov_b64 exec, 1
    buffer_atomic_add v{T0}, v{ZERO}, {WSR}, s{sT0} offen
    s_mov_b64 exec, -1
    """)

def gen_barr(a, next_label):
    w = S_WAVE
    a("L_barr:")
    set_srd(a, S_SRD1, S_WOB, 0x400000)
    D0, RB = Q, K
    a(f"""
    v_lshlrev_b32 v{A16}, 4, v0
    v_mov_b32 v{ZERO}, 0
    s_mov_b32 s{sSPIN}, 0
    v_lshrrev_b32 v{T0}, 4, v0
    v_and_b32 v{T1}, 15, v0
    v_lshlrev_b32 v{T2}, 1, v{T0}
    v_xor_b32 v{T2}, v{T2}, v{T1}
    v_lshlrev_b32 v{T2}, 4, v{T2}
    v_lshl_add_u32 v{D0}, v{T0}, 10, v{T2}
    v_xor_b32 v{D0+1}, 128, v{D0}
    s_lshl_b32 s{sM0}, s{w}, 15
    s_lshl_b32 s{sT2}, s{sHP}, 18
    s_lshl_b32 s{sT0}, s{w}, 8
    s_add_u32 s{sT2}, s{sT2}, s{sT0}
    """)
    def wdma(hh):
        for p in range(32):
            a(f"s_add_u32 m0, s{sM0}, {p*1024}\ns_add_u32 s{sT0}, s{sT2}, {hh*131072 + p*4096}\nbuffer_load_dwordx4 v{D0+(p&1)}, s[48:51], s{sT0} offen lds")
    def wread(hh):
        for t in range(4):
            a(f"s_waitcnt vmcnt({24 - 8*t})")
            for ct in range(8):
                for x in range(2):
                    a(f"ds_read_b64_tr_b16 {ar((ct*8 + hh*4 + t)*4 + 2*x, 2)}, v{RB+ct} offset:{t*8192 + x*4096}")
        a("s_waitcnt lgkmcnt(0)")
    wdma(0)
    a(f"""
    v_lshrrev_b32 v{T2}, 2, v0
    v_lshl_add_u32 v{RB}, v{T2}, 8, s{sM0}
    v_and_b32 v{T2}, 7, v{T2}
    v_lshl_add_u32 v{RB}, v{T2}, 5, v{RB}
    v_and_b32 v{T2}, 3, v0
    v_lshl_add_u32 v{RB}, v{T2}, 3, v{RB}
    """)
    for ct in range(1, 8): a(f"v_xor_b32 v{RB+ct}, {32*ct}, v{RB}")
    wread(0); wdma(1)
    a(f"""
    s_lshr_b32 s{sT0}, s{w}, 1
    s_lshl1_add_u32 s{sHD}, s{sHP}, s{sT0}         ; head of this wave
    s_and_b32 s{sT1}, s{w}, 1
    ; transpose addresses
    s_lshl_b32 s{sT2}, s{w}, 12
    s_add_u32 s{sT2}, s{sT2}, {L_XT}
    v_bfe_u32 v{T3}, v0, 3, 1
    v_lshl_add_u32 v{XTW}, v{T3}, 8, s{sT2}
    v_lshl_add_u32 v{XTW}, v{T0}, 6, v{XTW}
    v_and_b32 v{T3}, 7, v0
    v_lshl_add_u32 v{XTW}, v{T3}, 3, v{XTW}
    v_lshrrev_b32 v{T3}, 5, v0
    v_lshl_add_u32 v{XTR}, v{T3}, 8, s{sT2}
    v_and_b32 v{T3}, 3, v0
    v_lshl_add_u32 v{XTR}, v{T3}, 6, v{XTR}
    v_bfe_u32 v{T3}, v0, 2, 3
    v_lshl_add_u32 v{XTR}, v{T3}, 3, v{XTR}
    ; q/k/v read base, ctx write / read base, gate address
    s_mul_i32 s{sT2}, s{sT0}, 24576
    v_add_u32 v{QA}, s{sT2}, v{A16}
    s_lshl_b32 s{sM0}, s{sT1}, 12
    s_lshl_b32 s{sSRC}, s{sHD}, 19
    s_add_u32 s{sSRC}, s{sSRC}, s{sM0}
    s_add_u32 s{sSRC}, s{sSRC}, {hex(WS_PROJ + (3 << 24))}
    s_add_u32 s{sM0}, s{sM0}, s{sT2}
    s_lshl1_add_u32 s{sT2}, s{sT1}, s{sT0}
    s_lshl_b32 s{sT2}, s{sT2}, 12
    s_add_u32 s{sT2}, s{sT2}, {L_CTX}
    v_add_u32 v{CW}, s{sT2}, v{A16}
    v_add_u32 v{CR}, {L_CTX}, v{A16}
    s_lshl_b32 s{sT2}, s{sT1}, 4
    v_add_u32 v{T1}, s{sT2}, v{T1}
    v_lshlrev_b32 v{GA}, 2, v{T1}
    v_add_u32 v{GA}, {hex(WS_GATE)}, v{GA}
    v_lshlrev_b32 v{T0}, 2, v{T0}
    v_sub_u32 v{T1}, v{T1}, v{T0}
    v_mov_b32 v{T3}, {NINF}
    s_lshl_b32 s{sTF}, s{sHD}, 7
    s_add_u32 s{sTF}, s{sTF}, {hex(FLAG_T)}
    s_lshl_b32 s{sKV0}, s{sHD}, 12
    s_add_u32 s{sKV0}, s{sKV0}, {hex(WS_KVM)}
    s_lshl2_add_u32 s{sPB}, s{sHP}, s{w}
    s_lshl_b32 s{sPB}, s{sPB}, 12
    s_add_u32 s{sPB}, s{sPB}, {hex(WS_PART + 32*16384)}
    s_cmp_eq_u32 s{w}, 0
    s_cselect_b32 s{sCB}, {hex(CNT_B)}, {hex(OOB)}
    """.replace(f"s_cselect_b32 s{sCB}, {hex(CNT_B)}, {hex(OOB)}", f"s_mov_b32 s{sCB}, {hex(OOB)}\ns_cmov_b32 s{sCB}, {hex(CNT_B)}"))
    for i in range(8):
        a(f"v_cmp_gt_i32 vcc, {16*(i>>2) + (i&3)}, v{T1}\nv_mov_b32 v{ONES+(i&3)}, 0x3f803f80\ns_nop 0\nv_cndmask_b32 v{CM+i}, 0, v{T3}, vcc")
    a(f"v_mov_b32 v{PMZ+1}, 0\nv_mov_b32 v{PMZ+2}, 0")
    wread(1)
    a(f"""
    s_lshl_b32 s{sT0}, s{sHD}, 7
    s_add_u32 s{sT0}, s{sT0}, {hex(WS_FLAG + 64)}
    v_lshl_add_u32 v{T0}, v0, 2, s{sT0}
    v_and_b32 v{T1}, 7, v0
    v_lshlrev_b32 v{T1}, 7, v{T1}
    v_add_u32 v{T1}, {hex(CNT_GATE)}, v{T1}
    v_cmp_gt_u32 vcc, 16, v0
    v_lshrrev_b32 v{T2}, 3, v0
    v_min_u32 v{T2}, 2, v{T2}
    v_cndmask_b32 v{T0}, v{T1}, v{T0}, vcc
    v_lshrrev_b32 v{T1}, v{T2}, 4
    L_b_w0:
    buffer_load_dword v{T2}, v{T0}, {WSR}, 0 offen sc1
    """)
    spin(a)
    a(f"""
    s_waitcnt vmcnt(0)
    v_cmp_ne_u32 vcc, v{T1}, v{T2}
    s_cbranch_vccnz L_b_w0
    v_readlane_b32 s{sNXT}, v{V_TAB}, s{S_TASK}
    s_mov_b32 s{sSEG}, 4
    s_mov_b32 s{sRDY}, 0
    s_barrier
    """)
    stamp(a, 13)
    qkv_dma(a, sNXT)
    a(f"""
    L_b_round:
    s_mov_b32 s{sPRV}, s{sSEG}
    s_mov_b32 s{sSEG}, s{sNXT}
    s_add_u32 s{S_TASK}, s{S_TASK}, 1
    s_xor_b32 s{sT0}, s{sM0}, -1
    v_readlane_b32 s{sNXT}, v{V_TAB}, s{S_TASK}
    s_cmp_ge_u32 s{sM0}, 49152
    s_cselect_b32 s{sT2}, -49152, 49152
    s_add_u32 s{sM0}, s{sM0}, s{sT2}
    s_waitcnt vmcnt(0)
    s_barrier
    v_sub_f32 v{GT}, 1.0, v{GTN}
    s_and_b32 s{sT1}, s{w}, 1
    s_lshl_b32 s{sT1}, s{sT1}, 10
    v_add_u32 v{T1}, s{sT1}, v{QA}
    """.replace("s_cselect_b32 s%d, -49152, 49152" % sT2, f"s_mov_b32 s{sT2}, 49152\ns_cmov_b32 s{sT2}, -49152").replace(f"    s_xor_b32 s{sT0}, s{sM0}, -1\n", ""))
    for t in range(4):
        a(f"ds_read_b128 {vr(Q+4*t,4)}, v{T1} offset:{t*2048}")
        for kt in range(2): a(f"ds_read_b128 {vr(K+4*(2*t+kt),4)}, v{QA} offset:{8192 + (2*t+kt)*1024}")
    signal(a)
    a(f"s_cmp_eq_u32 s{sRDY}, 0\ns_cbranch_scc1 L_b_late\nL_b_have:")
    for t in range(4):
        a(f"ds_write2st64_b32 v{XTW}, v{KVM+4*t}, v{KVM+4*t+1} offset0:{2*t} offset1:{2*t+8}")
    a("s_waitcnt lgkmcnt(4)")
    D0_, D1_, DM = S, S + 4, S + 8
    for t in range(4):
        for kt in range(2):
            d = vr(S + 4*kt, 4)
            a(mf(d, vr(K+4*(2*t+kt),4), vr(Q+4*t,4), vr(CM+4*kt,4) if t == 0 else d))
            a(f"ds_read_b64_tr_b16 {vr(KM+4*t+2*kt,2)}, v{XTR} offset:{kt*2048 + t*512}")
    for f in range(6): a(f"ds_read_b128 {vr(V+4*f,4)}, v{QA} offset:{16384 + f*1024}")
    qkv_dma(a, sNXT)
    a("s_waitcnt lgkmcnt(6)")
    for t in range(4):
        a(mf(vr(DM,4), vr(KM+4*t,4), vr(Q+4*t,4), "0" if t == 0 else vr(DM,4)))
        if t < 2: a(f"ds_read_b128 {vr(V+4*(6+t),4)}, v{QA} offset:{16384 + (6+t)*1024}")
    vals = [S + i for i in range(10)]
    a(f"v_add_u32 v{QA}, s{sT2}, v{QA}")
    a(f"v_max_f32 v{T0}, v{S}, v{S+1}")
    for i in range(2, 8, 2): a(f"v_max3_f32 v{T0}, v{T0}, v{S+i}, v{S+i+1}")
    a(f"s_nop 2\nv_max3_f32 v{T0}, v{T0}, v{DM}, v{DM+1}")
    for sw in ("v_permlane32_swap_b32", "v_permlane16_swap_b32"):
        a(f"v_mov_b32 v{T1}, v{T0}\ns_nop 1\n{sw} v{T1}, v{T0}\nv_max_f32 v{T0}, v{T0}, v{T1}")
    for v in vals: a(f"v_sub_f32 v{v}, v{v}, v{T0}")
    for v in vals: a(f"v_exp_f32 v{v}, v{v}")
    for i in range(4): a(f"v_cvt_pk_bf16_f32 v{PX+i}, v{S+2*i}, v{S+2*i+1}")
    a(f"v_cvt_pk_bf16_f32 v{PMZ}, v{DM}, v{DM+1}\nv_cvt_pk_bf16_f32 v{PMZ+3}, v{DM}, v{DM+1}\ns_waitcnt lgkmcnt(0)")
    a(mf(vr(LL,4), vr(ONES,4), vr(PX,4), "0"))
    for f in range(8):
        a(mf(vr(OA+4*f,4), vr(V+4*f,4), vr(PX,4), "0"))
        if f == 5: a(mf16(vr(LL,4), vr(ONES,2), vr(PMZ,2)))
    post = []
    for t in range(4):
        b = OA + 8*t
        post.append([f"v_mul_f32 v{b+i}, v{b+i}, v{T0}" for i in range(8)] + [f"v_cvt_pk_bf16_f32 v{SQ+4*t+i}, v{b+2*i}, v{b+2*i+1}" for i in range(4)] +
                    [f"ds_write_b128 v{CW}, {vr(SQ+4*t,4)} offset:{t*1024}"])
    for f in range(8):
        a(mf16(vr(OA+4*f,4), vr(KVM+4*(f>>1)+2,2), vr(PMZ+2*(f&1),2)))
        if f == 5: a(f"v_rcp_f32 v{T0}, v{LL}")
        if f == 6: a(f"v_mul_f32 v{T0}, v{T0}, v{GT}")
    for p in post: a.emit(p)
    a(f"""
    buffer_load_dword v{FL}, v{ZERO}, {WSR}, s{sTF} offen sc1
    v_xor_b32 v{CW}, 0x4000, v{CW}
    s_mul_i32 s{sP0}, s{sSEG}, {PART_T // 8}
    s_add_u32 s{sP0}, s{sP0}, s{sPB}
    s_waitcnt lgkmcnt(0)
    s_barrier
    """)
    CF = K
    for tt in range(2):
        for k in range(8):
            if tt == 0: a(f"ds_read_b128 {vr(CF+4*k,4)}, v{CR} offset:{k*1024}")
    ms = []
    acc = lambda u: ACC + 4*(u & 7)
    for u in range(16):
        tt, ct = u >> 3, u & 7
        d = vr(acc(u), 4)
        for k in range(8): ms.append(mf(d, ar((ct*8 + k)*4, 4), vr(CF + 32*tt + 4*k, 4), "0" if k == 0 else d))
    def epi(c):
        b = acc(2*c); q = SQ + 4*(c & 3)
        return [f"v_cvt_pk_bf16_f32 v{q+i}, v{b+2*i}, v{b+2*i+1}" for i in range(4)] + \
               [f"buffer_store_dwordx4 {vr(q,4)}, v{A16}, {WSR}, s{sP0} offen offset:{(c & 3)*1024} sc1"]
    G = Gaps(ms)
    a("s_waitcnt lgkmcnt(7)")
    for k in range(7): G.add(k, f"s_waitcnt lgkmcnt({6-k})")
    for k in range(8): G.add(8 + k, f"ds_read_b128 {vr(CF+32+4*k,4)}, v{CR} offset:{8192 + k*1024}")
    G.add(40, "s_waitcnt lgkmcnt(0)", f"v_xor_b32 v{CR}, 0x4000, v{CR}")
    for c in range(7):
        e = epi(c); g = 16*(c+1) + 7
        if c == 4: G.add(g - 1, f"s_add_u32 s{sP0}, s{sP0}, {PART_T}")
        G.add(g, *e[:2]); G.add(g + 1, *e[2:4]); G.add(g + 2, e[4])
    G.add(60, "s_waitcnt vmcnt(3)", f"s_lshr_b32 s{sT1}, s{sNXT}, 4")
    G.add(61, f"v_cmp_lt_u32 vcc, s{sT1}, v{FL}")
    G.add(64, f"s_mov_b32 s{sRDY}, 0", "s_cbranch_vccz L_b_nofetch")
    G.g[64] += kvm_loads(sNXT) + [f"s_mov_b32 s{sRDY}, 1", "L_b_nofetch:"]
    G.emit(a)
    a("s_nop 7"); a.emit(epi(7))
    a(f"""
    s_bitcmp1_b32 s{sNXT}, 2
    s_cbranch_scc0 L_b_round
    s_mov_b32 s{sPRV}, s{sSEG}
    s_waitcnt vmcnt(0)
    s_barrier
    """)
    signal(a)
    stamp(a, 14)
    a(f"s_branch {next_label}")
    a(f"L_b_late:\ns_lshr_b32 s{sT1}, s{sSEG}, 4\nL_b_late2:\nbuffer_load_dword v{FL}, v{ZERO}, {WSR}, s{sTF} offen sc1")
    spin(a)
    a(f"s_waitcnt vmcnt(0)\nv_cmp_lt_u32 vcc, s{sT1}, v{FL}\ns_cbranch_vccz L_b_late2")
    a.emit(kvm_loads(sSEG))
    a("s_waitcnt vmcnt(0)\ns_branch L_b_have")

SEL, RD, RING, OA_ = 8, 16, 64, 24
sCUR, sSTG, sLO, sOO, sBC = 61, 62, 64, 65, 66
def gen_red(a, next_label):
    w = S_WAVE
    a("L_red:")
    set_srd(a, S_SRD1, S_OUT, 2048 * 512 * 2)
    a(f"""
    v_lshlrev_b32 v{A16}, 4, v0
    v_mov_b32 v{ZERO}, 0
    s_mov_b32 s{sSPIN}, 0
    v_and_b32 v{T0}, 4, v{V_TAB}
    v_cmp_ne_u32 vcc, 0, v{T0}
    v_bfe_u32 v{T0}, v{V_TAB}, 4, 6
    v_lshrrev_b32 v{T1}, 3, v{T0}
    s_lshr_b32 s{sT0}, vcc_lo, s{S_TASK}
    s_ff1_i32_b32 s{sT0}, s{sT0}
    s_bfm_b32 s{sT0}, s{sT0}, s{S_TASK}
    s_cmp_eq_u32 s{sSTG}, 0
    s_cselect_b32 s{sT1}, s{sT0}, 0
    v_lshlrev_b32 v{T1}, 7, v{T1}
    v_add_u32 v{T1}, {hex(CNT_CTX)}, v{T1}
    v_lshlrev_b32 v{T0}, 6, v{T0}
    v_add_u32 v{T0}, {hex(CNT_B)}, v{T0}
    v_cmp_gt_u32 vcc, 32, v0
    v_and_b32 v{T2}, 15, v0
    v_lshrrev_b32 v{T3}, 4, v0
    v_cndmask_b32 v{T0}, v{T0}, v{T1}, vcc
    v_cndmask_b32 v{T1}, 16, 32, vcc
    buffer_load_dword v{RD}, v{T0}, {WSR}, 0 offen sc1
    v_lshlrev_b32 v{OA_}, 10, v{T2}
    v_lshl_add_u32 v{OA_}, v{T3}, 4, v{OA_}
    """)
    a(f"""
    v_bfe_u32 v{RD+1}, v0, 2, 1
    v_lshlrev_b32 v{RD+1}, 1, v{RD+1}
    v_sub_u32 v{RD+1}, v{T3}, v{RD+1}
    v_bfe_u32 v{RD+2}, v0, 3, 1
    v_bfe_u32 v{RD+3}, v0, 1, 1
    v_lshl_add_u32 v{RD+2}, v{RD+2}, 1, v{RD+3}
    v_lshl_add_u32 v{RD+1}, v{RD+1}, 2, v{RD+2}
    v_and_b32 v{RD+2}, 1, v0
    v_lshlrev_b32 v{RD+2}, 4, v{RD+2}
    v_mov_b32 v{RD+3}, 0x3f80
    v_lshlrev_b32 v{RD+2}, v{RD+2}, v{RD+3}
    """)
    for i in range(8): a(f"v_cmp_eq_u32 vcc, {i}, v{RD+1}\ns_nop 1\nv_cndmask_b32 v{SEL+i}, 0, v{RD+2}, vcc")
    a(f"""
    v_readlane_b32 s{sNXT}, v{V_TAB}, s{S_TASK}
    L_r_wait:
    s_waitcnt vmcnt(0)
    v_cmp_gt_u32 vcc, v{T1}, v{RD}
    s_nop 0
    s_and_b64 vcc, vcc, s[{sT0}:{sT1}]
    s_cbranch_scc0 L_r_go
    buffer_load_dword v{RD}, v{T0}, {WSR}, 0 offen sc1
    """)
    spin(a)
    a("s_branch L_r_wait\nL_r_go:")
    stamp(a, 15)
    def decode():
        return [f"s_bfe_u32 s{sT0}, s{sNXT}, 0x60004", f"s_bfe_u32 s{sT1}, s{sNXT}, 0x1000e", f"s_lshl1_add_u32 s{sT0}, s{sT0}, s{sT1}",
                f"s_mul_i32 s{sLO}, s{sT0}, {PART_T}", f"s_bfe_u32 s{sT1}, s{sNXT}, 0x2000c", f"s_lshl2_add_u32 s{sT1}, s{sT1}, s{w}",
                f"s_lshl_b32 s{sT0}, s{sT0}, 14", f"s_lshl_b32 s{sP0}, s{sT1}, 6", f"s_add_u32 s{sP0}, s{sP0}, s{sT0}",
                f"s_lshl_b32 s{sT1}, s{sT1}, 10", f"s_add_u32 s{sLO}, s{sLO}, s{sT1}", f"s_add_u32 s{sLO}, s{sLO}, {hex(WS_PART)}",
                f"s_bitcmp1_b32 s{sNXT}, 2", f"s_cselect_b32 s{sLO}, {hex(OOB)}, s{sLO}"]
    ld = lambda p: [f"buffer_load_dwordx4 {vr(RING + 4*(p & 15), 4)}, v{A16}, {WSR}, s{sLO} offen sc1", f"s_add_u32 s{sLO}, s{sLO}, 0x4000"]
    a.emit(decode())
    for p in range(15): a.emit(ld(p))
    a(f"""
    L_r_loop:
    s_mov_b32 s{sCUR}, s{sNXT}
    s_mov_b32 s{sOO}, s{sP0}
    s_add_u32 s{S_TASK}, s{S_TASK}, 1
    s_nop 0
    v_readlane_b32 s{sNXT}, v{V_TAB}, s{S_TASK}
    """)
    for p in range(48):
        if p == 17: a(f"s_cmp_lg_u32 s{sSTG}, 0\ns_cbranch_scc1 L_r_stage\nL_r_stageback:")
        if p == 33: a.emit(decode())
        a.emit(ld(p + 15))
        a("s_waitcnt vmcnt(15)")
        for x in range(2):
            d = vr(RD + 4*x, 4)
            a(mf(d, vr(SEL + 4*x, 4), vr(RING + 4*(p & 15), 4), "0" if p == 0 else d))
    a("s_nop 6")
    for i in range(4): a(f"v_cvt_pk_bf16_f32 v{RD+16+i}, v{RD+2*i}, v{RD+2*i+1}")
    a(f"""
    buffer_store_dwordx4 {vr(RD+16,4)}, v{OA_}, s[48:51], s{sOO} offen
    s_bitcmp1_b32 s{sNXT}, 2
    s_cbranch_scc0 L_r_loop
    s_waitcnt vmcnt(1)
    """)
    stamp(a, 16)
    a(f"""
    s_branch {next_label}
    L_r_stage:
    s_bfe_u32 s{sBC}, s{sCUR}, 0x60004
    s_lshl_b32 s{sBC}, s{sBC}, 6
    s_add_u32 s{sBC}, s{sBC}, {hex(CNT_B)}
    L_r_st2:
    buffer_load_dword v{T0}, v{ZERO}, {WSR}, s{sBC} offen sc1
    """)
    spin(a)
    a(f"s_waitcnt vmcnt(0)\nv_cmp_gt_u32 vcc, 16, v{T0}\ns_cbranch_vccnz L_r_st2\ns_branch L_r_stageback")
```

```python
from common import *

V_TAB = 1
V_DMA = 2
V_RD = 16
V_ST = 8
V_FLG = 10
V_ONE = 11
V_T = 12
V_F = 32
V_Q = 64
ACC = (128, 192)
S_U, S_D0, S_D1, S_D2, S_DP, S_DPP = 56, 57, 58, 59, 60, 61
S_DOFF, S_DS, S_M0B, S_OUTP, S_SCP, S_T0, S_T1, S_FOFF, S_TB, S_XO, S_XM = 62, 63, 64, 65, 66, 67, 68, 69, 70, 71, 72

def unit_desc(mat, cb):
    return (mat << 24) | ((cb >> 1) << 19) | ((cb & 1) << 12) | (1 if mat in (2, 5) else 0) | (2 if mat in (0, 3) else 0) | ({1: 0, 2: 0, 0: 1, 4: 2, 5: 2, 3: 3}[mat] << 4)
INVALID = 4

def cursor_switch(d):
    l = [f"s_bfe_u32 s{S_T0}, s{d}, 0x30018",
         f"s_mov_b64 s[48:49], s[{S_WQA}:{S_WQA+1}]"]
    for m, p in ((1, S_WUK), (2, S_WUV), (3, S_WQB), (4, S_WKB), (5, S_WVB)):
        l += [f"s_cmp_eq_u32 s{S_T0}, {m}", f"s_cselect_b64 s[48:49], s[{p}:{p+1}], s[48:49]"]
    l += ["s_and_b32 s49, s49, 0xffff",
          f"s_bfe_u32 s{S_T0}, s{d}, 0x50013", f"s_lshl_b32 s{S_T0}, s{S_T0}, 8",
          f"s_bfe_u32 s{S_T1}, s{d}, 0x1000c", f"s_lshl_b32 s{S_T1}, s{S_T1}, 7",
          f"s_or_b32 s{S_DOFF}, s{S_T0}, s{S_T1}",
          f"s_bitcmp1_b32 s{d}, 2", f"s_cselect_b32 s{S_DOFF}, {hex(OOB)}, s{S_DOFF}"]
    return l

def dma(slot, kq, i):
    return [f"s_add_u32 m0, s{S_M0B}, {slot*16384 + i*1024}",
            f"s_add_u32 s{S_DS}, s{S_DOFF}, {kq*128*8192 + i*65536}",
            f"buffer_load_dwordx4 v{V_DMA + (i & 1)}, s[48:51], s{S_DS} offen lds"]

def prev_decode():
    return [f"s_and_b32 s{S_OUTP}, s{S_DP}, 0x7fff000",
            f"s_bitcmp1_b32 s{S_DP}, 2", f"s_cselect_b32 s{S_OUTP}, {hex(OOB)}, s{S_OUTP}" if not OPTS.get("oobstore") else f"s_mov_b32 s{S_OUTP}, {hex(OOB)}",
            f"s_bitcmp1_b32 s{S_DP}, 1", f"s_cselect_b32 s{S_SCP}, {fbits(SM_SCALE)}, 1.0"]

def flag_ops(d):
    return [f"s_bfe_u32 s{S_T0}, s{d}, 0x50013", f"s_lshl_b32 s{S_T0}, s{S_T0}, 7",
            f"s_bfe_u32 s{S_T1}, s{d}, 0x20004", f"s_lshl_b32 s{S_T1}, s{S_T1}, 5",
            f"s_or_b32 s{S_FOFF}, s{S_T0}, s{S_T1}",
            f"s_bitcmp1_b32 s{d}, 2", f"s_cselect_b32 s{S_FOFF}, {hex(OOB)}, s{S_FOFF}"]
def flag_store():
    return f"buffer_atomic_add v{V_ONE}, v{V_FLG}, {WSR}, s{S_FOFF} offen"

def acc16(par, vtype, tt4, ct4):
    if vtype: piece, sub = 4 * (tt4 >> 1) + ct4, tt4 & 1
    else:     piece, sub = 4 * (tt4 >> 1) + 2 * (ct4 >> 1) + (tt4 & 1), ct4 & 1
    return ACC[par] + 8 * piece + 4 * sub

def epi_tile(par, tile):
    tt, ct = tile >> 1, tile & 1
    b = ACC[par] + 16 * tile
    out = []
    for u in range(2):
        q = V_Q + 4 * ((2 * tile + u) & 3)
        for j in range(4):
            r = b + 8 * u + 2 * j
            out += [f"v_mul_f32 v{r}, s{S_SCP}, v{r}", f"v_mul_f32 v{r+1}, s{S_SCP}, v{r+1}",
                    f"v_cvt_pk_bf16_f32 v{q+j}, v{r}, v{r+1}"]
        out.append(f"buffer_store_dwordx4 {vr(q,4)}, v{V_ST+tt}, {WSR}, s{S_OUTP} offen offset:{ct*2048+u*1024} {OPTS.get('stflag','sc1')}")
    return out

def rd(par, s, j):
    if OPTS.get("m16"):
        ct4, aa = 2 * (s & 1) + (j >> 1), j & 1
        f = V_F + 8 * (s & 3) + 4 * (j >> 1) + 2 * aa
        return f"ds_read_b64_tr_b16 {vr(f,2)}, v{V_RD+4*par+ct4} offset:{(s>>1)*4096+aa*512}"
    ct, aa = j >> 1, j & 1
    f = V_F + 8 * (s & 3) + 4 * ct + 2 * aa
    return f"ds_read_b64_tr_b16 {vr(f,2)}, v{V_RD+4*par+ct} offset:{s*2048+aa*512}"

def body(a, par, vtype):
    a(f"L_p_body_{par}_{vtype}:")
    mf = []
    for s in range(32):
        for ct in range(2):
            for tt in range(2):
                acc = vr(ACC[par] + 16 * (2 * tt + ct), 16)
                w = vr(V_F + 8 * (s & 3) + 4 * ct, 4); x = ar((tt * 32 + s) * 4, 4)
                A, B = (x, w) if vtype else (w, x)
                mf.append(f"v_mfma_f32_32x32x16_bf16 {acc}, {A}, {B}, {acc if s else 0}")
    m16 = OPTS.get("m16")
    if m16:
        mf = []
        for s in range(32):
            for c in range(2):
                ct4 = 2 * (s & 1) + c
                for tt4 in range(4):
                    acc = vr(acc16(par, vtype, tt4, ct4), 4)
                    w = vr(V_F + 8 * (s & 3) + 4 * c, 4); x = ar((tt4 * 16 + (s >> 1)) * 4, 4)
                    A, B = (x, w) if vtype else (w, x)
                    mf.append(f"v_mfma_f32_16x16x32_bf16 {acc}, {A}, {B}, {acc if s > 1 else 0}")
    G = Gaps(mf)
    salu = {}
    def S(i, *l): salu.setdefault(i, []).extend(l)
    mem = {}
    def M(i, *l): mem.setdefault(i, []).extend(l)
    valu = {}
    def V(i, *l): valu.setdefault(i, []).extend(l)
    for s in range(32):
        kq, ks = s >> 3, s & 7
        S(4 * s + 3, "s_waitcnt lgkmcnt(3)")
        for j in range(4):
            s2 = s + 2
            M(4 * s + j, rd(par if s2 < 32 else 1 - par, s2 & 31, j))
        if ks < 4:
            q = kq + 6
            slot = ((par * 4 + q) & 7)
            d = dma(slot, q & 3, ks)
            S(4 * s + 0, d[0]); S(4 * s + 1, d[1])
            if not OPTS.get("nodma"): M(4 * s + 1, d[2])
        if ks == 5:
            S(4 * s + 2, "s_waitcnt vmcnt(%d)" % (14 if kq == 0 else 28), "s_barrier")
    pd = prev_decode()
    for i, x in enumerate(pd): S(2, x)
    V(8, f"v_readlane_b32 s{S_D2}, v{V_TAB}, s{S_U}")
    cs = cursor_switch(S_D2)
    for i, x in enumerate(cs): S(50 + i // 2, x)
    for t in range(4):
        g0 = (5 + 14 * t if t < 2 else 33 + 14 * (t - 2)) if not OPTS.get('spread') else 14 + 32 * t
        grp = epi_tile(1 - par, t)
        gi = g0; cnt = 0
        for x in grp:
            if x.startswith("buffer"):
                gi += 1; cnt = 0
                if not OPTS.get("nostore"): M(gi, x)
            else:
                V(gi, x); cnt += 1
                if cnt == 3: gi += 1; cnt = 0
    fo = flag_ops(S_DPP)
    for i, x in enumerate(fo): S(16 + i // 2, x)
    M(4 * 5 + 3, flag_store())
    S(120, f"s_mov_b32 s{S_DPP}, s{S_DP}", f"s_mov_b32 s{S_DP}, s{S_D0}")
    S(121, f"s_mov_b32 s{S_D0}, s{S_D1}", f"s_mov_b32 s{S_D1}, s{S_D2}")
    S(122, f"s_add_u32 s{S_U}, s{S_U}, 1")
    for i in range(128):
        sa, me, va = salu.get(i, []), mem.get(i, []), valu.get(i, [])
        if not m16:
            G.add(i, *(sa + me + va))
        else:
            h = (len(sa) + 1) // 2
            G.add(2 * i, *(sa[:h] + me[:1] + va[:1]))
            G.add(2 * i + 1, *(sa[h:] + me[1:] + va[1:]))
    G.emit(a)
    a(f"""
    s_bitcmp1_b32 s{S_D0}, 2
    s_cbranch_scc1 L_p_done_{par}
    s_bitcmp1_b32 s{S_D0}, 0
    s_cbranch_scc1 L_p_body_{1-par}_1
    s_branch L_p_body_{1-par}_0
    """)

def gen_pphase(a, next_label, src_sel_sreg, gate_sreg):
    a("L_p_start:")
    a(f"""
    s_cmp_eq_u32 s{src_sel_sreg}, 0
    s_cselect_b64 s[52:53], s[{S_X}:{S_X+1}], s[{S_C}:{S_C+1}]
    s_and_b32 s53, s53, 0xffff
    s_mov_b32 s54, 0x200000
    s_mov_b32 s55, 0x20000
    s_mov_b32 s50, 0x400000
    s_mov_b32 s51, 0x20000
    s_lshl_b32 s{S_M0B}, s{S_WAVE}, 12
    v_readlane_b32 s{S_D0}, v{V_TAB}, s{S_TASK}
    s_add_u32 s{S_U}, s{S_TASK}, 1
    v_readlane_b32 s{S_D1}, v{V_TAB}, s{S_U}
    s_mov_b32 s{S_DP}, {INVALID}
    s_mov_b32 s{S_DPP}, {INVALID}
    s_add_u32 s{S_U}, s{S_TASK}, 2
    """)
    m16 = OPTS.get("m16")
    a(f"""
    v_lshrrev_b32 v{V_T}, 3, v0
    v_lshlrev_b32 v{V_DMA}, 13, v{V_T}
    v_and_b32 v{V_T}, 7, v0
    v_lshrrev_b32 v{V_T+1}, {3 if m16 else 2}, v0
    v_and_b32 v{V_T+1}, {2 if m16 else 4}, v{V_T+1}
    v_xor_b32 v{V_T}, v{V_T}, v{V_T+1}
    v_lshl_add_u32 v{V_DMA}, v{V_T}, 4, v{V_DMA}
    s_lshl_b32 s{S_T0}, s{S_WAVE}, 18
    v_add_u32 v{V_DMA}, s{S_T0}, v{V_DMA}
    v_xor_b32 v{V_DMA+1}, {64 if m16 else 0}, v{V_DMA}
    s_lshl_b32 s{S_T0}, s{S_TB}, 8
    s_lshl_b32 s{S_T1}, s{S_WAVE}, 6
    s_add_u32 s{S_T0}, s{S_T0}, s{S_T1}
    v_and_b32 v{V_T+3}, 31, v0
    v_add_u32 v{V_T+3}, s{S_T0}, v{V_T+3}
    v_lshlrev_b32 v{V_T+3}, 2, v{V_T+3}
    s_lshl_b32 s{S_XO}, s{S_T0}, 10
    s_lshl_b32 s{S_XM}, s{S_WAVE}, 15
    s_add_u32 s{S_XM}, s{S_XM}, 0x8000
    v_lshlrev_b32 v{V_T+2}, 4, v0
    """)
    for r in range(16): a(f"v_xor_b32 v{V_F+r}, {r*16}, v{V_T+2}")
    def xdma(tt, r):
        a(f"s_add_u32 m0, s{S_XM}, {r*1024}\ns_add_u32 s{S_DS}, s{S_XO}, {(tt*32+r)*1024}\nbuffer_load_dwordx4 v{V_F+(r&15)}, s[52:55], s{S_DS} offen lds")
    for r in range(32): xdma(0, r)
    a.emit(cursor_switch(S_D0))
    for q in range(2):
        for i in range(4): a.emit(dma(q, q, i))
    if m16:
        a(f"""
        v_and_b32 v{V_T}, 15, v0
        v_lshrrev_b32 v{V_T+1}, 4, v0
        v_xor_b32 v{V_T+1}, v{V_T+1}, v{V_T}
        v_lshlrev_b32 v{V_T+1}, 4, v{V_T+1}
        v_lshl_add_u32 v{V_T}, v{V_T}, 10, v{V_T+1}
        v_add_u32 v{V_Q}, s{S_XM}, v{V_T}
        """)
        for jj in range(1, 4): a(f"v_xor_b32 v{V_Q+jj}, {jj<<6}, v{V_Q}")
        def xread(tt):
            for t2 in range(2):
                for s in range(16):
                    a(f"ds_read_b128 {ar(((2*tt+t2)*16+s)*4,4)}, v{V_Q+(s&3)} offset:{t2*16384+(s>>2)*256}")
    else:
        a(f"""
        v_and_b32 v{V_T}, 15, v0
        v_lshrrev_b32 v{V_T+1}, 5, v0
        v_xor_b32 v{V_T+1}, v{V_T+1}, v{V_T}
        v_lshlrev_b32 v{V_T+1}, 4, v{V_T+1}
        v_and_b32 v{V_T}, 31, v0
        v_lshl_add_u32 v{V_T}, v{V_T}, 10, v{V_T+1}
        v_add_u32 v{V_Q}, s{S_XM}, v{V_T}
        """)
        for jj in range(1, 8): a(f"v_xor_b32 v{V_Q+jj}, {jj<<5}, v{V_Q}")
        def xread(tt):
            for s in range(32):
                a(f"ds_read_b128 {ar((tt*32+s)*4,4)}, v{V_Q+(s&7)} offset:{(s>>3)*256}")
    a("s_waitcnt vmcnt(8)")
    xread(0)
    a("s_waitcnt lgkmcnt(0)")
    for r in range(32): xdma(1, r)
    if m16:
        a(f"""
        v_lshrrev_b32 v{V_T}, 4, v0
        v_lshlrev_b32 v{V_RD}, 10, v{V_T}
        v_bfe_u32 v{V_T}, v0, 2, 2
        v_lshl_add_u32 v{V_RD}, v{V_T}, 7, v{V_RD}
        v_bfe_u32 v{V_T}, v0, 3, 2
        v_lshl_add_u32 v{V_RD}, v{V_T}, 5, v{V_RD}
        v_and_b32 v{V_T}, 3, v0
        v_lshl_add_u32 v{V_RD}, v{V_T}, 3, v{V_RD}
        """)
        for c in range(1, 4): a(f"v_xor_b32 v{V_RD+c}, {c*32}, v{V_RD}")
        for c in range(4): a(f"v_add_u32 v{V_RD+4+c}, 0x10000, v{V_RD+c}")
    else:
        a(f"""
        v_lshrrev_b32 v{V_T}, 5, v0
        v_lshlrev_b32 v{V_RD}, 10, v{V_T}
        v_bfe_u32 v{V_T}, v0, 2, 2
        v_lshl_add_u32 v{V_RD}, v{V_T}, 7, v{V_RD}
        v_bfe_u32 v{V_T}, v0, 3, 1
        v_lshl_add_u32 v{V_RD}, v{V_T}, 6, v{V_RD}
        v_bfe_u32 v{V_T}, v0, 4, 1
        v_lshl_add_u32 v{V_RD}, v{V_T}, 5, v{V_RD}
        v_and_b32 v{V_T}, 3, v0
        v_lshl_add_u32 v{V_RD}, v{V_T}, 3, v{V_RD}
        v_xor_b32 v{V_RD+1}, 64, v{V_RD}
        v_add_u32 v{V_RD+4}, 0x10000, v{V_RD}
        v_add_u32 v{V_RD+5}, 0x10000, v{V_RD+1}
        """)
    a(f"""
    s_lshl_b32 s{S_T0}, s{S_TB}, 3
    s_lshl_b32 s{S_T1}, s{S_WAVE}, 1
    s_add_u32 s{S_T0}, s{S_T0}, s{S_T1}
    s_lshl_b32 s{S_T0}, s{S_T0}, 13
    v_lshl_add_u32 v{V_ST}, v0, 4, s{S_T0}
    v_add_u32 v{V_ST+1}, 0x2000, v{V_ST}
    s_lshl_b32 s{S_T0}, s{S_TB}, 2
    s_add_u32 s{S_T0}, s{S_T0}, {hex(WS_FLAG)}
    s_cmp_eq_u32 s{S_WAVE}, 0
    s_cselect_b32 s{S_T0}, s{S_T0}, {hex(OOB)}
    v_mov_b32 v{V_FLG}, {hex(OOB)}
    v_mov_b32 v{V_ONE}, 1
    v_writelane_b32 v{V_FLG}, s{S_T0}, 0
    s_waitcnt vmcnt(0)
    """)
    xread(1)
    a("s_waitcnt lgkmcnt(0)\ns_barrier")
    for q in range(2, 4):
        for i in range(4): a.emit(dma(q, q, i))
    a.emit(cursor_switch(S_D1))
    for q in range(2):
        for i in range(4): a.emit(dma(4 + q, q, i))
    a(f"s_cmp_eq_u32 s{gate_sreg}, 0\ns_cbranch_scc1 L_p_nogate")
    set_srd(a, S_SRD2, S_GATEW, 1024)
    if m16:
        a(f"v_lshrrev_b32 v{V_T}, 4, v0\nv_lshlrev_b32 v{V_T}, 4, v{V_T}")
        for s in range(16):
            a(f"buffer_load_dwordx4 {vr(128+4*s,4)}, v{V_T}, s[52:55], 0 offen offset:{s*64}")
        a(f"v_and_b32 v{V_T+3}, {hex(0xffffffff ^ 64)}, v{V_T+3}\ns_waitcnt vmcnt(0)")
        for s in range(16):
            for tt in range(4):
                acc = vr(80 + 4 * tt, 4)
                a(f"v_mfma_f32_16x16x32_bf16 {acc}, {vr(128+4*s,4)}, {ar((tt*16+s)*4,4)}, {acc if s else 0}")
        gl = [(80 + 4 * tt, 64 * tt) for tt in range(4)]
    else:
        a(f"v_lshrrev_b32 v{V_T}, 5, v0\nv_lshlrev_b32 v{V_T}, 4, v{V_T}")
        for s in range(32):
            a(f"buffer_load_dwordx4 {vr(128+4*s,4)}, v{V_T}, s[52:55], 0 offen offset:{s*32}")
        a("s_waitcnt vmcnt(0)")
        for s in range(32):
            for tt in range(2):
                acc = vr(80 + 16 * tt, 16)
                a(f"v_mfma_f32_32x32x16_bf16 {acc}, {vr(128+4*s,4)}, {ar((tt*32+s)*4,4)}, {acc if s else 0}")
        gl = [(80 + 16 * tt, 128 * tt) for tt in range(2)]
    a(f"s_nop 15\ns_mov_b32 s{S_T0}, {hex(WS_GATE)}")
    for r, off in gl:
        a(f"""
        v_mul_f32 v{r}, {fbits(-1.4426950408889634)}, v{r}
        v_exp_f32 v{r}, v{r}
        s_nop 0
        v_add_f32 v{r}, 1.0, v{r}
        v_rcp_f32 v{r}, v{r}
        s_nop 0
        buffer_store_dword v{r}, v{V_T+3}, {WSR}, s{S_T0} offen offset:{off} sc1
        """)
    a("L_p_nogate:")
    set_srd(a, S_SRD2, S_DBG, 256)
    a(f"""
    v_mov_b32 v{V_T}, 0
    s_mov_b32 s{S_T0}, 0
    L_p_init:
    buffer_load_dword v{V_T+1}, v{V_T}, s[52:55], 0 offen sc1
    s_add_u32 s{S_T0}, s{S_T0}, 1
    s_cmp_gt_u32 s{S_T0}, {SPIN_MAX}
    s_cbranch_scc1 L_exit
    s_waitcnt vmcnt(0)
    v_cmp_gt_u32 vcc, 32, v{V_T+1}
    s_cbranch_vccnz L_p_init
    s_barrier
    s_mul_i32 s{S_FOFF}, s{S_TB}, 124
    s_add_u32 s{S_FOFF}, s{S_FOFF}, {hex(CNT_GATE - WS_FLAG)}
    s_cmp_eq_u32 s{gate_sreg}, 0
    s_cselect_b32 s{S_FOFF}, {hex(OOB)}, s{S_FOFF}
    """)
    a(flag_store())
    stamp(a, 1)
    for s in range(2):
        for j in range(4): a(rd(0, s, j))
    a(f"""
    s_waitcnt lgkmcnt(4)
    s_bitcmp1_b32 s{S_D0}, 0
    s_cbranch_scc1 L_p_body_0_1
    """)
    body(a, 0, 0); body(a, 0, 1); body(a, 1, 0); body(a, 1, 1)
    for par in range(2):
        a(f"L_p_done_{par}:")
        a.emit(prev_decode())
        a("s_nop 7")
        for t in range(4): a.emit(epi_tile(par, t))
        if par == 0: a("s_branch L_p_fin")
    a("L_p_fin:")
    a("s_waitcnt vmcnt(0) lgkmcnt(0)\ns_barrier")
    a.emit(flag_ops(S_DPP)); a(flag_store())
    a.emit(flag_ops(S_DP)); a(flag_store())
    a(f"s_sub_u32 s{S_TASK}, s{S_U}, 2\ns_branch {next_label}")
```

```python
from common import OPTS
import pgemm

END = 4
def PRUN(src, tb, gate=0): return 4 | 3 | (src << 4) | (gate << 5) | (tb << 8)
def ATT(h, qb): return 4 | 1 | (h << 4) | (qb << 12)
def BRUN(hp, segs): return [4 | 2 | (hp << 4)] + [s << 4 for s in segs]
def RRUN(ents, staged=0): return [4 | 2 | 8 | (staged << 4)] + [(s << 4) | (k << 12) for s, k in ents]
U = pgemm.unit_desc

def by_head(ms): return sorted([(m, cb) for m in ms for cb in range(64)], key=lambda t: (t[1] >> 1, t[0], t[1]))

def deal(items, caps):
    bins = [[] for _ in caps]; i = 0
    assert sum(caps) >= len(items)
    while i < len(items):
        for b, c in enumerate(caps):
            if i < len(items) and len(bins[b]) < c:
                bins[b].append(items[i]); i += 1
    return bins

def p_plan():
    plan = [[] for _ in range(224)]
    cslots, xslots, extra = [], [], []
    for xd in range(7):
        cu = list(range(32 * xd, 32 * xd + 32))
        nc, nx = (2, 2) if xd in (0, 2, 4, 6) else (1, 3)
        for _ in range(nc): cslots.append(cu[:8]); cu = cu[8:]
        for _ in range(nx): xslots.append(cu[:7]); cu = cu[7:]
        extra.append(cu)
    odd = extra[1] + extra[3] + extra[5]
    xslots.append(odd[:7])
    singles = extra[0] + extra[2] + extra[4] + extra[6] + odd[7:]
    early = [0, 2, 3, 5, 6, 8, 9, 1]
    kvb = by_head((4, 5))
    ecus = [c for s in early for c in cslots[s]]
    for i, c in enumerate(ecus): plan[c].append((0, 0, 0, kvb[2 * i:2 * i + 2]))
    caps = [11 if s in early else 14 for s in range(11)]
    caps[early[0]] = caps[early[1]] = 10
    for s, us in enumerate(deal(by_head((1, 2)), caps)):
        for tb, c in enumerate(cslots[s]): plan[c].append((1, tb, 0, us))
    q = [(0, cb) for cb in range(64)] + [(3, cb) for cb in range(64)]
    for s, us in enumerate(deal(kvb + q, [15] * 18)):
        for k, c in enumerate(xslots[s]): plan[c].append((0, k + 1, 1 if s == 16 else 0, us))
    for s, us in enumerate(deal(q, [13] * 10)):
        plan[singles[s]].append((0, 0, 1 if s == 9 else 0, us))
    return plan

def post_tasks(cu):
    ar, k16 = cu >> 4, cu & 15
    sl, k = cu >> 3, cu & 7
    if OPTS.get("btest"):
        t = BRUN(k16, list(range(ar, 64, 14)))
        segs = list(range(sl, 64, 28))
        return t + RRUN([(s, k) for s in segs[:-1]]) + RRUN([(segs[-1], k)], 1)
    cl, hs = ar % 7, ar // 7
    h = 16 * hs + k16
    t = [ATT(h, 7 - cl)] + ([ATT(h, 0)] if cl == 6 else [])
    if cl >= 4:
        bi = {5: 0, 6: 2, 4: 4}[cl] + hs
        t += BRUN(k16, list(range(bi, 64, 6)))
    else:
        ri = (3 - cl) * 4 + hs * 2 + (k16 >> 3)
        t += RRUN([(s, k) for s in (ri, ri + 16)]) + RRUN([(ri + 32, k)], 1) + RRUN([(ri + 48, k)], 1)
    return t

def tables():
    plan = p_plan()
    seen = {}
    rows = []
    for cu in range(224):
        row = []
        for src, tb, gate, us in (plan[cu] if not OPTS.get('btest') else []):
            row.append(PRUN(src, tb, gate))
            for m, cb in us:
                assert (m in (1, 2)) == bool(src)
                seen[(m, cb, tb)] = seen.get((m, cb, tb), 0) + 1
                row.append(U(m, cb))
        if not OPTS.get("ponly"): row += post_tasks(cu)
        assert len(row) <= 31, len(row)
        rows.append(row + [END] * (32 - len(row)))
    assert OPTS.get('btest') or len(seen) == 6 * 64 * 8 and set(seen.values()) == {1}
    return rows
```

```python
from common import *

LB = 131072
L_QT, L_KT, L_VX, L_X = 0, 4096, 8192, 16384
A16, IDX, W16, WVB, DUM, XTW, XTR, OXW, H1ST, H1LD, H2ST, WT = range(12)
ONES = 12
PM0, ZERO, PM1 = 16, 17, 18
M, AQ, AK, AV, QF, KW, ST, KV = 20, 52, 60, 68, 76, 92, 108, 124
WO = 128
sS, sKX, sVX, sWARM, sFLG, sKVM, sH1L, sH2L, sH2S, sTAG, sTF, sSPIN, sT0, sT1, sMK, sMV, sKB0 = range(56, 73)
sH1 = 74
sSENT = 78
sSEL = 80
sC = 88; sLO = 89; sFFFE = 90; sRANGE = 91; sFL0 = 92; sTV = 93; sODD = 94; sWD = 73

class LG:
    def __init__(self): self.n = 0; self.t = {}; self.done = 0
    def op(self, tag, ins):
        self.n += 1; self.t[tag] = self.n; return ins
    def need(self, *tags):
        m = max(self.t[t] for t in tags)
        if m <= self.done: return []
        self.done = m
        return [f"s_waitcnt lgkmcnt({min(15, self.n - m)})"]

def nops(cyc):
    r = []; n = cyc // 4
    while n > 0:
        k = min(n, 16); r.append(f"s_nop {k-1}"); n -= k
    return r

def sm(acc, A, B): return f"v_smfmac_f32_16x16x64_bf16 {vr(acc,4)}, {vr(A,4)}, {B}, v{IDX}"
def d32(D, A, B, first): return f"v_mfma_f32_16x16x32_bf16 {vr(D,4)}, {vr(A,4)}, {vr(B,4)}, {'0' if first else vr(D,4)}"
def d16(D, A, B): return f"v_mfma_f32_16x16x16_bf16 {vr(D,4)}, {vr(A,2)}, {vr(B,2)}, {vr(D,4)}"

VORD = [(k >> 1, k & 1) for k in range(12)] + [(6, 0), (7, 0), (6, 1), (7, 1)]
VBUF = [QF, QF + 8, KW, KW + 8, ST, ST + 8, QF, QF + 8, ST, ST + 8, QF, QF + 8, ST, ST + 8, ST, ST + 8]
def wv_read(lg, k, u):
    j, tl = VORD[k]
    if OPTS.get("nowv") and k >= 6:
        lg.t[("wv", k, u)] = 0
        return "s_nop 0"
    return lg.op(("wv", k, u), f"ds_read_b128 {vr(VBUF[k] + 4*u, 4)}, v{WVB} offset:{(j&1)*16384 + tl*2048 + u*1024}")
def wv_next(cl):
    return f"v_xor_b32 v{WVB}, {hex(32768 * (1 if cl & 1 else 3))}, v{WVB}"
def wv_prefetch():
    lg = LG()
    return [wv_read(lg, k, u) for k in range(4) for u in range(2)] + [wv_next(1)] + [wv_read(lg, k, u) for k in (4, 5) for u in range(2)]
def warm_addr():
    return [f"v_bfe_u32 v{M+25}, v{W16}, 9, 1", f"v_and_b32 v{DUM}, 0x1ff, v{W16}", f"v_lshlrev_b32 v{DUM}, 2, v{DUM}",
            f"v_lshl_add_u32 v{DUM}, v{M+25}, 24, v{DUM}"]
def ms_addrs():
    return [f"v_xor_b32 v{M + 8*cl + 4}, {cl*2048}, v{WT}" for cl in range(1, 4)]

def spin_check(a):
    a(f"s_add_u32 s{sSPIN}, s{sSPIN}, 1\ns_cmp_gt_u32 s{sSPIN}, {SPIN_MAX}\ns_cbranch_scc1 L_exit")

def step_loop(a_, sfx, stf):
    lg = LG()
    drop = [f"s{r} offen" for k, r in (("nokvm", sKVM), ("nowarm", sWARM), ("noflg", sFLG), ("notf", sTF), ("nodma", sKX), ("nodma", sVX)) if OPTS.get(k)]
    if OPTS.get("nohop"): drop += [f"s{sH1L} offen", f"s{sH2L} offen", f"s{sH2S} offen", "L_retry2", "vccnz L_poll1", "L_smslow", "L_fs"]
    if OPTS.get("nost"): drop += [f"s{sH1+n} offen" for n in range(4)]
    kill = []
    if OPTS.get("nobar"): kill += ["s_barrier"]
    if OPTS.get("nods"): kill += ["ds_read", "ds_write", "lgkmcnt"]
    if OPTS.get("nodsw"): kill += ["lgkmcnt"]
    if OPTS.get("novm"): kill += ["buffer_"]
    if OPTS.get("novalu"): kill += ["v_add", "v_mul", "v_cvt", "v_exp", "v_max", "v_mov", "v_xor", "v_cnd", "v_cmp", "v_rcp", "v_sub", "v_and", "v_lsh", "v_or", "v_bit", "v_min", "v_perm"]
    if OPTS.get("nonop"): kill += ["s_nop"]
    a0 = a_
    def a(x):
        for l in x.split("\n"):
            if not any(k in l for k in kill): a0(l)
    E = lambda *l: [a(x if not any(d in x for d in drop) else "s_nop 0") for y in l for x in (y if isinstance(y, list) else [y])]
    Q = lambda j, tl: sm(AQ + 4*tl, M + 4*j, ar((tl*8 + j)*8, 8))
    K = lambda j, tl: sm(AK + 4*tl, M + 4*j, ar(128 + (tl*8 + j)*8, 8))
    Vv = lambda k: sm(AV + 4*VORD[k][1], M + 4*VORD[k][0], vr(VBUF[k], 8))
    kxreg = lambda t, tt: (M if tt else KW) + 4*t
    kxr = lambda t, tt: lg.op(("kx", t, tt), f"ds_read_b128 {vr(kxreg(t,tt),4)}, v{A16} offset:{(2*t+tt)*1024}")
    qr = lambda t, x: lg.op(("q", t, x), f"ds_read_b64_tr_b16 {vr(QF + 4*t + 2*x, 2)}, v{XTR} offset:{L_QT + x*2048 + t*512}")
    kr = lambda t, x: lg.op(("k", t, x), f"ds_read_b64_tr_b16 {vr(KW + 4*t + 2*x, 2)}, v{XTR} offset:{L_KT + x*2048 + t*512}")
    mr = lambda j: lg.op(("m", j), f"ds_read_b128 {vr(M+4*j,4)}, v{M + 8*(j>>1) + 4} offset:{(j&1)*1024}")
    wr = lambda k, u: wv_read(lg, k, u)
    nv = lambda k: lg.need(("wv", k, 0), ("wv", k, 1))
    add = lambda d, x, y: f"v_add_f32 v{d}, v{x}, v{y}"
    mulc = lambda d: f"v_mul_f32 v{d}, s{sC}, v{d}"
    cvt = lambda d, x, y: f"v_cvt_pk_bf16_f32 v{d}, v{x}, v{y}"
    ex = lambda d, s_: f"v_exp_f32 v{d}, v{s_}"
    N0, N1 = "s_nop 0", "s_nop 1"
    prof = OPTS.get("tprof") and sfx == "_f"
    PSET = {1: [0,1,2,3,4,5,6,7,8], 2: [0,1,6,7,"a","b","c","d",8], 3: [0,5,"e","f","g",6,"h",7,8], 4: [0,2,"i","j",3,"k",4,"l",8]}.get(OPTS.get("tprof"), [])
    def P(k):
        if prof and k in PSET: k = PSET.index(k); a(f"s_memtime s[{8+2*k}:{9+2*k}]")
    def warm(cyc):
        if not OPTS.get("warm"): return nops(cyc)
        r = []
        for i in range(cyc // 16): r += [f"v_mov_b32 v{M+26}, 0", "s_nop 2"]
        return r + nops(cyc % 16)
    g2 = OPTS.get("g2", 100)
    B0_, B1_ = M + 8, M + 16
    def ld2(x, y): E(f"buffer_load_dwordx4 {vr(x,4)}, v{WT}, {WSR}, s{sH2L} offen sc1", f"buffer_load_dwordx4 {vr(y,4)}, v{WT}, {WSR}, s{sH2L} offen offset:1024 sc1")
    a(f"L_poll2{sfx}:")
    ld2(M, M + 4)
    spin_check(a)
    n2 = 2 if g2 else 0
    if g2:
        E(warm(g2 - 20))
        ld2(B0_, B1_)
    E(warm(OPTS.get("w2", 0)))
    a(f"L_entry{sfx}:")
    C0 = M + 24
    E(f"s_waitcnt vmcnt({n2+1})", f"ds_write_b128 v{WT}, {vr(M,4)}")
    P(0)
    E(Q(0,0), f"s_waitcnt vmcnt({n2})", f"ds_write_b128 v{WT}, {vr(M+4,4)} offset:1024", f"v_max3_u32 v{C0}, v{M}, v{M+1}, v{M+2}")
    E(Q(0,1), f"v_max3_u32 v{C0+1}, v{M+3}, v{M+4}, v{M+5}", f"v_max3_u32 v{C0}, v{C0}, v{M+6}, v{M+7}")
    E(Q(1,0), f"v_max_u32 v{C0}, v{C0}, v{C0+1}", f"v_cmp_eq_u32 vcc, -1, v{C0}")
    dmaV = lambda x: f"buffer_load_dwordx4 v{W16}, {WSR}, s{sVX} offen offset:{1024*x} sc1 lds"
    dmaK = lambda x: f"buffer_load_dwordx4 v{W16}, {WSR}, s{sKX} offen offset:{1024*x} sc1 lds"
    E(Q(1,1), f"s_mov_b32 m0, s{sMV}", K(0,0), f"s_cbranch_vccnz L_retry2{sfx}", "s_waitcnt vmcnt(0)" if g2 else N0)
    E(K(0,1), dmaV(0), dmaV(1), K(1,0), "s_waitcnt lgkmcnt(0)", "s_barrier")
    P(1)
    E(mr(2), K(1,1), mr(3), mr(4), Vv(0), mr(5), mr(6), Vv(1), mr(7))
    E(Vv(2), f"buffer_load_dword v{DUM}, v{DUM}, {WSR}, s{sWARM} offen sc1", f"v_mov_b32 v{PM0}, s{sTV}")
    E(Vv(3), lg.need(("m",2)), wr(6,0), Q(2,0), lg.need(("m",3)), wr(6,1), Q(3,0), lg.need(("m",4)), wr(7,0))
    E(Q(4,0), lg.need(("m",5)), wr(7,1), wv_next(2), Q(5,0), lg.need(("m",7)), kxr(0,0), f"buffer_load_dword v{DUM}, v{ZERO}, {WSR}, s{sFLG} offen sc1")
    E(Q(6,0), kxr(1,0), Q(7,0), kxr(2,0), f"buffer_store_dword v{PM0}, v{ZERO}, {WSR}, s{sTF} offen sc1")
    E(Vv(4), f"s_mov_b32 m0, s{sMK}", kxr(3,0), Q(2,1), N0, wr(8,0), add(AQ,AQ,AQ+1))
    E(Q(3,1), wr(8,1), add(AQ+2,AQ+2,AQ+3), Vv(5), kxr(0,1), mulc(AQ), Q(4,1), wr(9,0), mulc(AQ+2))
    E(Q(5,1), wr(9,1), cvt(AQ,AQ,AQ), Q(6,1), kxr(1,1), cvt(AQ+1,AQ+2,AQ+2), Q(7,1), nv(7), N0)
    P(2)
    E(Vv(6), N0, f"buffer_store_dwordx4 {vr(KV,4)}, v{W16}, {WSR}, s{sKVM} offen sc1", Vv(7), N0, wr(10,0), add(AQ+4,AQ+4,AQ+5))
    E(K(2,0), wr(10,1), add(AQ+6,AQ+6,AQ+7), K(3,0), nv(9), wr(11,0), mulc(AQ+4))
    E(Vv(8), wr(11,1), mulc(AQ+6), K(4,0), wv_next(3), cvt(AQ+4,AQ+4,AQ+4), Vv(9), wr(12,0), cvt(AQ+5,AQ+6,AQ+6))
    E(K(5,0), nv(10), lg.op("qw", f"ds_write2st64_b64 v{XTW}, {vr(AQ,2)}, {vr(AQ+4,2)} offset0:{L_QT//512} offset1:{L_QT//512+4}"))
    P("i")
    E(Vv(10), wr(12,1), K(6,0), nv(11), wr(13,0), Vv(11), wr(13,1), K(7,0), K(2,1), lg.need("qw"), "s_barrier")
    P("j")
    E(K(3,1), nv(12), qr(0,0), qr(0,1), Vv(12), qr(1,0), qr(1,1), K(4,1), nv(13), qr(2,0), qr(2,1))
    E(Vv(13), qr(3,0), qr(3,1), K(5,1), kxr(2,1), add(AK,AK,AK+1))
    E(K(6,1), kxr(3,1), add(AK+2,AK+2,AK+3), K(7,1), lg.need(("q",0,1)), wr(14,0), cvt(KV,AK,AK+2))
    P(3)
    SX = lambda t, tt: d32(AQ + 4*tt, kxreg(t,tt), QF + 4*t, t == 0)
    EX, PX, VX = M, M + 4, M + 16
    DM, LL = AK, AK + 4
    E(SX(0,0), lg.need(("q",3,1)), wr(14,1), dmaK(0), SX(1,0), add(AK+4,AK+4,AK+5), add(AK+6,AK+6,AK+7))
    E(SX(2,0), wr(15,0), cvt(KV+1,AK+4,AK+6))
    E(SX(3,0), lg.op("kw", f"ds_write2st64_b32 v{XTW}, v{KV}, v{KV+1} offset0:{L_KT//256} offset1:{L_KT//256+8}"), add(AV,AV,AV+1))
    E(SX(0,1), lg.need(("kx",3,1)), wr(15,1), add(AV+2,AV+2,AV+3), SX(1,1), N0, ex(EX,AQ), SX(2,1), "s_waitcnt vmcnt(5)", ex(EX+1,AQ+1))
    E(SX(3,1), lg.need("kw"), "s_barrier")
    P("k")
    E(kr(0,0), kr(0,1), kr(1,0), kr(1,1), Vv(14), nv(15), kr(2,0), kr(2,1), Vv(15), kr(3,0), kr(3,1))
    E(ex(EX+2,AQ+2), ex(EX+3,AQ+3), cvt(PX,EX,EX+1), ex(EX,AQ+4))
    P(4)
    SM = lambda t: d32(DM, KW + 4*t, QF + 4*t, t == 0)
    OA, OP = QF + 4, QF + 12
    vxr = lambda x: lg.op(("vx",x), f"ds_read_b128 {vr(VX+4*x,4)}, v{W16} offset:{L_VX+1024*x}")
    E(lg.need(("k",1,1)), SM(0), vxr(0), vxr(1), SM(1), lg.need(("k",3,1)), cvt(PX+1,EX+2,EX+3), ex(EX+1,AQ+5))
    E(SM(2), ex(EX+2,AQ+6), SM(3), f"s_cmp_eq_u32 s{sS}, 63", ex(EX+3,AQ+7), cvt(PX+2,EX,EX+1), cvt(PX+3,EX+2,EX+3))
    P("l")
    E(add(AV+4,AV+4,AV+5), add(AV+6,AV+6,AV+7))
    E(d32(LL, ONES, PX, True), lg.need(("vx",1)), ex(EX,DM))
    E(d32(OA, VX, PX, True), ex(EX+1,DM+1))
    E(d32(OA+4, VX+4, PX, True), cvt(PM0,EX,EX+1), cvt(KV+2,AV,AV+2), cvt(KV+3,AV+4,AV+6))
    E(d16(LL, ONES, PM0), "s_cbranch_scc1 L_team_last", cvt(PM1+1,EX,EX+1), wv_next(0))
    P(5)
    RI = LL + 1
    WA = M + 16
    zw = [f"v_mov_b64 {vr(WA+2*i,2)}, 0" for i in range(8)]
    E(d16(OA, KV+2, PM0), dmaK(1), zw[4], zw[5])
    E(d16(OA+4, KV+2, PM1), f"v_rcp_f32 v{RI}, v{LL}", f"v_subrev_u32 v{LL+2}, s{sLO}, v{LL}", f"v_cmp_le_u32 vcc, s{sRANGE}, v{LL+2}", zw[6])
    a(f"L_smback{sfx}:")
    for i in range(4): a(f"v_mul_f32 v{OA+i}, v{OA+i}, v{RI}")
    E(cvt(OP, OA, OA+1), cvt(OP+1, OA+2, OA+3))
    for i in range(4, 8): a(f"v_mul_f32 v{OA+i}, v{OA+i}, v{RI}")
    E(cvt(OP+2, OA+4, OA+5), cvt(OP+3, OA+6, OA+7), f"s_cbranch_vccnz L_smslow{sfx}")
    OF = [OP, KW + 4, KW + 8, KW + 12]
    WOm = lambda n, il: sm(WA + 4*n, OF[il], vr(WO + (n*4 + il)*8, 8))
    SEL, RD, HD = M, M + 4, M + 8
    sel = [f"v_lshrrev_b32 v{RD}, 16, v{ONES}", f"v_cndmask_b32 v{RD}, v{RD}, 1.0, s[{sODD}:{sODD+1}]"] + [f"v_cndmask_b32 v{SEL+i}, 0, v{RD}, s[{sSEL+2*i}:{sSEL+2*i+1}]" for i in range(4)]
    P("e")
    E(lg.op("ow", f"ds_write_b128 v{OXW}, {vr(OP,4)}"), zw[7], zw[:4])
    for il in range(1, 4): a(f"v_xor_b32 v{OF[il]}, {il*512}, v{OXW}")
    E(sel[:2])
    P("f")
    E(lg.need("ow"), "s_barrier")
    P("g")
    for il in range(1, 4): a(lg.op(("o", il), f"ds_read_b128 {vr(OF[il],4)}, v{OF[il]}"))
    E(WOm(0,0), sel[2], WOm(1,0), sel[3], WOm(2,0), sel[4], WOm(3,0), sel[5], lg.need(("o",1)))
    P(6)
    def post(n):
        b = WA + 4*n
        return [cvt(b, b, b+1), cvt(b+1, b+2, b+3), f"v_and_or_b32 v{b}, v{b}, -2, s{sTAG}",
                f"buffer_store_dwordx2 {vr(b,2)}, v{H1ST}, {WSR}, s{sH1+n} offen {stf}"]
    z = [f"v_mov_b64 {vr(AQ+2*i,2)}, 0" for i in range(12)]
    p0, p1, p2, p3 = post(0), post(1), post(2), post(3)
    E(WOm(0,1), lg.need(("o",2)), z[0], WOm(0,2), lg.need(("o",3)), z[1], WOm(0,3), N1, z[2])
    E(WOm(1,1), N1, z[3], WOm(1,2), p0[0], WOm(1,3), N1, p0[1])
    E(WOm(2,1), N1, p0[2], WOm(2,2), p0[3], p1[0], WOm(2,3), N1, p1[1])
    E(WOm(3,1), N1, p1[2], WOm(3,2), p1[3], p2[0], WOm(3,3))
    P("h")
    E(N1, p2[1], p2[2], p2[3], "s_nop 2", p3)
    P(7)
    d1, d1s, d2 = OPTS.get("d1", 250), OPTS.get("d1s", 48), OPTS.get("d2", 200)
    prev = 0
    for w in range(4):
        want = max(0, d1 - (3 - w) * d1s)
        if w > 0 and want > prev: a(f"s_cmp_lt_u32 s{S_WAVE}, {w}\ns_cbranch_scc1 L_poll1{sfx}"); prev += 8
        E(warm(max(0, want - prev))); prev = max(prev, want)
    g1, g2 = OPTS.get("g1", 120), OPTS.get("g2", 100)
    T1 = M + 24
    def ld1(b): E(f"buffer_load_dwordx4 {vr(b,4)}, v{H1LD}, {WSR}, s{sH1L} offen sc1", f"buffer_load_dwordx4 {vr(b+4,4)}, v{H1LD}, {WSR}, s{sH1L} offen offset:1024 sc1")
    def try1(b, n):
        E(f"s_waitcnt vmcnt({n+1})")
        if b == HD: P("b")
        E(d32(RD, b, SEL, True), f"v_bitop3_b32 v{T1}, v{b}, v{b+2}, s{sTAG} bitop3:0x7e", f"s_waitcnt vmcnt({n})")
        if b == HD: P("c")
        E(d32(RD, b+4, SEL, False), f"v_bitop3_b32 v{T1+1}, v{b+4}, v{b+6}, s{sTAG} bitop3:0x7e",
          f"v_or_b32 v{T1}, v{T1}, v{T1+1}", f"v_and_b32 v{T1}, 1, v{T1}", f"v_cmp_ne_u32 vcc, 0, v{T1}", "s_nop 2")
    a(f"L_poll1{sfx}:")
    P("a")
    ld1(HD)
    if not g1:
        spin_check(a)
        E(z[4:], warm(OPTS.get("w1", 0)))
        try1(HD, 0)
        E(f"s_cbranch_vccnz L_poll1{sfx}")
    else:
        E(z[4:], warm(g1 - 40))
        ld1(HD + 8)
        E(warm(OPTS.get("w1", 0)))
        a(f"L_poll1b{sfx}:")
        try1(HD, 2)
        E(f"s_cbranch_vccnz L_retry1{sfx}")
        a(f"L_got1{sfx}:")
    P("d")
    E(add(RD,RD,RD+1), add(RD+2,RD+2,RD+3), N1, f"v_permlane16_swap_b32 v{RD}, v{RD+2}", add(RD,RD,RD+2), cvt(RD, RD, ZERO),
      f"v_min_u32 v{RD}, s{sFFFE}, v{RD}", f"v_cndmask_b32 v{RD}, v{RD}, -1, s[{sSENT}:{sSENT+1}]")
    E(f"buffer_store_short v{RD}, v{H2ST}, {WSR}, s{sH2S} offen {stf}")
    P(8)
    E(wv_prefetch())
    E(f"v_cmp_ne_u32 vcc, 4, v{DUM}", f"v_xor_b32 v{H2ST}, 0x2000, v{H2ST}", f"v_xor_b32 v{WT}, 0x2000, v{WT}", f"v_xor_b32 v{A16}, 0x2000, v{A16}",
      "s_waitcnt vmcnt(1)", ms_addrs(), f"s_cbranch_vccnz L_fs{sfx}")
    a(f"L_fsback{sfx}:")
    E(warm_addr())
    if OPTS.get("tsteps") and sfx == "_f":
        a(f"""s_memrealtime s[8:9]
        s_lshl_b32 s10, s{sS}, 2
        s_add_u32 s10, s10, s{sTF}
        s_add_u32 s10, s10, {hex(WS_STAMP + 0x20000 - FLAG_T)}
        s_lshl_b32 s11, s{S_RANK}, 7
        s_add_u32 s10, s10, s11
        s_waitcnt lgkmcnt(0)
        v_mov_b32 v{M+26}, s8
        buffer_store_dword v{M+26}, v{ZERO}, {WSR}, s10 offen""")
    advance(a)
    if prof:
        a("s_waitcnt lgkmcnt(0)\ns_sub_u32 s4, s8, s26\ns_add_u32 s36, s36, s4\ns_mov_b32 s26, s24")
        for k in range(8): a(f"s_sub_u32 s4, s{10+2*k}, s{8+2*k}\ns_add_u32 s{28+k}, s{28+k}, s4")
    E(warm(max(0, d2 - 160)), f"s_branch L_poll2{sfx}")
    a(f"L_retry2{sfx}:")
    if not g2:
        E("s_nop 7", z[:6], f"s_branch L_poll2{sfx}")
    else:
        E("s_waitcnt vmcnt(0)", f"v_max3_u32 v{C0}, v{B0_}, v{B0_+1}, v{B0_+2}", f"v_max3_u32 v{C0+1}, v{B0_+3}, v{B1_}, v{B1_+1}",
          f"v_max3_u32 v{C0}, v{C0}, v{B1_+2}, v{B1_+3}", f"v_max_u32 v{C0}, v{C0}, v{C0+1}", f"v_cmp_eq_u32 vcc, -1, v{C0}",
          [f"v_mov_b64 {vr(M+2*i,2)}, {vr((B0_ if i < 2 else B1_ - 4)+2*i,2)}" for i in range(4)], z[:6])
        if prof: a("s_add_u32 s37, s37, 1")
        E(f"s_cbranch_vccnz L_poll2{sfx}", f"s_branch L_entry{sfx}")
    if g1:
        a(f"L_retry1{sfx}:")
        ld1(HD)
        spin_check(a)
        try1(HD + 8, 2)
        E(f"s_cbranch_vccz L_got1{sfx}")
        ld1(HD + 8)
        E(f"s_branch L_poll1b{sfx}")
    a(f"L_smslow{sfx}:")
    E(f"v_max3_f32 v{EX+2}, v{AQ}, v{AQ+1}, v{AQ+2}", f"v_max3_f32 v{EX+2}, v{EX+2}, v{AQ+3}, v{AQ+4}",
      f"v_max3_f32 v{EX+2}, v{EX+2}, v{AQ+5}, v{AQ+6}", f"v_max3_f32 v{EX+2}, v{EX+2}, v{AQ+7}, v{DM}", f"v_max_f32 v{EX+2}, v{EX+2}, v{DM+1}")
    for sw in ("v_permlane32_swap_b32", "v_permlane16_swap_b32"):
        E(f"v_mov_b32 v{EX}, v{EX+2}", N1, f"{sw} v{EX}, v{EX+2}", f"v_max_f32 v{EX+2}, v{EX+2}, v{EX}")
    for i in range(5):
        s0 = AQ + 2*i if i < 4 else DM
        E(f"v_sub_f32 v{EX}, v{s0}, v{EX+2}", f"v_sub_f32 v{EX+1}, v{s0+1}, v{EX+2}", ex(EX, EX), ex(EX+1, EX+1), N0)
        if i < 4: E(cvt(PX+i, EX, EX+1))
        else: E(cvt(PM0, EX, EX+1), cvt(PM1+1, EX, EX+1))
    E(N1, d32(LL, ONES, PX, True), d32(OA, VX, PX, True), d32(OA+4, VX+4, PX, True), "s_nop 3",
      d16(LL, ONES, PM0), d16(OA, KV+2, PM0), d16(OA+4, KV+2, PM1), "s_nop 7",
      f"v_rcp_f32 v{RI}, v{LL}", "s_mov_b64 vcc, 0", f"s_branch L_smback{sfx}")
    flag_spin(a, sfx, sFLG)
    a(f"s_branch L_fsback{sfx}")

def flag_spin(a, sfx, reg):
    a(f"""
    L_fs{sfx}:
    buffer_load_dword v{DUM}, v{ZERO}, {WSR}, s{reg} offen sc1
    """)
    spin_check(a)
    a(f"""
    s_waitcnt vmcnt(0)
    v_cmp_ne_u32 vcc, 4, v{DUM}
    s_cbranch_vccnz L_fs{sfx}
    """)

def advance(a):
    a(f"""
    s_max_i32 s{sTV}, s{sS}, 0
    s_add_u32 s{sS}, s{sS}, 1
    s_xor_b32 s{sTAG}, s{sTAG}, 1
    s_add_u32 s{sVX}, s{sKX}, 0x1000000
    s_add_u32 s{sT0}, s{sS}, 1
    s_min_u32 s{sT0}, s{sT0}, 63
    s_lshl_b32 s{sT0}, s{sT0}, 13
    s_add_u32 s{sKX}, s{sKB0}, s{sT0}
    s_add_u32 s{sWARM}, s{sKX}, s{sWD}
    s_add_u32 s{sT0}, s{sS}, 2
    s_min_u32 s{sT0}, s{sT0}, 63
    s_lshr_b32 s{sT0}, s{sT0}, 3
    s_lshl2_add_u32 s{sFLG}, s{sT0}, s{sFL0}
    s_add_u32 s{sKVM}, s{sKVM}, 0x20000
    s_xor_b32 s{sMK}, s{sMK}, 0x2000
    """)

def gen_team(a):
    h, w = S_RANK, S_WAVE
    T = 20
    a("L_team:")
    a(f"""
    s_mov_b32 s{sSPIN}, 0
    v_lshrrev_b32 v{T}, 4, v0          ; g
    v_and_b32 v{T+1}, 15, v0           ; r
    v_and_b32 v{T+2}, 1, v0
    v_cmp_eq_u32 vcc, 1, v{T+2}
    v_mov_b32 v{T+3}, 0x44444444
    v_mov_b32 v{T+4}, 0xeeeeeeee
    v_cndmask_b32 v{IDX}, v{T+3}, v{T+4}, vcc
    s_lshl_b32 s{sT0}, s{w}, 11
    s_add_u32 s{sT0}, s{sT0}, {LB}
    v_lshl_add_u32 v{W16}, v0, 4, s{sT0}
    v_add_u32 v{WT}, {L_X + 0x2000}, v{W16}
    s_mov_b32 s{sWD}, s{sT0}
    s_lshl_b32 s{sT0}, s{w}, 12
    v_lshl_add_u32 v{WVB}, v0, 4, s{sT0}
    s_lshl_b32 s{sT0}, s{w}, 9
    s_add_u32 s{sT0}, s{sT0}, {LB}
    v_bfe_u32 v{T+2}, v0, 3, 1
    v_lshl_add_u32 v{XTW}, v{T+2}, 8, s{sT0}
    v_lshl_add_u32 v{XTW}, v{T}, 6, v{XTW}
    v_and_b32 v{T+2}, 7, v0
    v_lshl_add_u32 v{XTW}, v{T+2}, 3, v{XTW}
    v_lshrrev_b32 v{T+2}, 5, v0
    v_lshlrev_b32 v{XTR}, 8, v{T+2}
    v_and_b32 v{T+2}, 3, v0
    v_lshl_add_u32 v{XTR}, v{T+2}, 6, v{XTR}
    v_bfe_u32 v{T+2}, v0, 2, 3
    v_lshl_add_u32 v{XTR}, v{T+2}, 3, v{XTR}
    v_add_u32 v{XTR}, {LB}, v{XTR}
    s_lshl_b32 s{sT0}, s{w}, 9
    s_add_u32 s{sT0}, s{sT0}, {LB + L_QT}
    v_lshrrev_b32 v{T+2}, 1, v0
    v_lshl_add_u32 v{OXW}, v{T+2}, 4, s{sT0}
    ; H1ST = (8w + (l>>3))*2048 + h*64 + (l&7)*8
    s_lshl_b32 s{sT0}, s{w}, 14
    s_lshl_b32 s{sT1}, s{h}, 6
    s_add_u32 s{sT0}, s{sT0}, s{sT1}
    v_lshrrev_b32 v{T+2}, 3, v0
    v_lshl_add_u32 v{H1ST}, v{T+2}, 11, s{sT0}
    v_and_b32 v{T+2}, 7, v0
    v_lshl_add_u32 v{H1ST}, v{T+2}, 3, v{H1ST}
    v_lshlrev_b32 v{H1LD}, 8, v{T}
    v_bfe_u32 v{T+2}, v0, 2, 1
    v_lshl_add_u32 v{H1LD}, v{T+2}, 7, v{H1LD}
    v_and_b32 v{T+2}, 1, v0
    v_lshl_add_u32 v{H1LD}, v{T+2}, 6, v{H1LD}
    v_bfe_u32 v{T+2}, v0, 3, 1
    v_lshl_add_u32 v{H1LD}, v{T+2}, 5, v{H1LD}
    v_bfe_u32 v{T+2}, v0, 1, 1
    v_lshl_add_u32 v{H1LD}, v{T+2}, 4, v{H1LD}
    s_lshl_b32 s{sT0}, s{w}, 16
    s_lshl_b32 s{sT1}, s{h}, 11
    s_add_u32 s{sT0}, s{sT0}, s{sT1}
    s_add_u32 s{sH1L}, s{sT0}, {hex(WS_HOP1)}
    v_bfe_u32 v{T+2}, v0, 3, 1
    v_lshlrev_b32 v{H2ST}, 13, v{T+2}
    v_lshl_add_u32 v{H2ST}, v{T}, 3, v{H2ST}
    v_bfe_u32 v{T+2}, v0, 1, 1
    v_lshl_add_u32 v{H2ST}, v{T+2}, 5, v{H2ST}
    v_bfe_u32 v{T+2}, v0, 2, 1
    v_lshl_add_u32 v{H2ST}, v{T+2}, 2, v{H2ST}
    v_and_b32 v{T+2}, 1, v0
    v_lshl_add_u32 v{H2ST}, v{T+2}, 1, v{H2ST}
    s_lshl_b32 s{sH2S}, s{w}, 11
    s_lshr_b32 s{sT0}, s{h}, 3
    s_lshl_b32 s{sT0}, s{sT0}, 9
    s_add_u32 s{sH2S}, s{sH2S}, s{sT0}
    s_and_b32 s{sT0}, s{h}, 1
    s_lshl_b32 s{sT0}, s{sT0}, 8
    s_add_u32 s{sH2S}, s{sH2S}, s{sT0}
    s_bfe_u32 s{sT0}, s{h}, 0x20001
    s_lshl_b32 s{sT0}, s{sT0}, 6
    s_add_u32 s{sH2S}, s{sH2S}, s{sT0}
    s_add_u32 s{sH2S}, s{sH2S}, {hex(WS_HOP2)}
    s_mov_b32 s{sH2L}, {hex(WS_HOP2 - LB - L_X)}
    s_lshl_b32 s{sFL0}, s{h}, 7
    s_add_u32 s{sFL0}, s{sFL0}, {hex(WS_FLAG + 64)}
    s_lshl_b32 s{sKB0}, s{h}, 19
    s_add_u32 s{sKB0}, s{sKB0}, {hex(WS_PROJ + (4 << 24) - LB)}
    s_mov_b32 s{sODD}, 0xaaaaaaaa
    s_mov_b32 s{sODD+1}, 0xaaaaaaaa
    v_mov_b32 v{ZERO}, 0
    v_mov_b32 v{PM1}, 0
    v_mov_b32 v{PM0}, 0
    v_mov_b32 v{ONES+0}, 0x3f803f80
    v_mov_b32 v{ONES+1}, 0x3f803f80
    v_mov_b32 v{ONES+2}, 0x3f803f80
    v_mov_b32 v{ONES+3}, 0x3f803f80
    s_mov_b32 s{sSENT}, 0xff00ff00
    s_mov_b32 s{sSENT+1}, 0xff00ff00
    s_mov_b32 s{sC}, {fbits(SM_SCALE)}
    s_mov_b32 s{sLO}, {hex((127 - 60) << 23)}
    s_mov_b32 s{sRANGE}, {hex(OPTS.get('smrange', 120) << 23)}
    s_mov_b32 s{sFFFE}, 0xfffe
    s_lshl_b32 s{sT0}, s{w}, 11
    s_add_u32 s{sMK}, s{sT0}, {LB + L_X}
    s_add_u32 s{sMV}, s{sT0}, {LB + L_VX}
    s_lshl_b32 s{sT0}, s{h}, 7
    s_add_u32 s{sT0}, s{sT0}, {hex(FLAG_T)}
    s_cmp_eq_u32 s{w}, 0
    s_cselect_b32 s{sTF}, s{sT0}, {hex(OOB)}
    """)
    for i in range(4):
        a(f"s_mov_b32 s{sSEL+2*i}, {hex(0x03030303 << (2*i))}\ns_mov_b32 s{sSEL+2*i+1}, {hex(0x03030303 << (2*i))}\ns_mov_b32 s{sH1+i}, {hex(WS_HOP1 + i*65536)}")
    for n in range(4): a(f"buffer_store_dwordx2 {vr(PM0,2)}, v{H1ST}, {WSR}, s{sH1+n} offen sc1")
    a(f"""
    v_mov_b32 v{T+2}, 0xffff
    buffer_store_short v{T+2}, v{H2ST}, {WSR}, s{sH2S} offen sc1
    s_mul_i32 s{sT0}, s{w}, 4
    s_lshr_b32 s{sT0}, 0x7640, s{sT0}
    s_and_b32 s{sT0}, s{sT0}, 15
    s_lshl_b32 s{sT0}, s{sT0}, 12
    s_lshl_b32 s{sT1}, s{h}, 7
    s_add_u32 s{sT0}, s{sT0}, s{sT1}
    s_add_u32 s{sT0}, s{sT0}, {hex(WS_FLAG + OPTS.get('noclear', 0) * OOB)}
    v_and_b32 v{T+3}, 31, v0
    v_lshlrev_b32 v{T+3}, 2, v{T+3}
    buffer_store_dword v{ZERO}, v{T+3}, {WSR}, s{sT0} offen sc1
    """)
    set_srd(a, S_SRD2, S_DBG, 256)
    a(f"""
    s_lshl_b32 s{sT0}, 1, s{S_XCC}
    v_mov_b32 v{T+2}, s{sT0}
    s_cmp_eq_u32 s{w}, 0
    s_cselect_b32 s{sT1}, 0, {hex(OOB)}
    s_mov_b64 exec, 1
    buffer_atomic_or v{T+2}, v{ZERO}, s[52:55], s{sT1} offen offset:128
    s_mov_b64 exec, -1
    """)
    D0, D1, R0 = T + 6, T + 7, T + 8
    a(f"""
    v_bfe_u32 v{T+2}, v0, 4, 1          ; lo
    v_lshrrev_b32 v{T+3}, 5, v0         ; a
    s_lshl_b32 s{sT0}, s{w}, 1
    v_or_b32 v{T+4}, s{sT0}, v{T+2}
    v_lshlrev_b32 v{T+4}, 1, v{T+4}
    v_xor_b32 v{T+4}, v{T+4}, v{T+1}
    v_lshlrev_b32 v{T+4}, 4, v{T+4}
    v_lshl_add_u32 v{T+5}, v{T+2}, 4, v{T+3}
    v_add_u32 v{T+5}, s{sT0}, v{T+5}
    v_lshl_add_u32 v{D0}, v{T+5}, 13, v{T+4}
    s_lshl_b32 s{sT1}, s{h}, 8
    v_add_u32 v{D0}, s{sT1}, v{D0}
    s_lshl_b32 s{sT0}, s{w}, 4
    v_add_u32 v{T+5}, s{sT0}, v{T}
    v_lshl_add_u32 v{D1}, v{T+5}, 10, v{T+4}
    s_lshl_b32 s{sT1}, s{h}, 17
    v_add_u32 v{D1}, s{sT1}, v{D1}
    v_lshrrev_b32 v{T+2}, 5, v0
    v_lshlrev_b32 v{R0}, 12, v{T+2}
    v_bfe_u32 v{T+2}, v0, 3, 1          ; hf
    v_lshl_add_u32 v{R0}, v{T+2}, 11, v{R0}
    v_lshlrev_b32 v{T+4}, 2, v{T+2}
    v_bfe_u32 v{T+2}, v0, 4, 1          ; gl
    v_lshl_add_u32 v{R0}, v{T+2}, 10, v{R0}
    v_lshl_add_u32 v{T+4}, v{T+2}, 1, v{T+4}
    v_bfe_u32 v{T+2}, v0, 2, 1          ; lo
    v_lshl_add_u32 v{R0}, v{T+2}, 8, v{R0}
    v_add_u32 v{T+4}, v{T+4}, v{T+2}
    s_lshl_b32 s{sT0}, s{w}, 1
    v_xor_b32 v{T+4}, s{sT0}, v{T+4}
    v_lshl_add_u32 v{R0}, v{T+4}, 5, v{R0}
    v_and_b32 v{T+2}, 3, v0
    v_lshl_add_u32 v{R0}, v{T+2}, 3, v{R0}
    v_xor_b32 v{R0+1}, 32, v{R0}
    v_bfe_u32 v{T+2}, v0, 3, 1
    v_mul_u32_u24 v{T+2}, {2048 + 128 + 32}, v{T+2}
    v_xor_b32 v{R0+4}, v{T+2}, v{R0}
    v_xor_b32 v{R0+5}, {2048 + 128}, v{R0+4}
    s_mov_b32 s50, 0x400000
    s_mov_b32 s51, 0x20000
    s_lshl_b32 s{sS}, s{w}, 10
    """)
    ptr = [S_WQB, S_WKB, S_WOB, S_WVB]
    def wdma(q):
        mt, j = q >> 3, q & 7
        if j == 0: a(f"s_mov_b32 s48, s{ptr[mt]}\ns_and_b32 s49, s{ptr[mt]+1}, 0xffff")
        for i in range(4):
            u, gh = i >> 1, i & 1
            if mt == 2: so = (64 * (j & 1) + 8 * u + 4 * gh) * 1024 + (j >> 1) * 256
            else: so = (64 * j + 32 * u + 8 * gh) * 8192
            a(f"s_add_u32 m0, s{sS}, {j*16384 + i*4096}\ns_mov_b32 s{sT0}, {so}\nbuffer_load_dwordx4 v{D1 if mt == 2 else D0}, s[48:51], s{sT0} offen lds")
    for q in range(7): wdma(q)
    for q in range(32):
        mt, j = q >> 3, q & 7
        a(f"s_waitcnt vmcnt({4*min(6, 31-q)})\ns_barrier")
        if q == 0:
            a(f"""
            v_mov_b32 v{T+2}, 1
            s_cmp_eq_u32 s{w}, 0
            s_cselect_b32 s{sT1}, 0, {hex(OOB)}
            s_mov_b64 exec, 1
            buffer_atomic_add v{T+2}, v{ZERO}, s[52:55], s{sT1} offen
            s_mov_b64 exec, -1
            """)
        if q + 7 < 32: wdma(q + 7)
        rb = R0 + 4 if mt == 2 else R0
        a(f"v_add_u32 v{R0+2}, {j*16384}, v{rb}\nv_add_u32 v{R0+3}, {j*16384}, v{rb+1}")
        def reads(wv):
            for tl in range(2):
                for u in range(2):
                    for x in range(2):
                        o = 4 * u + 2 * x
                        if mt == 0: d = ar((tl*8 + (j ^ 2*wv))*8 + o, 2)
                        elif mt == 1: d = ar(128 + (tl*8 + (j ^ 2*wv))*8 + o, 2)
                        elif mt == 2: d = vr(WO + ((j >> 1)*4 + ((2*(j & 1) + tl) ^ wv))*8 + o, 2)
                        else: d = vr(ST + 8*tl + o, 2)
                        a(f"ds_read_b64_tr_b16 {d}, v{R0+2+tl} offset:{u*8192 + x*512}")
        if mt == 3: reads(0)
        else:
            for wv in range(4):
                if wv < 3: a(f"s_cmp_lg_u32 s{w}, {wv}\ns_cbranch_scc1 L_wr_{q}_{wv+1}")
                reads(wv)
                if wv < 3: a(f"s_branch L_wr_{q}_e\nL_wr_{q}_{wv+1}:")
            a(f"L_wr_{q}_e:")
        a("s_waitcnt lgkmcnt(0)")
        if mt == 3:
            a(f"s_barrier\nv_add_u32 v{R0+2}, {j*16384}, v{WVB}")
            for tl in range(2):
                for u in range(2):
                    a(f"ds_write_b128 v{R0+2}, {vr(ST + 8*tl + 4*u, 4)} offset:{tl*2048 + u*1024}")
            a("s_waitcnt lgkmcnt(0)")
    a(f"s_lshl_b32 s{sT0}, s{w}, 15\nv_add_u32 v{WVB}, s{sT0}, v{WVB}")
    stamp(a, 1)
    set_srd(a, S_SRD1, S_MEM0, 8192)
    a(f"""
    v_bfe_u32 v{T+2}, v0, 1, 3
    v_lshlrev_b32 v{T+3}, 10, v{T+2}
    v_lshrrev_b32 v{T+2}, 5, v0
    v_lshl_add_u32 v{T+3}, v{T+2}, 6, v{T+3}
    v_bfe_u32 v{T+2}, v0, 4, 1
    v_lshl_add_u32 v{T+3}, v{T+2}, 4, v{T+3}
    v_and_b32 v{T+2}, 1, v0
    v_lshl_add_u32 v{T+3}, v{T+2}, 3, v{T+3}
    s_lshl_b32 s{sT0}, s{w}, 8
    buffer_load_dwordx2 {vr(KW,2)}, v{T+3}, s[48:51], s{sT0} offen
    buffer_load_dwordx2 {vr(KW+2,2)}, v{T+3}, s[48:51], s{sT0} offen offset:32
    buffer_load_dwordx2 {vr(KW+4,2)}, v{T+3}, s[48:51], s{sT0} offen offset:128
    buffer_load_dwordx2 {vr(KW+6,2)}, v{T+3}, s[48:51], s{sT0} offen offset:160
    v_lshlrev_b32 v{A16}, 4, v0
    v_add_u32 v{A16}, {LB + L_X}, v{A16}
    s_mov_b32 s{sT0}, 0x05040100
    s_mov_b32 s{sT1}, 0x07060302
    s_waitcnt vmcnt(0)
    """)
    for jj in range(2):
        x, y, d = KW + 4*jj, KW + 4*jj + 2, M + 4*jj
        a(f"""
        v_perm_b32 v{d}, v{y}, v{x}, s{sT0}
        v_perm_b32 v{d+1}, v{y}, v{x}, s{sT1}
        v_perm_b32 v{d+2}, v{y+1}, v{x+1}, s{sT0}
        v_perm_b32 v{d+3}, v{y+1}, v{x+1}, s{sT1}
        v_min_u32 v{d}, -2, v{d}
        v_min_u32 v{d+1}, -2, v{d+1}
        v_min_u32 v{d+2}, -2, v{d+2}
        v_min_u32 v{d+3}, -2, v{d+3}
        """)
    a(f"""
    L_team_init:
    buffer_load_dword v{AQ}, v{ZERO}, s[52:55], 0 offen sc1
    """)
    spin_check(a)
    a(f"""
    s_waitcnt vmcnt(0)
    v_cmp_gt_u32 vcc, 32, v{AQ}
    s_cbranch_vccnz L_team_init
    buffer_load_dword v{AQ}, v{ZERO}, s[52:55], 0 offen offset:128 sc1
    s_mov_b32 s{sFLG}, s{sFL0}
    """)
    flag_spin(a, "_pre", sFLG)
    a(f"""
    v_readfirstlane_b32 s{sT1}, v{AQ}
    s_mov_b32 m0, s{sMK}
    s_mov_b32 s{sKX}, s{sKB0}
    buffer_load_dwordx4 v{W16}, {WSR}, s{sKX} offen sc1 lds
    buffer_load_dwordx4 v{W16}, {WSR}, s{sKX} offen offset:1024 sc1 lds
    s_mov_b32 s{sS}, -1
    s_mov_b32 s{sTAG}, 0
    s_lshl_b32 s{sKVM}, s{h}, 12
    s_lshl_b32 s{sT0}, s{w}, 10
    s_sub_u32 s{sKVM}, s{sKVM}, s{sT0}
    s_add_u32 s{sKVM}, s{sKVM}, {hex(WS_KVM - 2*0x20000 - LB)}
    """)
    advance(a)
    a.emit(wv_prefetch())
    for i in range(12): a(f"v_mov_b64 {vr(AQ+2*i,2)}, 0")
    a("s_waitcnt vmcnt(0) lgkmcnt(0)")
    stamp(a, 2)
    if OPTS.get("tprof"):
        for k in range(10): a(f"s_mov_b32 s{28+k}, 0")
        a("s_memtime s[26:27]\ns_waitcnt lgkmcnt(0)")
    a.emit(ms_addrs())
    a.emit(warm_addr())
    a(f"""
    s_bcnt1_i32_b32 s{sT1}, s{sT1}
    s_cmp_eq_u32 s{sT1}, {2 if OPTS.get('forceslow') else 1}
    s_cbranch_scc0 L_entry_x
    s_branch L_entry_f
    """)
    step_loop(a, "_f", "")
    step_loop(a, "_x", "sc1")
    a(f"""
    L_team_last:
    s_waitcnt vmcnt(0)
    s_add_u32 s{sKVM}, s{sKVM}, 0x20000
    v_mov_b32 v{DUM}, 64
    buffer_store_dwordx4 {vr(KV,4)}, v{W16}, {WSR}, s{sKVM} offen sc1
    s_waitcnt vmcnt(0)
    s_barrier
    buffer_store_dword v{DUM}, v{ZERO}, {WSR}, s{sTF} offen sc1
    """)
    stamp(a, 3)
    if OPTS.get("tprof"):
        a(f"s_lshl_b32 s4, s{h}, 2\ns_add_u32 s4, s4, s{w}\ns_lshl_b32 s4, s4, 6\ns_add_u32 s4, s4, {hex(WS_STAMP + 0x10000)}")
        for k in range(9): a(f"v_mov_b32 v20, s{28+k}\nbuffer_store_dword v20, v{ZERO}, {WSR}, s4 offen offset:{4*k}")
        a(f"v_mov_b32 v20, s{sSPIN}\nbuffer_store_dword v20, v{ZERO}, {WSR}, s4 offen offset:36")
        a(f"v_mov_b32 v20, s37\nbuffer_store_dword v20, v{ZERO}, {WSR}, s4 offen offset:40")
    a("s_waitcnt vmcnt(0)\ns_endpgm")
```

```python
import sys
from common import *
import pgemm, team, att, barr, sched, lint

def build(opts):
    a = Asm()
    OPTS.clear(); OPTS.update(opts)
    kernel_head(a)
    prologue(a)
    stamp(a, 0)
    a(f"""
    s_cmp_eq_u32 s{S_GRP}, 0
    s_cbranch_scc1 L_team
    """)
    if opts.get("teamonly"): a("s_branch L_exit")
    if opts.get("attonly"):
        a(f"s_branch L_att_test")
    a(f"""
    s_sub_u32 s3, s{S_GRP}, 1
    s_lshl_b32 s3, s3, 5
    s_add_u32 s3, s3, s{S_RANK}
    s_getpc_b64 s[4:5]
    L_pc0:
    s_add_u32 s4, s4, L_ptab-L_pc0
    s_addc_u32 s5, s5, 0
    s_lshl_b32 s3, s3, 7
    v_and_b32 v2, 31, v0
    v_lshl_add_u32 v2, v2, 2, s3
    global_load_dword v{pgemm.V_TAB}, v2, s[4:5]
    s_mov_b32 s{S_TASK}, 0
    s_waitcnt vmcnt(0)
    L_next:
    v_readlane_b32 s3, v{pgemm.V_TAB}, s{S_TASK}
    s_add_u32 s{S_TASK}, s{S_TASK}, 1
    s_nop 0
    s_and_b32 s4, s3, 3
    s_cmp_eq_u32 s4, 0
    s_cbranch_scc1 L_after_p
    s_cmp_eq_u32 s4, 1
    s_cbranch_scc1 L_go_att
    s_cmp_eq_u32 s4, 2
    s_cbranch_scc1 L_go_outx
    s_bfe_u32 s6, s3, 0x10004
    s_bfe_u32 s7, s3, 0x10005
    s_bfe_u32 s{pgemm.S_TB}, s3, 0x30008
    """)
    pgemm.gen_pphase(a, "L_p_end", 6, 7)
    a("L_p_end:")
    stamp(a, 3)
    a("s_branch L_next")
    full = not (opts.get("attonly"))
    a("L_go_att:")
    if full:
        a(f"s_bfe_u32 s{att.sH}, s3, 0x50004\ns_bfe_u32 s{att.sQB}, s3, 0x3000c")
        att.gen_att(a, "L_att_end")
        a("L_att_end:")
        stamp(a, 11)
        a("s_branch L_next")
    a("L_go_outx:")
    if full:
        a(f"""
        s_bfe_u32 s{barr.sHP}, s3, 0x40004
        s_bfe_u32 s{barr.sSTG}, s3, 0x10004
        s_bitcmp1_b32 s3, 3
        s_cbranch_scc1 L_red
        """)
        barr.gen_barr(a, "L_next")
        barr.gen_red(a, "L_next")
    a("L_after_p:")
    stamp(a, 2)
    a("s_waitcnt vmcnt(0)\ns_endpgm")
    if opts.get("attonly"):
        a(f"""
        L_team:
        L_att_test:
        s_lshl_b32 s{att.sH}, s{S_GRP}, 2
        s_lshr_b32 s3, s{S_RANK}, 3
        s_add_u32 s{att.sH}, s{att.sH}, s3
        s_and_b32 s{att.sQB}, s{S_RANK}, 7
        """)
        att.gen_att(a, "L_after_p")
    elif opts.get("btest"):
        a("L_team:")
    else:
        team.gen_team(a)
    a("L_exit:\ns_endpgm")
    a.lines.append(".p2align 8\n.type L_ptab,@object\nL_ptab:")
    for row in sched.tables():
        a.lines.append(".long " + ",".join(hex(x) if x > 9 else str(x) for x in row))
    kernel_tail(a)
    return a.text()

if __name__ == "__main__":
    out = sys.argv[1]
    opts = dict(kv.split("=") for kv in sys.argv[2:])
    opts = {k: (int(v) if v.lstrip('-').isdigit() else v) for k, v in opts.items()}
    opts.setdefault('m16', 1)
    t = build(opts)
    open(out, "w").write(t)
    lint.lint(t)
```

```python
from common import *

A16, W16, RA, ORA, T0, T1, EX, ONES, GT, T2, XM, WD = 2, 3, 4, 5, 6, 7, 8, 16, 20, 24, 25, 26
S, P, C, O = 32, (64, 80), 96, 128
AQ, AK, AV, AL = 0, 64, 96, 128
L_K01 = 131072
sH, sQB, sB, sNA, sKO, sVO, sKB, sKMAX, sSLOT, sM0, sT0, sT1, sQO, sPO, sBIT, sRET, sWO, sM1, sSPIN = range(56, 75)
sPQ = 76
TOFF_DEFAULT = 16.0
NINF = "0xff800000"

def mf(D, A, B, Cc): return f"v_mfma_f32_16x16x32_bf16 {D}, {A}, {B}, {Cc}"
def qk_list(q0):
    l = []
    for qt in range(q0, 4):
        for kt in range(2):
            d = vr(S + 8*qt + 4*kt, 4)
            for t in range(4):
                l.append(mf(d, ar(AK + 4*(2*t+kt), 4), ar(AQ + 16*qt + 4*t, 4), vr(C + 8*qt + 4*kt, 4) if t == 0 else d))
    return l
def pv_list(par, q0):
    l = [mf(ar(AL + 4*qt, 4), vr(ONES, 4), vr(P[par] + 4*qt, 4), ar(AL + 4*qt, 4)) for qt in range(q0, 4)]
    for f in range(8):
        for qt in range(q0, 4):
            d = vr(O + 32*qt + 4*f, 4)
            l.append(mf(d, ar(AV + 4*f, 4), vr(P[par] + 4*qt, 4), d))
    return l
vrd = lambda f: f"ds_read_b128 {ar(AV + 4*f, 4)}, v{RA} offset:{f*1024}"
krd = lambda f: f"ds_read_b128 {ar(AK + 4*f, 4)}, v{RA} offset:{8192 + f*1024}"

def dma_kv():
    return [([f"s_add_u32 m0, s{sSLOT}, s{sM0}"], f"buffer_load_dwordx4 v{W16}, {WSR}, s{sVO} offen sc1 lds"),
            ([f"s_min_u32 s{sT0}, s{sKB}, s{sKMAX}"], f"buffer_load_dwordx4 v{W16}, {WSR}, s{sVO} offen offset:1024 sc1 lds"),
            ([f"s_add_u32 m0, m0, 0x2000"], f"buffer_load_dwordx4 v{W16}, {WSR}, s{sT0} offen sc1 lds"),
            ([f"s_add_u32 s{sVO}, s{sVO}, 0x2000"], f"buffer_load_dwordx4 v{W16}, {WSR}, s{sT0} offen offset:1024 sc1 lds"),
            ([f"s_add_u32 s{sKB}, s{sKB}, 0x2000", f"s_add_u32 s{sSLOT}, s{sSLOT}, 0x4000", f"s_and_b32 s{sSLOT}, s{sSLOT}, 0x1ffff"], None)]
def dma_w(k):
    return [([f"s_add_u32 m0, s{sM1}, {k*16384 + i*1024}", f"s_add_u32 s{sT0}, s{sWO}, {i*8192 + k*128}"],
             f"buffer_load_dwordx4 v{WD}, s[48:51], s{sT0} offen lds") for i in range(4)] + [([], None)]
def emit_dma(a, d):
    for sc_, ld in d:
        a.emit(sc_)
        if ld: a(("s_nop 0\n" if len(sc_) < 2 else "") + ld)

def mask_ops(j):
    q0 = j >> 1; l = []
    for kt in range(2):
        for i in range(4):
            r = C + 8*q0 + 4*kt + i; m = 80 + 2*((4*kt + i) & 3)
            l.append((f"v_cmp_gt_i32 s[{m}:{m+1}], {16*(2*(j&1)+kt) + i}, v{XM}", f"v_cndmask_b32 v{r}, v{r}, v{T2}, s[{m}:{m+1}]"))
    out = []
    for h in range(2): out += [x[0] for x in l[4*h:4*h+4]] + [x[1] for x in l[4*h:4*h+4]]
    return out

SITES = []
def body(a, name, par, qa, qb_, dma, nextmask=None, kreads=True):
    a(name + ":")
    qk = qk_list(qa); pv = pv_list(par, qb_)
    nq, n = len(qk), len(qk) + len(pv)
    G = Gaps(qk + pv)
    a("s_waitcnt vmcnt(24) lgkmcnt(0)")
    mem = [(f, [], vrd(f)) for f in range(8)]
    gap = 3 if qa == 0 else 1
    mem += [(8 + (11 if qa == 0 else 0) + gap*k, dma[k][0], dma[k][1]) for k in range(4)]
    if kreads: mem += [(nq + (1 + 3*f if qb_ == 0 else f), [], krd(f)) for f in range(8)]
    items = []
    for qt in range(qa, 4):
        for kt in range(2):
            tl = 2*qt + kt; s = S + 4*tl; e = EX + 4*kt; p = P[1-par] + 2*tl; rdy = 4*(tl - 2*qa) + 3 + 3
            items += [("e", rdy, f"v_exp_f32 v{e+i}, v{s+i}") for i in range(4)]
            items += [("c", 0, f"v_cvt_pk_bf16_f32 v{p}, v{e}, v{e+1}"), ("c", 0, f"v_cvt_pk_bf16_f32 v{p+1}, v{e+2}, v{e+3}"),
                      ("c", 0, f"v_or_b32 v{ORA}, v{p}, v{p+1}" if tl == 2*qa else f"v_or3_b32 v{ORA}, v{ORA}, v{p}, v{p+1}")]
    items += [("c", 0, f"v_and_b32 v{ORA}, s{sBIT}, v{ORA}"), ("c", 0, f"v_cmp_ne_u32 vcc, 0, v{ORA}")]
    if nextmask is not None: items += [("c", nq, x) for x in mask_ops(nextmask)]
    items += [("r", 0, f"v_add_u32 v{RA}, 0x4000, v{RA}"), ("r", 0, f"v_and_b32 v{RA}, 0x1ffff, v{RA}")]
    late = list(dma[4][0]) + [f"s_add_u32 s{sB}, s{sB}, 1"]
    vwait = nq + (4 - qb_) - 1
    k = mi = 0; nds_after_v = 0
    for g in range(n):
        last = g == n - 1
        sc, me, va = [], [], []
        if g == 0: sc.append("s_barrier")
        cap = 2
        while mi < len(mem) and (last or (mem[mi][0] <= g and len(me) == 0)):
            pre = mem[mi][1]
            if pre: me += pre + (["s_nop 0"] if len(pre) < 2 and "m0" in pre[0] else [])
            me.append(mem[mi][2])
            if mi >= 8 and mem[mi][2].startswith("ds_") and g <= vwait: nds_after_v += 1
            mi += 1; cap -= 1
        while k < len(items):
            ty, rdy, ins = items[k]
            cost = 2 if ty == "e" else 1
            if not last:
                if g < rdy or cost > cap: break
                if ty == "r" and mi < len(mem): break
                if ty != "e" and va and va[-1].startswith("v_exp"): break
            elif ty != "e" and va and va[-1].startswith("v_exp"): va.append("s_nop 0")
            va.append(ins); cap -= cost; k += 1
        if not sc and not (me and me[0].startswith("s_")):
            if late and mi >= 12: sc.append(late.pop(0))
            elif g < nq + 4: sc.append("s_nop 0")
        if last: va += late
        if g == vwait:
            assert mi >= 8
            va.append(f"s_waitcnt lgkmcnt({nds_after_v})")
        G.add(g, *(sc + me + va))
    G.emit(a)
    SITES.append((name, 1 - par, qa))
    a(f"s_cbranch_vccnz {name}_t\n{name}_r:")

def rescale(a, par, init):
    for qt in range(4):
        s = S + 8*qt
        if not init: a(f"L_a_slow{par}_{qt}:")
        a(f"""
        v_max3_f32 v{T0}, v{s}, v{s+1}, v{s+2}
        v_max3_f32 v{T1}, v{s+3}, v{s+4}, v{s+5}
        v_max3_f32 v{T0}, v{T0}, v{s+6}, v{s+7}
        v_max_f32 v{T0}, v{T0}, v{T1}
        """)
        for sw in ("v_permlane32_swap_b32", "v_permlane16_swap_b32"):
            a(f"v_mov_b32 v{T1}, v{T0}\ns_nop 1\n{sw} v{T1}, v{T0}\nv_max_f32 v{T0}, v{T0}, v{T1}")
        a(f"v_add_f32 v{T0}, {fbits(float(OPTS.get('toff', TOFF_DEFAULT)))}, v{T0}")
        if not init:
            a(f"v_max_f32 v{T0}, 0, v{T0}\nv_exp_f32 v{T1}, -v{T0}")
        for i in range(8): a(f"v_sub_f32 v{C+8*qt+i}, v{C+8*qt+i}, v{T0}")
        if not init:
            for i in range(32): a(f"v_mul_f32 v{O+32*qt+i}, v{O+32*qt+i}, v{T1}")
            for i in range(4):
                a(f"v_accvgpr_read_b32 v{EX}, a{AL+4*qt+i}\nv_mul_f32 v{EX}, v{EX}, v{T1}\nv_accvgpr_write_b32 a{AL+4*qt+i}, v{EX}")
        for i in range(8): a(f"v_sub_f32 v{EX+i}, v{s+i}, v{T0}")
        for i in range(8): a(f"v_exp_f32 v{EX+i}, v{EX+i}")
        for i in range(4): a(f"v_cvt_pk_bf16_f32 v{P[par]+4*qt+i}, v{EX+2*i}, v{EX+2*i+1}")
        if init: emit_dma(a, dma_kv())

def out_proj(a):
    CF, RB, SQ = S, EX, C
    wf = lambda ct, t: AK + 16*ct + 4*t
    def rd(u, j):
        t, x = j >> 1, j & 1
        return f"ds_read_b64_tr_b16 {ar(wf(u & 3, t) + 2*x, 2)}, v{RB + 4*(u >> 4) + (u & 3)} offset:{((u >> 2) & 3)*16384 + t*4096 + x*2048}"
    acc = lambda u, qt: O + 32*((u >> 1) & 1) + 8*qt + 4*(u & 1)
    def epi(c):
        l = []
        for qt in range(4):
            b = acc(2*c, qt); q = SQ + 4*qt + 16*(c & 1)
            l += [f"v_cvt_pk_bf16_f32 v{q+i}, v{b+2*i}, v{b+2*i+1}" for i in range(4)]
            l.append(f"buffer_store_dwordx4 {vr(q,4)}, v{A16}, {WSR}, s{sPQ+qt} offen offset:{(c & 3)*1024} sc1")
        return l
    for u in range(2):
        for j in range(8): a(rd(u, j))
    a("s_waitcnt lgkmcnt(8)")
    ms = []
    for u in range(32):
        for qt in range(4):
            d = vr(acc(u, qt), 4)
            for t in range(4): ms.append(mf(d, ar(wf(u & 3, t), 4), vr(CF + 16*qt + 4*t, 4), "0" if t == 0 else d))
    G = Gaps(ms)
    for u in range(32):
        g0 = 16*u
        if u == 25: G.add(g0 + 14, "s_waitcnt vmcnt(32)", "s_barrier")
        if u + 2 < 32:
            for j in range(8): G.add(g0 + 2*j, rd(u + 2, j))
        if u < 31: G.add(g0 + 15, f"s_waitcnt lgkmcnt({8 if u + 2 < 32 else 0})")
        if u >= 2 and not u & 1:
            c = u//2 - 1; g = g0 + 3
            if c and not c & 3:
                for qt in range(4): G.add(g0 + 1, f"s_add_u32 s{sPQ+qt}, s{sPQ+qt}, 0x1000")
            else: G.add(g0 + 1, "s_nop 1")
            e = epi(c)
            for qt in range(4):
                G.add(g, *e[5*qt:5*qt+2]); G.add(g + 2, *e[5*qt+2:5*qt+4]); G.add(g + 4, e[5*qt+4]); g += 6
    G.emit(a)
    a("s_nop 7"); a.emit(epi(15))

def gen_att(a, next_label):
    w = S_WAVE
    SITES.clear()
    a("L_att:")
    a(f"""
    v_lshlrev_b32 v{A16}, 4, v0
    s_lshl_b32 s{sM0}, s{w}, 11
    v_add_u32 v{W16}, s{sM0}, v{A16}
    s_mov_b32 s{sSPIN}, 0
    v_and_b32 v{T0}, 7, v0
    s_lshl3_add_u32 s{sT1}, s{sQB}, 8
    v_lshlrev_b32 v{T1}, 4, v{T0}
    v_sub_u32 v{T1}, s{sT1}, v{T1}
    v_med3_i32 v{T1}, v{T1}, 0, 16
    s_lshl_b32 s{sT0}, s{sH}, 7
    s_add_u32 s{sT0}, s{sT0}, {hex(WS_FLAG)}
    v_lshl_add_u32 v{T0}, v{T0}, 2, s{sT0}
    s_bfe_u32 s{sT0}, s{sQB}, 0x10001
    s_sub_u32 m0, 5, s{sT0}
    s_and_b32 s{sT0}, s{sQB}, 1
    s_lshl3_add_u32 s{sT0}, s{sT0}, 8
    s_cmp_lt_u32 s{sQB}, 4
    s_cselect_b32 s{sT1}, 16, 0
    s_add_u32 s{sT1}, s{sT1}, s{sT0}
    v_writelane_b32 v{T1}, s{sT1}, m0
    s_lshl_b32 s{sT0}, s{sQB}, 7
    s_add_u32 s{sT0}, s{sT0}, {hex(CNT_GATE)}
    v_writelane_b32 v{T0}, s{sT0}, 63
    v_writelane_b32 v{T1}, 16, 63
    buffer_load_dword v{T2}, v{T0}, {WSR}, 0 offen sc1
    """)
    for i in range(64): a(f"v_mov_b64 {vr(O+2*i,2)}, 0")
    for i in range(16): a(f"v_mov_b64 {vr(C+2*i,2)}, 0\nv_accvgpr_write_b32 a{AL+i}, 0")
    for i in range(4): a(f"v_mov_b32 v{ONES+i}, 0x3f803f80")
    set_srd(a, S_SRD1, S_WOA, 0x400000)
    a(f"""
    s_lshl_b32 s{sT0}, s{sH}, 19
    s_add_u32 s{sKO}, s{sT0}, {hex(WS_PROJ + (1 << 24))}
    s_add_u32 s{sVO}, s{sT0}, {hex(WS_PROJ + (2 << 24))}
    s_lshl_b32 s{sNA}, s{sQB}, 3
    s_lshr_b32 s{sT1}, s{w}, 1
    s_add_u32 s{sT1}, s{sT1}, s{sNA}
    s_lshl_b32 s{sQO}, s{sT1}, 13
    s_add_u32 s{sQO}, s{sQO}, s{sT0}
    s_and_b32 s{sT1}, s{w}, 1
    s_lshl_b32 s{sT1}, s{sT1}, 10
    s_add_u32 s{sQO}, s{sQO}, s{sT1}
    s_lshl4_add_u32 s{sPO}, s{sQB}, s{w}
    s_add_u32 s{sKMAX}, s{sNA}, 7
    s_lshl_b32 s{sKMAX}, s{sKMAX}, 13
    s_add_u32 s{sKMAX}, s{sKMAX}, s{sKO}
    s_sub_u32 s{sNA}, s{sNA}, 1
    s_add_u32 s{sKB}, s{sKO}, 0x4000
    s_mov_b32 s{sSLOT}, 0
    s_mov_b32 s{sBIT}, 0x40004000
    s_lshl_b32 s{sM1}, s{w}, 12
    s_lshl_b32 s{sWO}, s{sH}, 17
    s_lshl_b32 s{sT1}, s{w}, 15
    s_add_u32 s{sWO}, s{sWO}, s{sT1}
    v_lshrrev_b32 v{EX}, 4, v0
    v_and_b32 v{EX+1}, 15, v0
    s_lshl_b32 s{sT1}, s{w}, 4
    v_add_u32 v{XM}, s{sT1}, v{EX+1}
    v_lshlrev_b32 v{EX+2}, 2, v{EX}
    v_sub_u32 v{XM}, v{XM}, v{EX+2}
    v_lshlrev_b32 v{EX}, 1, v{EX}
    v_and_b32 v{EX+2}, 7, v0
    v_xor_b32 v{EX}, v{EX}, v{EX+2}
    v_lshlrev_b32 v{EX}, 4, v{EX}
    v_lshrrev_b32 v{EX+2}, 3, v0
    v_lshl_add_u32 v{WD}, v{EX+2}, 10, v{EX}
    v_lshlrev_b32 v{EX+1}, 2, v{EX+1}
    v_add_u32 v{RA}, {L_K01 - 8192}, v{A16}
    L_a_wait:
    s_waitcnt vmcnt(0)
    v_cmp_gt_u32 vcc, v{T1}, v{T2}
    s_cbranch_vccz L_a_go
    buffer_load_dword v{T2}, v{T0}, {WSR}, 0 offen sc1
    s_add_u32 s{sSPIN}, s{sSPIN}, 1
    s_cmp_gt_u32 s{sSPIN}, {SPIN_MAX}
    s_cbranch_scc1 L_exit
    s_branch L_a_wait
    L_a_go:
    """)
    stamp(a, 8)
    a(f"""
    s_add_u32 m0, s{sM0}, {L_K01}
    s_add_u32 s{sT0}, s{sKO}, 0x2000
    buffer_load_dwordx4 v{W16}, {WSR}, s{sKO} offen sc1 lds
    buffer_load_dwordx4 v{W16}, {WSR}, s{sKO} offen offset:1024 sc1 lds
    s_add_u32 m0, s{sM0}, {L_K01 + 8192}
    s_lshl_b32 s{sT1}, s{sPO}, 6
    buffer_load_dwordx4 v{W16}, {WSR}, s{sT0} offen sc1 lds
    buffer_load_dwordx4 v{W16}, {WSR}, s{sT0} offen offset:1024 sc1 lds
    s_add_u32 s{sT1}, s{sT1}, {hex(WS_GATE)}
    """)
    for qt in range(4):
        a(f"s_add_u32 s{sB}, s{sQO}, 0x1000")
        for t in range(4):
            a(f"buffer_load_dwordx4 {ar(AQ+16*qt+4*t,4)}, v{A16}, {WSR}, s{sQO if t < 2 else sB} offen offset:{(t&1)*2048} sc1")
        a(f"s_add_u32 s{sQO}, s{sQO}, 0x4000")
    for qt in range(4): a(f"buffer_load_dword v{GT+qt}, v{EX+1}, {WSR}, s{sT1} offen offset:{256*qt} sc1")
    for st in range(2): emit_dma(a, dma_kv())
    a(f"""
    s_mul_i32 s{sPO}, s{sPO}, {PART_T}
    s_lshl_b32 s{sT1}, s{sH}, 14
    s_add_u32 s{sPO}, s{sPO}, s{sT1}
    """)
    for qt in range(4): a(f"s_add_u32 s{sPQ+qt}, s{sPO}, {hex(WS_PART + 4*qt*PART_T)}")
    a(f"v_mov_b32 v{T2}, {NINF}\ns_cmp_lg_u32 s{sQB}, 0\ns_cbranch_scc1 L_a_nomask0")
    a.emit(mask_ops(0))
    a("L_a_nomask0:\ns_waitcnt vmcnt(28)\ns_barrier")
    for f in range(8): a(krd(f))
    a(f"v_add_u32 v{RA}, 0x2000, v{RA}")
    qk = qk_list(0)
    for qt in range(4):
        a(f"s_waitcnt vmcnt({24 - 4*qt}) lgkmcnt(0)")
        for m in qk[8*qt:8*qt+8]: a(m)
    for f in range(8): a(krd(f))
    a(f"v_mov_b32 v{RA}, v{A16}")
    emit_dma(a, dma_kv())
    rescale(a, 0, True)
    stamp(a, 9)
    a(f"s_mov_b32 s{sB}, 0\ns_cmp_lg_u32 s{sQB}, 0\ns_cbranch_scc1 L_a_s0")
    a.emit(mask_ops(1))
    a("s_branch L_a_d1")
    body(a, "L_a_s1", 1, 0, 0, dma_kv())
    body(a, "L_a_s0", 0, 0, 0, dma_kv())
    a(f"s_cmp_eq_u32 s{sB}, s{sNA}\ns_cbranch_scc0 L_a_s1")
    a.emit(mask_ops(0))
    a("s_nop 0")
    for j in range(8):
        body(a, f"L_a_d{j}", (j - 1) & 1, j >> 1, max(j - 1, 0) >> 1, dma_kv() if j < 2 else dma_w(j - 2),
             nextmask=j + 1 if j < 7 else None, kreads=j < 7)
    stamp(a, 10)
    a("s_waitcnt vmcnt(24)\ns_barrier")
    for f in range(8): a(vrd(f))
    emit_dma(a, dma_w(6))
    pv = pv_list(1, 3)
    a(pv[0])
    for f in range(8): a(f"s_waitcnt lgkmcnt({7-f})\n" + pv[1+f])
    a("s_barrier")
    emit_dma(a, dma_w(7))
    for qt in range(4):
        a(f"v_accvgpr_read_b32 v{T0}, a{AL+4*qt}\nv_rcp_f32 v{T0}, v{T0}\ns_nop 0\nv_mul_f32 v{GT+qt}, v{GT+qt}, v{T0}")
    for qt in range(4):
        for t in range(4):
            b = O + 32*qt + 8*t; q = S + 16*qt + 4*t
            for i in range(8): a(f"v_mul_f32 v{b+i}, v{b+i}, v{GT+qt}")
            for i in range(4): a(f"v_cvt_pk_bf16_f32 v{q+i}, v{b+2*i}, v{b+2*i+1}")
    RB = EX
    a(f"""
    v_lshrrev_b32 v{T0}, 2, v0
    v_lshlrev_b32 v{RB}, 7, v{T0}
    v_bfe_u32 v{T0}, v0, 3, 2
    v_lshl_add_u32 v{RB}, v{T0}, 5, v{RB}
    v_and_b32 v{T0}, 3, v0
    v_lshl_add_u32 v{RB}, v{T0}, 3, v{RB}
    """)
    for c in range(1, 4): a(f"v_xor_b32 v{RB+c}, {32*c}, v{RB}")
    for c in range(4): a(f"v_add_u32 v{RB+4+c}, 0x10000, v{RB+c}")
    a("s_waitcnt vmcnt(4)\ns_barrier")
    stamp(a, 12)
    out_proj(a)
    a(f"""
    s_lshl_b32 s{sT0}, s{sQB}, 7
    s_add_u32 s{sT0}, s{sT0}, {hex(CNT_CTX)}
    s_cmp_eq_u32 s{w}, 0
    s_cselect_b32 s{sT0}, s{sT0}, {hex(OOB)}
    v_mov_b32 v{T0}, 1
    s_waitcnt vmcnt(0)
    s_barrier
    s_mov_b64 exec, 1
    buffer_atomic_add v{T0}, v{A16}, {WSR}, s{sT0} offen
    s_mov_b64 exec, -1
    s_branch {next_label}
    """)
    for k, (name, par, q0) in enumerate(SITES):
        a(f"{name}_t:\ns_mov_b32 s{sRET}, {k}\ns_nop 6\ns_branch L_a_slow{par}_{q0}")
    for par in range(2):
        rescale(a, par, False)
        mine = [(k, n) for k, (n, p, _) in enumerate(SITES) if p == par]
        for k, n in mine[:-1]: a(f"s_cmp_eq_u32 s{sRET}, {k}\ns_cbranch_scc1 {n}_r")
        a(f"s_branch {mine[-1][1]}_r")
```

```python
from common import *

NINF = "0xff800000"
def mf(D, A, B, Cc): return f"v_mfma_f32_16x16x32_bf16 {D}, {A}, {B}, {Cc}"
def mf16(D, A, B): return f"v_mfma_f32_16x16x16_bf16 {D}, {A}, {B}, {D}"

A16, T0, T1, T2, T3, ZERO, XTW, XTR, GT, GTN, QA, CW, CR, FL = 2, 3, 4, 5, 6, 7, 8, 9, 10, 11, 12, 13, 14, 248
ONES, CM, GA, PMZ, PX, S, LL, KVM, KM, Q, K, V, OA, ACC, SQ = 16, 20, 31, 32, 36, 40, 52, 56, 72, 88, 104, 136, 168, 200, 232
sHP, sSPIN, sT0, sT1, sT2, sHD, sSEG, sNXT, sPRV, sRDY, sM0, sSRC, sTF, sKV0, sPB, sP0, sCB, sFF = range(56, 74)
L_CTX, L_XT = 98304, 131072

def spin(a): a(f"s_add_u32 s{sSPIN}, s{sSPIN}, 1\ns_cmp_gt_u32 s{sSPIN}, {SPIN_MAX}\ns_cbranch_scc1 L_exit")

def qkv_dma(a, seg):
    l = a.newlabel("b_nodma")
    a(f"""
    s_bitcmp1_b32 s{seg}, 2
    s_cbranch_scc1 {l}
    s_lshr_b32 s{sT1}, s{seg}, 4
    {l}_c:
    v_cmp_lt_u32 vcc, s{sT1}, v{FL+1}
    s_cbranch_vccnz {l}_go
    buffer_load_dword v{FL+1}, v{ZERO}, {WSR}, s{sFF} offen sc1\nbuffer_load_dword v{FL}, v{ZERO}, {WSR}, s{sTF} offen sc1
    """)
    spin(a)
    a(f"s_waitcnt vmcnt(0)\ns_branch {l}_c\n{l}_go:\ns_lshl_b32 s{sT0}, s{seg}, 9\ns_add_u32 s{sT0}, s{sT0}, s{sSRC}")
    for m in range(3):
        a(f"s_add_u32 m0, s{sM0}, {m*8192}\ns_add_u32 s{sT1}, s{sT0}, {hex(m << 24)}")
        for i in range(4): a(f"buffer_load_dwordx4 v{A16}, {WSR}, s{sT1} offen offset:{1024*i} sc1 lds")
    a(f"s_lshl_b32 s{sT0}, s{seg}, 3\nbuffer_load_dword v{GTN}, v{GA}, {WSR}, s{sT0} offen sc1\n{l}:")

def kvm_loads(seg):
    return [f"s_lshl_b32 s{sT0}, s{seg}, 13", f"s_add_u32 s{sT0}, s{sT0}, s{sKV0}"] + \
           [f"buffer_load_dwordx4 {vr(KVM+4*t,4)}, v{A16}, {WSR}, s{sT0} offen offset:{1024*t} sc1" for t in range(4)]

def signal(a):
    a(f"""
    s_lshl_b32 s{sT0}, s{sPRV}, 2
    s_add_u32 s{sT0}, s{sT0}, s{sCB}
    s_bitcmp1_b32 s{sPRV}, 2
    s_cselect_b32 s{sT0}, {hex(OOB)}, s{sT0}
    v_mov_b32 v{T0}, 1
    s_mov_b64 exec, 1
    buffer_atomic_add v{T0}, v{ZERO}, {WSR}, s{sT0} offen
    s_mov_b64 exec, -1
    """)

def gen_barr(a, next_label):
    w = S_WAVE
    a("L_barr:")
    set_srd(a, S_SRD1, S_WOB, 0x400000)
    D0, RB = Q, K
    a(f"""
    v_lshlrev_b32 v{A16}, 4, v0
    v_mov_b32 v{ZERO}, 0
    s_mov_b32 s{sSPIN}, 0
    v_lshrrev_b32 v{T0}, 4, v0
    v_and_b32 v{T1}, 15, v0
    v_lshlrev_b32 v{T2}, 1, v{T0}
    v_xor_b32 v{T2}, v{T2}, v{T1}
    v_lshlrev_b32 v{T2}, 4, v{T2}
    v_lshl_add_u32 v{D0}, v{T0}, 10, v{T2}
    v_xor_b32 v{D0+1}, 128, v{D0}
    s_lshl_b32 s{sM0}, s{w}, 15
    s_lshl_b32 s{sT2}, s{sHP}, 18
    s_lshl_b32 s{sT0}, s{w}, 8
    s_add_u32 s{sT2}, s{sT2}, s{sT0}
    """)
    def wdma(hh):
        for p in range(32):
            a(f"s_add_u32 m0, s{sM0}, {p*1024}\ns_add_u32 s{sT0}, s{sT2}, {hh*131072 + p*4096}\nbuffer_load_dwordx4 v{D0+(p&1)}, s[48:51], s{sT0} offen lds")
    def wread(hh):
        for t in range(4):
            a(f"s_waitcnt vmcnt({24 - 8*t})")
            for ct in range(8):
                for x in range(2):
                    a(f"ds_read_b64_tr_b16 {ar((ct*8 + hh*4 + t)*4 + 2*x, 2)}, v{RB+ct} offset:{t*8192 + x*4096}")
        a("s_waitcnt lgkmcnt(0)")
    wdma(0)
    a(f"""
    v_lshrrev_b32 v{T2}, 2, v0
    v_lshl_add_u32 v{RB}, v{T2}, 8, s{sM0}
    v_and_b32 v{T2}, 7, v{T2}
    v_lshl_add_u32 v{RB}, v{T2}, 5, v{RB}
    v_and_b32 v{T2}, 3, v0
    v_lshl_add_u32 v{RB}, v{T2}, 3, v{RB}
    """)
    for ct in range(1, 8): a(f"v_xor_b32 v{RB+ct}, {32*ct}, v{RB}")
    wread(0); wdma(1)
    a(f"""
    s_lshr_b32 s{sT0}, s{w}, 1
    s_lshl1_add_u32 s{sHD}, s{sHP}, s{sT0}         ; head of this wave
    s_and_b32 s{sT1}, s{w}, 1
    ; transpose addresses
    s_lshl_b32 s{sT2}, s{w}, 12
    s_add_u32 s{sT2}, s{sT2}, {L_XT}
    v_bfe_u32 v{T3}, v0, 3, 1
    v_lshl_add_u32 v{XTW}, v{T3}, 8, s{sT2}
    v_lshl_add_u32 v{XTW}, v{T0}, 6, v{XTW}
    v_and_b32 v{T3}, 7, v0
    v_lshl_add_u32 v{XTW}, v{T3}, 3, v{XTW}
    v_lshrrev_b32 v{T3}, 5, v0
    v_lshl_add_u32 v{XTR}, v{T3}, 8, s{sT2}
    v_and_b32 v{T3}, 3, v0
    v_lshl_add_u32 v{XTR}, v{T3}, 6, v{XTR}
    v_bfe_u32 v{T3}, v0, 2, 3
    v_lshl_add_u32 v{XTR}, v{T3}, 3, v{XTR}
    ; q/k/v read base, ctx write / read base, gate address
    s_mul_i32 s{sT2}, s{sT0}, 24576
    v_add_u32 v{QA}, s{sT2}, v{A16}
    s_lshl_b32 s{sM0}, s{sT1}, 12
    s_lshl_b32 s{sSRC}, s{sHD}, 19
    s_add_u32 s{sSRC}, s{sSRC}, s{sM0}
    s_add_u32 s{sSRC}, s{sSRC}, {hex(WS_PROJ + (3 << 24))}
    s_add_u32 s{sM0}, s{sM0}, s{sT2}
    s_lshl1_add_u32 s{sT2}, s{sT1}, s{sT0}
    s_lshl_b32 s{sT2}, s{sT2}, 12
    s_add_u32 s{sT2}, s{sT2}, {L_CTX}
    v_add_u32 v{CW}, s{sT2}, v{A16}
    v_add_u32 v{CR}, {L_CTX}, v{A16}
    s_lshl_b32 s{sT2}, s{sT1}, 4
    v_add_u32 v{T1}, s{sT2}, v{T1}
    v_lshlrev_b32 v{GA}, 2, v{T1}
    v_add_u32 v{GA}, {hex(WS_GATE)}, v{GA}
    v_lshlrev_b32 v{T0}, 2, v{T0}
    v_sub_u32 v{T1}, v{T1}, v{T0}
    v_mov_b32 v{T3}, {NINF}
    s_lshl_b32 s{sTF}, s{sHD}, 7
    s_add_u32 s{sFF}, s{sTF}, {hex(FLAG_F)}
    s_add_u32 s{sTF}, s{sTF}, {hex(FLAG_T)}
    s_lshl_b32 s{sKV0}, s{sHD}, 12
    s_add_u32 s{sKV0}, s{sKV0}, {hex(WS_KVM)}
    s_lshl2_add_u32 s{sPB}, s{sHP}, s{w}
    s_lshl_b32 s{sPB}, s{sPB}, 12
    s_add_u32 s{sPB}, s{sPB}, {hex(WS_PART + 32*16384)}
    s_cmp_eq_u32 s{w}, 0
    s_cselect_b32 s{sCB}, {hex(CNT_B)}, {hex(OOB)}
    """.replace(f"s_cselect_b32 s{sCB}, {hex(CNT_B)}, {hex(OOB)}", f"s_mov_b32 s{sCB}, {hex(OOB)}\ns_cmov_b32 s{sCB}, {hex(CNT_B)}"))
    for i in range(8):
        a(f"v_cmp_gt_i32 vcc, {16*(i>>2) + (i&3)}, v{T1}\nv_mov_b32 v{ONES+(i&3)}, 0x3f803f80\ns_nop 0\nv_cndmask_b32 v{CM+i}, 0, v{T3}, vcc")
    a(f"v_mov_b32 v{PMZ+1}, 0\nv_mov_b32 v{PMZ+2}, 0")
    wread(1)
    a(f"""
    s_lshl_b32 s{sT0}, s{sHD}, 7
    s_add_u32 s{sT0}, s{sT0}, {hex(WS_FLAG + 16)}
    v_lshl_add_u32 v{T0}, v0, 2, s{sT0}
    v_and_b32 v{T1}, 7, v0
    v_lshlrev_b32 v{T1}, 7, v{T1}
    v_add_u32 v{T1}, {hex(CNT_GATE)}, v{T1}
    v_cmp_gt_u32 vcc, 2, v0
    v_mov_b32 v{FL+1}, 0
    s_nop 0
    v_cndmask_b32 v{T0}, v{T1}, v{T0}, vcc
    v_cndmask_b32 v{T1}, 16, 32, vcc
    L_b_w0:
    buffer_load_dword v{T2}, v{T0}, {WSR}, 0 offen sc1
    """)
    spin(a)
    a(f"""
    s_waitcnt vmcnt(0)
    v_cmp_ne_u32 vcc, v{T1}, v{T2}
    s_cbranch_vccnz L_b_w0
    v_readlane_b32 s{sNXT}, v{V_TAB}, s{S_TASK}
    s_mov_b32 s{sSEG}, 4
    s_mov_b32 s{sRDY}, 0
    s_barrier
    """)
    stamp(a, 13)
    qkv_dma(a, sNXT)
    a(f"""
    L_b_round:
    s_mov_b32 s{sPRV}, s{sSEG}
    s_mov_b32 s{sSEG}, s{sNXT}
    s_add_u32 s{S_TASK}, s{S_TASK}, 1
    s_xor_b32 s{sT0}, s{sM0}, -1
    v_readlane_b32 s{sNXT}, v{V_TAB}, s{S_TASK}
    s_cmp_ge_u32 s{sM0}, 49152
    s_cselect_b32 s{sT2}, -49152, 49152
    s_add_u32 s{sM0}, s{sM0}, s{sT2}
    s_waitcnt vmcnt(0)
    s_barrier
    v_sub_f32 v{GT}, 1.0, v{GTN}
    s_and_b32 s{sT1}, s{w}, 1
    s_lshl_b32 s{sT1}, s{sT1}, 10
    v_add_u32 v{T1}, s{sT1}, v{QA}
    """.replace("s_cselect_b32 s%d, -49152, 49152" % sT2, f"s_mov_b32 s{sT2}, 49152\ns_cmov_b32 s{sT2}, -49152").replace(f"    s_xor_b32 s{sT0}, s{sM0}, -1\n", ""))
    for t in range(4):
        a(f"ds_read_b128 {vr(Q+4*t,4)}, v{T1} offset:{t*2048}")
        for kt in range(2): a(f"ds_read_b128 {vr(K+4*(2*t+kt),4)}, v{QA} offset:{8192 + (2*t+kt)*1024}")
    signal(a)
    a(f"s_cmp_eq_u32 s{sRDY}, 0\ns_cbranch_scc1 L_b_late\nL_b_have:")
    for t in range(4):
        a(f"ds_write2st64_b32 v{XTW}, v{KVM+4*t}, v{KVM+4*t+1} offset0:{2*t} offset1:{2*t+8}")
    a("s_waitcnt lgkmcnt(4)")
    D0_, D1_, DM = S, S + 4, S + 8
    for t in range(4):
        for kt in range(2):
            d = vr(S + 4*kt, 4)
            a(mf(d, vr(K+4*(2*t+kt),4), vr(Q+4*t,4), vr(CM+4*kt,4) if t == 0 else d))
            a(f"ds_read_b64_tr_b16 {vr(KM+4*t+2*kt,2)}, v{XTR} offset:{kt*2048 + t*512}")
    for f in range(6): a(f"ds_read_b128 {vr(V+4*f,4)}, v{QA} offset:{16384 + f*1024}")
    qkv_dma(a, sNXT)
    a("s_waitcnt lgkmcnt(6)")
    for t in range(4):
        a(mf(vr(DM,4), vr(KM+4*t,4), vr(Q+4*t,4), "0" if t == 0 else vr(DM,4)))
        if t < 2: a(f"ds_read_b128 {vr(V+4*(6+t),4)}, v{QA} offset:{16384 + (6+t)*1024}")
    vals = [S + i for i in range(10)]
    a(f"v_add_u32 v{QA}, s{sT2}, v{QA}")
    a(f"v_max_f32 v{T0}, v{S}, v{S+1}")
    for i in range(2, 8, 2): a(f"v_max3_f32 v{T0}, v{T0}, v{S+i}, v{S+i+1}")
    a(f"s_nop 2\nv_max3_f32 v{T0}, v{T0}, v{DM}, v{DM+1}")
    for sw in ("v_permlane32_swap_b32", "v_permlane16_swap_b32"):
        a(f"v_mov_b32 v{T1}, v{T0}\ns_nop 1\n{sw} v{T1}, v{T0}\nv_max_f32 v{T0}, v{T0}, v{T1}")
    for v in vals: a(f"v_sub_f32 v{v}, v{v}, v{T0}")
    for v in vals: a(f"v_exp_f32 v{v}, v{v}")
    for i in range(4): a(f"v_cvt_pk_bf16_f32 v{PX+i}, v{S+2*i}, v{S+2*i+1}")
    a(f"v_cvt_pk_bf16_f32 v{PMZ}, v{DM}, v{DM+1}\nv_cvt_pk_bf16_f32 v{PMZ+3}, v{DM}, v{DM+1}\ns_waitcnt lgkmcnt(0)")
    a(mf(vr(LL,4), vr(ONES,4), vr(PX,4), "0"))
    for f in range(8):
        a(mf(vr(OA+4*f,4), vr(V+4*f,4), vr(PX,4), "0"))
        if f == 5: a(mf16(vr(LL,4), vr(ONES,2), vr(PMZ,2)))
    post = []
    for t in range(4):
        b = OA + 8*t
        post.append([f"v_mul_f32 v{b+i}, v{b+i}, v{T0}" for i in range(8)] + [f"v_cvt_pk_bf16_f32 v{SQ+4*t+i}, v{b+2*i}, v{b+2*i+1}" for i in range(4)] +
                    [f"ds_write_b128 v{CW}, {vr(SQ+4*t,4)} offset:{t*1024}"])
    for f in range(8):
        a(mf16(vr(OA+4*f,4), vr(KVM+4*(f>>1)+2,2), vr(PMZ+2*(f&1),2)))
        if f == 5: a(f"v_rcp_f32 v{T0}, v{LL}")
        if f == 6: a(f"v_mul_f32 v{T0}, v{T0}, v{GT}")
    for p in post: a.emit(p)
    a(f"""
    buffer_load_dword v{FL+1}, v{ZERO}, {WSR}, s{sFF} offen sc1\nbuffer_load_dword v{FL}, v{ZERO}, {WSR}, s{sTF} offen sc1
    v_xor_b32 v{CW}, 0x4000, v{CW}
    s_mul_i32 s{sP0}, s{sSEG}, {PART_T // 8}
    s_add_u32 s{sP0}, s{sP0}, s{sPB}
    s_waitcnt lgkmcnt(0)
    s_barrier
    """)
    CF = K
    for tt in range(2):
        for k in range(8):
            if tt == 0: a(f"ds_read_b128 {vr(CF+4*k,4)}, v{CR} offset:{k*1024}")
    ms = []
    acc = lambda u: ACC + 4*(u & 7)
    for u in range(16):
        tt, ct = u >> 3, u & 7
        d = vr(acc(u), 4)
        for k in range(8): ms.append(mf(d, ar((ct*8 + k)*4, 4), vr(CF + 32*tt + 4*k, 4), "0" if k == 0 else d))
    def epi(c):
        b = acc(2*c); q = SQ + 4*(c & 3)
        return [f"v_cvt_pk_bf16_f32 v{q+i}, v{b+2*i}, v{b+2*i+1}" for i in range(4)] + \
               [f"buffer_store_dwordx4 {vr(q,4)}, v{A16}, {WSR}, s{sP0} offen offset:{(c & 3)*1024} sc1"]
    G = Gaps(ms)
    a("s_waitcnt lgkmcnt(7)")
    for k in range(7): G.add(k, f"s_waitcnt lgkmcnt({6-k})")
    for k in range(8): G.add(8 + k, f"ds_read_b128 {vr(CF+32+4*k,4)}, v{CR} offset:{8192 + k*1024}")
    G.add(40, "s_waitcnt lgkmcnt(0)", f"v_xor_b32 v{CR}, 0x4000, v{CR}")
    for c in range(7):
        e = epi(c); g = 16*(c+1) + 7
        if c == 4: G.add(g - 1, f"s_add_u32 s{sP0}, s{sP0}, {PART_T}")
        G.add(g, *e[:2]); G.add(g + 1, *e[2:4]); G.add(g + 2, e[4])
    G.add(60, "s_waitcnt vmcnt(3)", f"s_lshr_b32 s{sT1}, s{sNXT}, 4")
    G.add(61, f"v_cmp_lt_u32 vcc, s{sT1}, v{FL}")
    G.add(64, f"s_mov_b32 s{sRDY}, 0", "s_cbranch_vccz L_b_nofetch")
    G.g[64] += kvm_loads(sNXT) + [f"s_mov_b32 s{sRDY}, 1", "L_b_nofetch:"]
    G.emit(a)
    a("s_nop 7"); a.emit(epi(7))
    a(f"""
    s_bitcmp1_b32 s{sNXT}, 2
    s_cbranch_scc0 L_b_round
    s_mov_b32 s{sPRV}, s{sSEG}
    s_waitcnt vmcnt(0)
    s_barrier
    """)
    signal(a)
    stamp(a, 14)
    a(f"s_branch {next_label}")
    a(f"L_b_late:\ns_lshr_b32 s{sT1}, s{sSEG}, 4\nL_b_late2:\nbuffer_load_dword v{FL+1}, v{ZERO}, {WSR}, s{sFF} offen sc1\nbuffer_load_dword v{FL}, v{ZERO}, {WSR}, s{sTF} offen sc1")
    spin(a)
    a(f"s_waitcnt vmcnt(0)\nv_cmp_lt_u32 vcc, s{sT1}, v{FL}\ns_cbranch_vccz L_b_late2")
    a.emit(kvm_loads(sSEG))
    a("s_waitcnt vmcnt(0)\ns_branch L_b_have")

SEL, RD, RING, OA_ = 8, 16, 64, 24
sCUR, sSTG, sLO, sOO, sBC = 61, 62, 64, 65, 66
def gen_red(a, next_label):
    w = S_WAVE
    a("L_red:")
    set_srd(a, S_SRD1, S_OUT, 2048 * 512 * 2)
    a(f"""
    v_lshlrev_b32 v{A16}, 4, v0
    v_mov_b32 v{ZERO}, 0
    s_mov_b32 s{sSPIN}, 0
    v_and_b32 v{T0}, 4, v{V_TAB}
    v_cmp_ne_u32 vcc, 0, v{T0}
    v_bfe_u32 v{T0}, v{V_TAB}, 4, 6
    v_lshrrev_b32 v{T1}, 3, v{T0}
    s_lshr_b32 s{sT0}, vcc_lo, s{S_TASK}
    s_ff1_i32_b32 s{sT0}, s{sT0}
    s_bfm_b32 s{sT0}, s{sT0}, s{S_TASK}
    s_cmp_eq_u32 s{sSTG}, 0
    s_cselect_b32 s{sT1}, s{sT0}, 0
    v_lshlrev_b32 v{T1}, 7, v{T1}
    v_add_u32 v{T1}, {hex(CNT_CTX)}, v{T1}
    v_lshlrev_b32 v{T0}, 6, v{T0}
    v_add_u32 v{T0}, {hex(CNT_B)}, v{T0}
    v_cmp_gt_u32 vcc, 32, v0
    v_and_b32 v{T2}, 15, v0
    v_lshrrev_b32 v{T3}, 4, v0
    v_cndmask_b32 v{T0}, v{T0}, v{T1}, vcc
    v_cndmask_b32 v{T1}, 16, 32, vcc
    buffer_load_dword v{RD}, v{T0}, {WSR}, 0 offen sc1
    v_lshlrev_b32 v{OA_}, 10, v{T2}
    v_lshl_add_u32 v{OA_}, v{T3}, 4, v{OA_}
    """)
    a(f"""
    v_bfe_u32 v{RD+1}, v0, 2, 1
    v_lshlrev_b32 v{RD+1}, 1, v{RD+1}
    v_sub_u32 v{RD+1}, v{T3}, v{RD+1}
    v_bfe_u32 v{RD+2}, v0, 3, 1
    v_bfe_u32 v{RD+3}, v0, 1, 1
    v_lshl_add_u32 v{RD+2}, v{RD+2}, 1, v{RD+3}
    v_lshl_add_u32 v{RD+1}, v{RD+1}, 2, v{RD+2}
    v_and_b32 v{RD+2}, 1, v0
    v_lshlrev_b32 v{RD+2}, 4, v{RD+2}
    v_mov_b32 v{RD+3}, 0x3f80
    v_lshlrev_b32 v{RD+2}, v{RD+2}, v{RD+3}
    """)
    for i in range(8): a(f"v_cmp_eq_u32 vcc, {i}, v{RD+1}\ns_nop 1\nv_cndmask_b32 v{SEL+i}, 0, v{RD+2}, vcc")
    a(f"""
    v_readlane_b32 s{sNXT}, v{V_TAB}, s{S_TASK}
    L_r_wait:
    s_waitcnt vmcnt(0)
    v_cmp_gt_u32 vcc, v{T1}, v{RD}
    s_nop 0
    s_and_b64 vcc, vcc, s[{sT0}:{sT1}]
    s_cbranch_scc0 L_r_go
    buffer_load_dword v{RD}, v{T0}, {WSR}, 0 offen sc1
    """)
    spin(a)
    a("s_branch L_r_wait\nL_r_go:")
    stamp(a, 15)
    def decode():
        return [f"s_bfe_u32 s{sT0}, s{sNXT}, 0x60004", f"s_bfe_u32 s{sT1}, s{sNXT}, 0x1000e", f"s_lshl1_add_u32 s{sT0}, s{sT0}, s{sT1}",
                f"s_mul_i32 s{sLO}, s{sT0}, {PART_T}", f"s_bfe_u32 s{sT1}, s{sNXT}, 0x2000c", f"s_lshl2_add_u32 s{sT1}, s{sT1}, s{w}",
                f"s_lshl_b32 s{sT0}, s{sT0}, 14", f"s_lshl_b32 s{sP0}, s{sT1}, 6", f"s_add_u32 s{sP0}, s{sP0}, s{sT0}",
                f"s_lshl_b32 s{sT1}, s{sT1}, 10", f"s_add_u32 s{sLO}, s{sLO}, s{sT1}", f"s_add_u32 s{sLO}, s{sLO}, {hex(WS_PART)}",
                f"s_bitcmp1_b32 s{sNXT}, 2", f"s_cselect_b32 s{sLO}, {hex(OOB)}, s{sLO}"]
    ld = lambda p: [f"buffer_load_dwordx4 {vr(RING + 4*(p & 15), 4)}, v{A16}, {WSR}, s{sLO} offen sc1", f"s_add_u32 s{sLO}, s{sLO}, 0x4000"]
    a.emit(decode())
    for p in range(15): a.emit(ld(p))
    a(f"""
    L_r_loop:
    s_mov_b32 s{sCUR}, s{sNXT}
    s_mov_b32 s{sOO}, s{sP0}
    s_add_u32 s{S_TASK}, s{S_TASK}, 1
    s_nop 0
    v_readlane_b32 s{sNXT}, v{V_TAB}, s{S_TASK}
    """)
    for p in range(48):
        if p == 17: a(f"s_cmp_lg_u32 s{sSTG}, 0\ns_cbranch_scc1 L_r_stage\nL_r_stageback:")
        if p == 33: a.emit(decode())
        a.emit(ld(p + 15))
        a("s_waitcnt vmcnt(15)")
        for x in range(2):
            d = vr(RD + 4*x, 4)
            a(mf(d, vr(SEL + 4*x, 4), vr(RING + 4*(p & 15), 4), "0" if p == 0 else d))
    a("s_nop 6")
    for i in range(4): a(f"v_cvt_pk_bf16_f32 v{RD+16+i}, v{RD+2*i}, v{RD+2*i+1}")
    a(f"""
    buffer_store_dwordx4 {vr(RD+16,4)}, v{OA_}, s[48:51], s{sOO} offen
    s_bitcmp1_b32 s{sNXT}, 2
    s_cbranch_scc0 L_r_loop
    s_waitcnt vmcnt(1)
    """)
    stamp(a, 16)
    a(f"""
    s_branch {next_label}
    L_r_stage:
    s_bfe_u32 s{sBC}, s{sCUR}, 0x60004
    s_lshl_b32 s{sBC}, s{sBC}, 6
    s_add_u32 s{sBC}, s{sBC}, {hex(CNT_B)}
    L_r_st2:
    buffer_load_dword v{T0}, v{ZERO}, {WSR}, s{sBC} offen sc1
    """)
    spin(a)
    a(f"s_waitcnt vmcnt(0)\nv_cmp_gt_u32 vcc, 16, v{T0}\ns_cbranch_vccnz L_r_st2\ns_branch L_r_stageback")
```

```python
from common import *

A16, T0, T1, T2, ZERO, FV = 2, 3, 4, 5, 6, 7
XD, RA, WD, RB = 8, 16, 20, 24
XF, ACC, SQ = 64, 128, 192
sH, sJ, sT0, sT1, sM0, sXO, sOUT, sI, sFA, sDL, sSLOT, sN, sSPIN, sSC, sJX, sJO, sMAT, sST, sVT, sWO, sGA, sGO, sROT = range(56, 79)

def mf(D, A, B, Cc): return f"v_mfma_f32_16x16x32_bf16 {D}, {A}, {B}, {Cc}"
def acc(par, vtype, tt, ct):
    piece, sub = (ct, tt) if vtype else (2*(ct >> 1) + tt, ct & 1)
    return ACC + 32*par + 8*piece + 4*sub
def xrd(g, j):
    s, tt = 4*g + (j >> 1), j & 1
    return f"ds_read_b128 {vr(XF + 32*(g & 1) + 4*j, 4)}, v{RA + (s & 3)} offset:{tt*16384 + (s >> 2)*256}"
def xdma(i):
    return [f"s_add_u32 m0, s{sSLOT}, {i*1024}", f"s_add_u32 s{sT0}, s{sXO}, {i*1024}", f"buffer_load_dwordx4 v{XD+i}, s[52:55], s{sT0} offen lds"]
def xadv():
    return [f"s_add_u32 s{sXO}, s{sXO}, 0x8000", f"s_add_u32 s{sSLOT}, s{sSLOT}, 0x8000", f"s_and_b32 s{sSLOT}, s{sSLOT}, 0x1ffff"]
def epi(par, scale):
    l = []
    for p in range(4):
        b = ACC + 32*par + 8*p; q = SQ + 4*p
        l.append(([f"v_mul_f32 v{b+i}, s{sSC}, v{b+i}" for i in range(8)] if scale else []) + [f"v_cvt_pk_bf16_f32 v{q+i}, v{b+2*i}, v{b+2*i+1}" for i in range(4)] +
                 [f"buffer_store_dwordx4 {vr(q,4)}, v{A16}, {WSR}, s{sOUT} offen offset:{p*1024} sc1"])
    return l

def body(a, par, vtype):
    a(f"L_f_{vtype}{par}:")
    ms = []
    for g in range(4):
        for ct in range(4):
            for tt in range(2):
                d = vr(acc(par, vtype, tt, ct), 4)
                for k in range(4):
                    x = vr(XF + 32*(g & 1) + 8*k + 4*tt, 4); wv = ar((ct*16 + 4*g + k)*4, 4)
                    A, B = (x, wv) if vtype else (wv, x)
                    ms.append(mf(d, A, B, "0" if g == 0 and k == 0 else d))
    G = Gaps(ms)
    G.add(96, "s_waitcnt vmcnt(20)"); G.add(97, "s_barrier")
    for g in range(4):
        for j in range(8): G.add(32*g + 2 + 2*j, xrd((g + 1) & 3, j))
        G.add(32*g + 31, "s_waitcnt lgkmcnt(0)")
    g = 9
    for e in epi(1 - par, not vtype):
        k = 0
        while k < len(e):
            busy = any(x.startswith("ds_") for x in G.g[g])
            if e[k].startswith("buffer"):
                if not busy: G.add(g, e[k]); k += 1
            else:
                n = 1 if busy or e[k+1].startswith("buffer") else 2
                G.add(g, *e[k:k+n]); k += n
            g += 1
    assert g <= 50, g
    G.add(50, f"s_add_u32 s{sOUT}, s{sOUT}, s{sDL}", f"s_cmp_eq_u32 s{sI}, 15", f"s_cselect_b32 s{sDL}, s{sJO}, 0x2000")
    for i in range(8):
        d = xdma(i); g = 51 + 4*i
        G.add(g, *d[:2]); G.add(g + 2, d[2])
    G.add(83, f"s_cmp_eq_u32 s{sI}, 12", f"s_cselect_b32 s{sT1}, s{sJX}, 0", f"s_add_u32 s{sXO}, s{sXO}, s{sT1}")
    for k, x in enumerate(xadv()): G.add(85 + k, x)
    for j in range(4):
        G.add(84 + 2*j, f"v_add_u32 v{RA+j}, 0x8000, v{RA+j}"); G.add(85 + 2*j, f"v_and_b32 v{RA+j}, 0x1ffff, v{RA+j}")
    G.add(92, f"s_sub_u32 s{sT1}, s{sI}, 1", f"s_max_i32 s{sT1}, s{sT1}, 0"); G.add(93, f"v_mov_b32 v{FV}, s{sT1}")
    G.add(99, f"buffer_store_dword v{FV}, v{ZERO}, {WSR}, s{sFA} offen sc1")
    if par and not vtype:
        G.add(115, "s_mov_b64 exec, 1", f"buffer_atomic_add v33, v{ZERO}, {WSR}, s{sGA} offen", "s_mov_b64 exec, -1")
        G.add(116, f"s_mov_b32 s{sGA}, {hex(OOB)}")
    G.add(120, f"s_add_u32 s{sI}, s{sI}, 1"); G.add(126, f"s_cmp_lt_u32 s{sI}, s{sN}")
    G.emit(a)
    if par: a(f"s_cbranch_scc1 L_f_{vtype}0\ns_branch L_f_done")

def gen_feed(a, next_label):
    w = S_WAVE
    a("L_feed:")
    stamp(a, 4)
    a(f"""
    s_cmp_lt_u32 s{sJ}, 4
    s_cselect_b64 s[52:53], s[{S_C}:{S_C+1}], s[{S_X}:{S_X+1}]
    s_cselect_b64 s[48:49], s[{S_WUK}:{S_WUK+1}], s[{S_WQA}:{S_WQA+1}]
    s_cselect_b64 s[4:5], s[{S_WUV}:{S_WUV+1}], s[{S_WQB}:{S_WQB+1}]
    s_cselect_b32 s{sMAT}, 0x21, 0x30
    s_cselect_b32 s{sN}, 16, 32
    s_cselect_b32 s{sSC}, 1.0, {fbits(SM_SCALE)}
    s_cselect_b32 s{sJX}, 0, {hex(-48*0x8000 & 0xffffffff)}
    s_cselect_b32 s{sVT}, 2, 4
    s_cmp_eq_u32 s{sJ}, 6
    s_cselect_b64 s[48:49], s[{S_WKB}:{S_WKB+1}], s[48:49]
    s_cselect_b64 s[4:5], s[{S_WVB}:{S_WVB+1}], s[4:5]
    s_cselect_b32 s{sMAT}, 0x54, s{sMAT}
    s_cselect_b32 s{sN}, 64, s{sN}
    s_cselect_b32 s{sSC}, 1.0, s{sSC}
    s_cselect_b32 s{sJX}, 0, s{sJX}
    s_cselect_b32 s{sVT}, 2, s{sVT}
    s_lshl_b32 s{sT0}, s{sJ}, 2
    s_lshr_b32 s{sST}, 0x0233210, s{sT0}
    s_and_b32 s{sST}, s{sST}, 15
    s_ashr_i32 s{sJO}, s{sJX}, 2
    s_add_u32 s{sJO}, s{sJO}, 0x2000
    s_and_b32 s53, s53, 0xffff
    s_mov_b32 s54, 0x200000
    s_mov_b32 s55, 0x20000
    s_cmp_lt_u32 s{w}, 2
    s_cselect_b64 s[48:49], s[48:49], s[4:5]
    s_cselect_b32 s{sT0}, 0, 4
    s_lshr_b32 s{sMAT}, s{sMAT}, s{sT0}
    s_and_b32 s{sMAT}, s{sMAT}, 15
    s_and_b32 s49, s49, 0xffff
    s_mov_b32 s50, 0x400000
    s_mov_b32 s51, 0x20000
    v_lshlrev_b32 v{A16}, 4, v0
    v_mov_b32 v{ZERO}, 0
    v_lshrrev_b32 v{T0}, 3, v0
    v_lshlrev_b32 v{WD}, 13, v{T0}
    v_and_b32 v{T0}, 2, v{T0}
    v_and_b32 v{T1}, 7, v0
    v_xor_b32 v{T0}, v{T0}, v{T1}
    v_lshl_add_u32 v{WD}, v{T0}, 4, v{WD}
    v_xor_b32 v{WD+1}, 64, v{WD}
    s_lshl_b32 s{sM0}, s{w}, 14
    s_add_u32 s{sM0}, s{sM0}, 0x18000
    s_and_b32 s{sT1}, s{w}, 1
    s_lshl1_add_u32 s{sWO}, s{sH}, s{sT1}
    s_lshl_b32 s{sWO}, s{sWO}, 7
    s_lshl_b32 s{sT0}, s{sJ}, 2
    s_lshr_b32 s{sROT}, {OPTS.get('rot', 0)}, s{sT0}
    s_and_b32 s{sROT}, s{sROT}, 15
    s_lshl_b32 s{sT0}, s{sROT}, 20
    s_or_b32 s{sWO}, s{sWO}, s{sT0}
    """)
    def wdma(c):
        l = a.newlabel("f_w")
        a(f"s_cmp_lt_u32 s{sMAT}, {OPTS.get('ntm', 3)}\ns_cbranch_scc1 {l}")
        for nt in ("", "nt"):
            for p in range(4):
                a(f"s_add_u32 m0, s{sM0}, {(c & 3)*4096 + p*1024}\ns_xor_b32 s{sT0}, s{sWO}, {(32*c + 8*p)*8192}\nbuffer_load_dwordx4 v{WD+(p&1)}, s[48:51], s{sT0} offen {nt} lds")
            a(f"s_branch {l}e\n{l}:" if not nt else f"{l}e:")
    for c in range(4): wdma(c)
    GR = 32
    a(f"""
    s_mov_b32 s{sGA}, {hex(OOB)}
    v_and_b32 v{GR}, 15, v0
    v_mov_b32 v{GR+1}, 1
    s_lshl2_add_u32 s{sT0}, s{w}, s{sJ}
    s_cmp_ge_u32 s{sT0}, 4
    s_cbranch_scc1 L_f_nogate
    s_mov_b64 s[4:5], s[{S_X}:{S_X+1}]
    s_mov_b64 s[6:7], s[{S_GATEW}:{S_GATEW+1}]
    v_lshrrev_b32 v{T1}, 4, v0
    v_lshlrev_b32 v{T1}, 4, v{T1}
    v_lshl_add_u32 v{T2}, v{GR}, 10, v{T1}
    s_lshl2_add_u32 s{sGO}, s{sH}, s{sJ}
    s_lshl_b32 s{sT0}, s{sGO}, 14
    v_add_u32 v{T2}, s{sT0}, v{T2}
    """)
    for s in range(16):
        a(f"global_load_dwordx4 {vr(64+4*s,4)}, v{T2}, s[4:5] offset:{64*s}")
        a(f"global_load_dwordx4 {vr(128+4*s,4)}, v{T1}, s[6:7] offset:{64*s}")
    a(f"""
    v_lshlrev_b32 v{GR}, 2, v{GR}
    s_lshl_b32 s{sGO}, s{sGO}, 6
    s_add_u32 s{sGO}, s{sGO}, {hex(WS_GATE)}
    s_lshr_b32 s{sGA}, s{sH}, 2
    s_lshl_b32 s{sGA}, s{sGA}, 7
    s_add_u32 s{sGA}, s{sGA}, {hex(CNT_GATE)}
    L_f_nogate:
    """)
    a(f"""
    v_lshrrev_b32 v{T0}, 4, v0
    v_lshl_add_u32 v{RB}, v{T0}, 10, s{sM0}
    v_bfe_u32 v{T1}, v0, 2, 2
    v_lshl_add_u32 v{RB}, v{T1}, 7, v{RB}
    v_bfe_u32 v{T1}, v0, 3, 2
    v_lshl_add_u32 v{RB}, v{T1}, 5, v{RB}
    v_and_b32 v{T1}, 3, v0
    v_lshl_add_u32 v{RB}, v{T1}, 3, v{RB}
    v_and_b32 v{T1}, 15, v0
    v_xor_b32 v{T0}, v{T0}, v{T1}
    v_lshlrev_b32 v{T0}, 4, v{T0}
    v_lshl_add_u32 v{RA}, v{T1}, 10, v{T0}
    s_lshl1_add_u32 s{sT0}, s{sROT}, s{sT1}
    s_lshl_b32 s{sT0}, s{sT0}, 7
    v_xor_b32 v{XD}, s{sT0}, v{A16}
    s_lshl_b32 s{sOUT}, s{sMAT}, 24
    s_lshl_b32 s{sT0}, s{sH}, 19
    s_add_u32 s{sOUT}, s{sOUT}, s{sT0}
    s_lshl_b32 s{sT0}, s{sST}, 17
    s_add_u32 s{sOUT}, s{sOUT}, s{sT0}
    s_lshl_b32 s{sT0}, s{sT1}, 12
    s_add_u32 s{sOUT}, s{sOUT}, s{sT0}
    s_add_u32 s{sOUT}, s{sOUT}, {hex(WS_PROJ + OOB)}
    s_mov_b32 s{sDL}, {hex(-OOB & 0xffffffff)}
    s_lshl_b32 s{sT0}, s{sJ}, 2
    s_cmp_eq_u32 s{sJ}, 6
    s_cselect_b32 s{sT0}, {hex(FLAG_F - WS_FLAG)}, s{sT0}
    s_lshl_b32 s{sFA}, s{sH}, 7
    s_add_u32 s{sFA}, s{sFA}, s{sT0}
    s_add_u32 s{sFA}, s{sFA}, {hex(WS_FLAG)}
    s_cmp_eq_u32 s{w}, 0
    s_cselect_b32 s{sFA}, s{sFA}, {hex(OOB)}
    """)
    for c in range(1, 4): a(f"v_xor_b32 v{RB+c}, {c*32}, v{RB}\nv_xor_b32 v{RA+c}, {c << 6}, v{RA}")
    for i in range(1, 8): a(f"v_xor_b32 v{XD+i}, {i*16}, v{XD}")
    a(f"""
    s_lshl_b32 s{sSLOT}, s{w}, 13
    s_lshl_b32 s{sXO}, s{sST}, 19
    s_add_u32 s{sXO}, s{sXO}, s{sSLOT}
    s_mov_b32 s{sI}, 0
    s_mov_b32 s{sSPIN}, 0
    """)
    for c in range(16):
        if c == 0: stamp(a, 5)
        a(f"s_waitcnt vmcnt({12 if c < 13 else (17, 21, 25)[c - 13]})")
        if c in (0, 8, 15): stamp(a, {0: 6, 8: 7, 15: 17}[c])
        for ct in range(4):
            for x in range(2):
                a(f"ds_read_b64_tr_b16 {ar((ct*16 + c)*4 + 2*x, 2)}, v{RB+ct} offset:{(c & 3)*4096 + x*512}")
        if c + 4 < 16:
            a("s_waitcnt lgkmcnt(0)"); wdma(c + 4)
        elif c < 15:
            if c == 12:
                set_srd(a, S_SRD1, S_DBG, 256)
                a(f"buffer_load_dword v{T0}, v{ZERO}, s[48:51], 0 offen sc1")
            for i in range(8): a.emit(xdma(i))
            a.emit(xadv())
    a(f"s_cmp_eq_u32 s{sGA}, {hex(OOB)}\ns_cbranch_scc1 L_f_nogate2")
    for s in range(16): a(mf(vr(SQ,4), vr(128+4*s,4), vr(64+4*s,4), vr(SQ,4) if s else "0"))
    a(f"""
    s_nop 7
    v_mul_f32 v{SQ}, {fbits(-1.4426950408889634)}, v{SQ}
    v_exp_f32 v{SQ}, v{SQ}
    s_nop 0
    v_add_f32 v{SQ}, 1.0, v{SQ}
    v_rcp_f32 v{SQ}, v{SQ}
    s_nop 0
    buffer_store_dword v{SQ}, v{GR}, {WSR}, s{sGO} offen sc1
    L_f_nogate2:
    s_waitcnt vmcnt(16) lgkmcnt(0)
    L_f_init:
    v_cmp_gt_u32 vcc, 32, v{T0}
    s_cbranch_vccz L_f_go
    buffer_load_dword v{T0}, v{ZERO}, s[48:51], 0 offen sc1
    s_add_u32 s{sSPIN}, s{sSPIN}, 1
    s_cmp_gt_u32 s{sSPIN}, {SPIN_MAX}
    s_cbranch_scc1 L_exit
    s_waitcnt vmcnt(0)
    s_branch L_f_init
    L_f_go:
    s_barrier
    """)
    stamp(a, 1)
    for j in range(8): a(xrd(0, j))
    a(f"s_cmp_lt_u32 s{w}, s{sVT}\ns_waitcnt lgkmcnt(0)\ns_cbranch_scc0 L_f_10")
    body(a, 0, 0); body(a, 1, 0); body(a, 0, 1); body(a, 1, 1)
    a("L_f_done:\ns_nop 7")
    for e in epi(1, True): a.emit(e)
    a(f"""
    v_mov_b32 v{FV}, s{sN}
    s_waitcnt vmcnt(0) lgkmcnt(0)
    s_barrier
    buffer_store_dword v{FV}, v{ZERO}, {WSR}, s{sFA} offen sc1
    """)
    stamp(a, 3)
    a(f"s_branch {next_label}")
```

```python
from common import OPTS

END = 4
def ATT(h, qb): return [4 | 1 | (h << 4) | (qb << 12)]
def FEED(h, j): return [4 | 1 | 8 | (h << 4) | (j << 12)]
def BRUN(hp, segs): return [4 | 2 | (hp << 4)] + [s << 4 for s in segs]
def RRUN(ents, staged=0): return [4 | 2 | 8 | (staged << 4)] + [(s << 4) | (k << 12) for s, k in ents]

def tasks(cu):
    if OPTS.get("btest"):
        ar, k16, sl, k = cu >> 4, cu & 15, cu >> 3, cu & 7
        segs = list(range(sl, 64, 28))
        return BRUN(k16, list(range(ar, 64, 14))) + RRUN([(s, k) for s in segs[:-1]]) + RRUN([(segs[-1], k)], 1)
    h, j = cu // 7, cu % 7
    t = FEED(h, j)
    if OPTS.get("ponly"): return t
    for qb in ((7,), (6,), (5, 0), (4, 1), (3,), (2,), ())[j]: t += ATT(h, qb)
    hs, k = h >> 3, h & 7
    if j in (1, 4, 5):
        bi = {5: 0, 1: 2, 4: 4}[j] + (h >> 4)
        t += BRUN(h & 15, list(range(bi, 64, 6)))
    elif j == 6:
        t += RRUN([(s, k) for s in range(48 + hs, 64, 4)], 1)
    else:
        ri = 3 * hs + (j - 1 if j else 0)
        t += RRUN([(s, k) for s in (ri, ri + 12)]) + RRUN([(s, k) for s in (ri + 24, ri + 36)], 1)
    return t

def tables():
    rows = []
    for cu in range(224):
        row = tasks(cu)
        assert len(row) <= 31, len(row)
        rows.append(row + [END] * (32 - len(row)))
    return rows
```

```python
from common import *

LB = 131072
L_QT, L_KT, L_VX, L_X = 0, 4096, 8192, 16384
A16, IDX, W16, WVB, DUM, XTW, XTR, OXW, H1ST, H1LD, H2ST, WT = range(12)
ONES = 12
PM0, ZERO, PM1 = 16, 17, 18
M, AQ, AK, AV, QF, KW, ST, KV = 20, 52, 60, 68, 76, 92, 108, 124
WO = 128
sS, sKX, sVX, sWARM, sFLG, sKVM, sH1L, sH2L, sH2S, sTAG, sTF, sSPIN, sT0, sT1, sMK, sMV, sKB0 = range(56, 73)
sH1 = 74
sSENT = 78
sSEL = 80
sC = 88; sLO = 89; sFFFE = 90; sRANGE = 91; sNEED = 92; sTV = 93; sODD = 94; sWD = 73

class LG:
    def __init__(self): self.n = 0; self.t = {}; self.done = 0
    def op(self, tag, ins):
        self.n += 1; self.t[tag] = self.n; return ins
    def need(self, *tags):
        m = max(self.t[t] for t in tags)
        if m <= self.done: return []
        self.done = m
        return [f"s_waitcnt lgkmcnt({min(15, self.n - m)})"]

def nops(cyc):
    r = []; n = cyc // 4
    while n > 0:
        k = min(n, 16); r.append(f"s_nop {k-1}"); n -= k
    return r

def sm(acc, A, B): return f"v_smfmac_f32_16x16x64_bf16 {vr(acc,4)}, {vr(A,4)}, {B}, v{IDX}"
def d32(D, A, B, first): return f"v_mfma_f32_16x16x32_bf16 {vr(D,4)}, {vr(A,4)}, {vr(B,4)}, {'0' if first else vr(D,4)}"
def d16(D, A, B): return f"v_mfma_f32_16x16x16_bf16 {vr(D,4)}, {vr(A,2)}, {vr(B,2)}, {vr(D,4)}"

VORD = [(k >> 1, k & 1) for k in range(12)] + [(6, 0), (7, 0), (6, 1), (7, 1)]
VBUF = [QF, QF + 8, KW, KW + 8, ST, ST + 8, QF, QF + 8, ST, ST + 8, QF, QF + 8, ST, ST + 8, ST, ST + 8]
def wv_read(lg, k, u):
    j, tl = VORD[k]
    if OPTS.get("nowv") and k >= 6:
        lg.t[("wv", k, u)] = 0
        return "s_nop 0"
    return lg.op(("wv", k, u), f"ds_read_b128 {vr(VBUF[k] + 4*u, 4)}, v{WVB} offset:{(j&1)*16384 + tl*2048 + u*1024}")
def wv_next(cl):
    return f"v_xor_b32 v{WVB}, {hex(32768 * (1 if cl & 1 else 3))}, v{WVB}"
def wv_prefetch():
    lg = LG()
    return [wv_read(lg, k, u) for k in range(4) for u in range(2)] + [wv_next(1)] + [wv_read(lg, k, u) for k in (4, 5) for u in range(2)]
def warm_addr():
    return [f"v_bfe_u32 v{M+25}, v{W16}, 9, 1", f"v_and_b32 v{DUM}, 0x1ff, v{W16}", f"v_lshlrev_b32 v{DUM}, 2, v{DUM}",
            f"v_lshl_add_u32 v{DUM}, v{M+25}, 24, v{DUM}"]
def ms_addrs():
    return [f"v_xor_b32 v{M + 8*cl + 4}, {cl*2048}, v{WT}" for cl in range(1, 4)]

def spin_check(a):
    a(f"s_add_u32 s{sSPIN}, s{sSPIN}, 1\ns_cmp_gt_u32 s{sSPIN}, {SPIN_MAX}\ns_cbranch_scc1 L_exit")

def step_loop(a_, sfx, stf):
    lg = LG()
    drop = [f"s{r} offen" for k, r in (("nokvm", sKVM), ("nowarm", sWARM), ("noflg", sFLG), ("notf", sTF), ("nodma", sKX), ("nodma", sVX)) if OPTS.get(k)]
    if OPTS.get("nohop"): drop += [f"s{sH1L} offen", f"s{sH2L} offen", f"s{sH2S} offen", "L_retry2", "vccnz L_poll1", "L_smslow", "L_fs"]
    if OPTS.get("nost"): drop += [f"s{sH1+n} offen" for n in range(4)]
    kill = []
    if OPTS.get("nobar"): kill += ["s_barrier"]
    if OPTS.get("nods"): kill += ["ds_read", "ds_write", "lgkmcnt"]
    if OPTS.get("nodsw"): kill += ["lgkmcnt"]
    if OPTS.get("novm"): kill += ["buffer_"]
    if OPTS.get("novalu"): kill += ["v_add", "v_mul", "v_cvt", "v_exp", "v_max", "v_mov", "v_xor", "v_cnd", "v_cmp", "v_rcp", "v_sub", "v_and", "v_lsh", "v_or", "v_bit", "v_min", "v_perm"]
    if OPTS.get("nonop"): kill += ["s_nop"]
    a0 = a_
    def a(x):
        for l in x.split("\n"):
            if not any(k in l for k in kill): a0(l)
    E = lambda *l: [a(x if not any(d in x for d in drop) else "s_nop 0") for y in l for x in (y if isinstance(y, list) else [y])]
    Q = lambda j, tl: sm(AQ + 4*tl, M + 4*j, ar((tl*8 + j)*8, 8))
    K = lambda j, tl: sm(AK + 4*tl, M + 4*j, ar(128 + (tl*8 + j)*8, 8))
    Vv = lambda k: sm(AV + 4*VORD[k][1], M + 4*VORD[k][0], vr(VBUF[k], 8))
    kxreg = lambda t, tt: (M if tt else KW) + 4*t
    kxr = lambda t, tt: lg.op(("kx", t, tt), f"ds_read_b128 {vr(kxreg(t,tt),4)}, v{A16} offset:{(2*t+tt)*1024}")
    qr = lambda t, x: lg.op(("q", t, x), f"ds_read_b64_tr_b16 {vr(QF + 4*t + 2*x, 2)}, v{XTR} offset:{L_QT + x*2048 + t*512}")
    kr = lambda t, x: lg.op(("k", t, x), f"ds_read_b64_tr_b16 {vr(KW + 4*t + 2*x, 2)}, v{XTR} offset:{L_KT + x*2048 + t*512}")
    mr = lambda j: lg.op(("m", j), f"ds_read_b128 {vr(M+4*j,4)}, v{M + 8*(j>>1) + 4} offset:{(j&1)*1024}")
    wr = lambda k, u: wv_read(lg, k, u)
    nv = lambda k: lg.need(("wv", k, 0), ("wv", k, 1))
    add = lambda d, x, y: f"v_add_f32 v{d}, v{x}, v{y}"
    mulc = lambda d: f"v_mul_f32 v{d}, s{sC}, v{d}"
    cvt = lambda d, x, y: f"v_cvt_pk_bf16_f32 v{d}, v{x}, v{y}"
    ex = lambda d, s_: f"v_exp_f32 v{d}, v{s_}"
    N0, N1 = "s_nop 0", "s_nop 1"
    prof = OPTS.get("tprof") and sfx == "_f"
    PSET = {1: [0,1,2,3,4,5,6,7,8], 2: [0,1,6,7,"a","b","c","d",8], 3: [0,5,"e","f","g",6,"h",7,8], 4: [0,2,"i","j",3,"k",4,"l",8]}.get(OPTS.get("tprof"), [])
    def P(k):
        if prof and k in PSET: k = PSET.index(k); a(f"s_memtime s[{8+2*k}:{9+2*k}]")
    def warm(cyc):
        if not OPTS.get("warm"): return nops(cyc)
        r = []
        for i in range(cyc // 16): r += [f"v_mov_b32 v{M+26}, 0", "s_nop 2"]
        return r + nops(cyc % 16)
    g2 = OPTS.get("g2", 100)
    B0_, B1_ = M + 8, M + 16
    def ld2(x, y): E(f"buffer_load_dwordx4 {vr(x,4)}, v{WT}, {WSR}, s{sH2L} offen sc1", f"buffer_load_dwordx4 {vr(y,4)}, v{WT}, {WSR}, s{sH2L} offen offset:1024 sc1")
    a(f"L_poll2{sfx}:")
    ld2(M, M + 4)
    spin_check(a)
    n2 = 2 if g2 else 0
    if g2:
        E(warm(g2 - 20))
        ld2(B0_, B1_)
    E(warm(OPTS.get("w2", 0)))
    a(f"L_entry{sfx}:")
    C0 = M + 24
    E(f"s_waitcnt vmcnt({n2+1})", f"ds_write_b128 v{WT}, {vr(M,4)}")
    P(0)
    E(Q(0,0), f"s_waitcnt vmcnt({n2})", f"ds_write_b128 v{WT}, {vr(M+4,4)} offset:1024", f"v_max3_u32 v{C0}, v{M}, v{M+1}, v{M+2}")
    E(Q(0,1), f"v_max3_u32 v{C0+1}, v{M+3}, v{M+4}, v{M+5}", f"v_max3_u32 v{C0}, v{C0}, v{M+6}, v{M+7}")
    E(Q(1,0), f"v_max_u32 v{C0}, v{C0}, v{C0+1}", f"v_cmp_eq_u32 vcc, -1, v{C0}")
    dmaV = lambda x: f"buffer_load_dwordx4 v{W16}, {WSR}, s{sVX} offen offset:{1024*x} sc1 lds"
    dmaK = lambda x: f"buffer_load_dwordx4 v{W16}, {WSR}, s{sKX} offen offset:{1024*x} sc1 lds"
    E(Q(1,1), f"s_mov_b32 m0, s{sMV}", K(0,0), f"s_cbranch_vccnz L_retry2{sfx}", "s_waitcnt vmcnt(0)" if g2 else N0)
    E(K(0,1), dmaV(0), dmaV(1), K(1,0), "s_waitcnt lgkmcnt(0)", "s_barrier")
    P(1)
    E(mr(2), K(1,1), mr(3), mr(4), Vv(0), mr(5), mr(6), Vv(1), mr(7))
    E(Vv(2), f"buffer_load_dword v{DUM}, v{DUM}, {WSR}, s{sWARM} offen sc1", f"v_mov_b32 v{PM0}, s{sTV}")
    E(Vv(3), lg.need(("m",2)), wr(6,0), Q(2,0), lg.need(("m",3)), wr(6,1), Q(3,0), lg.need(("m",4)), wr(7,0))
    E(Q(4,0), lg.need(("m",5)), wr(7,1), wv_next(2), Q(5,0), lg.need(("m",7)), kxr(0,0), f"buffer_load_dword v{DUM}, v{ZERO}, {WSR}, s{sFLG} offen sc1")
    E(Q(6,0), kxr(1,0), Q(7,0), kxr(2,0), f"buffer_store_dword v{PM0}, v{ZERO}, {WSR}, s{sTF} offen sc1")
    E(Vv(4), f"s_mov_b32 m0, s{sMK}", kxr(3,0), Q(2,1), N0, wr(8,0), add(AQ,AQ,AQ+1))
    E(Q(3,1), wr(8,1), add(AQ+2,AQ+2,AQ+3), Vv(5), kxr(0,1), mulc(AQ), Q(4,1), wr(9,0), mulc(AQ+2))
    E(Q(5,1), wr(9,1), cvt(AQ,AQ,AQ), Q(6,1), kxr(1,1), cvt(AQ+1,AQ+2,AQ+2), Q(7,1), nv(7), N0)
    P(2)
    E(Vv(6), N0, f"buffer_store_dwordx4 {vr(KV,4)}, v{W16}, {WSR}, s{sKVM} offen sc1", Vv(7), N0, wr(10,0), add(AQ+4,AQ+4,AQ+5))
    E(K(2,0), wr(10,1), add(AQ+6,AQ+6,AQ+7), K(3,0), nv(9), wr(11,0), mulc(AQ+4))
    E(Vv(8), wr(11,1), mulc(AQ+6), K(4,0), wv_next(3), cvt(AQ+4,AQ+4,AQ+4), Vv(9), wr(12,0), cvt(AQ+5,AQ+6,AQ+6))
    E(K(5,0), nv(10), lg.op("qw", f"ds_write2st64_b64 v{XTW}, {vr(AQ,2)}, {vr(AQ+4,2)} offset0:{L_QT//512} offset1:{L_QT//512+4}"))
    P("i")
    E(Vv(10), wr(12,1), K(6,0), nv(11), wr(13,0), Vv(11), wr(13,1), K(7,0), K(2,1), lg.need("qw"), "s_barrier")
    P("j")
    E(K(3,1), nv(12), qr(0,0), qr(0,1), Vv(12), qr(1,0), qr(1,1), K(4,1), nv(13), qr(2,0), qr(2,1))
    E(Vv(13), qr(3,0), qr(3,1), K(5,1), kxr(2,1), add(AK,AK,AK+1))
    E(K(6,1), kxr(3,1), add(AK+2,AK+2,AK+3), K(7,1), lg.need(("q",0,1)), wr(14,0), cvt(KV,AK,AK+2))
    P(3)
    SX = lambda t, tt: d32(AQ + 4*tt, kxreg(t,tt), QF + 4*t, t == 0)
    EX, PX, VX = M, M + 4, M + 16
    DM, LL = AK, AK + 4
    E(SX(0,0), lg.need(("q",3,1)), wr(14,1), dmaK(0), SX(1,0), add(AK+4,AK+4,AK+5), add(AK+6,AK+6,AK+7))
    E(SX(2,0), wr(15,0), cvt(KV+1,AK+4,AK+6))
    E(SX(3,0), lg.op("kw", f"ds_write2st64_b32 v{XTW}, v{KV}, v{KV+1} offset0:{L_KT//256} offset1:{L_KT//256+8}"), add(AV,AV,AV+1))
    E(SX(0,1), lg.need(("kx",3,1)), wr(15,1), add(AV+2,AV+2,AV+3), SX(1,1), N0, ex(EX,AQ), SX(2,1), "s_waitcnt vmcnt(5)", ex(EX+1,AQ+1))
    E(SX(3,1), lg.need("kw"), "s_barrier")
    P("k")
    E(kr(0,0), kr(0,1), kr(1,0), kr(1,1), Vv(14), nv(15), kr(2,0), kr(2,1), Vv(15), kr(3,0), kr(3,1))
    E(ex(EX+2,AQ+2), ex(EX+3,AQ+3), cvt(PX,EX,EX+1), ex(EX,AQ+4))
    P(4)
    SM = lambda t: d32(DM, KW + 4*t, QF + 4*t, t == 0)
    OA, OP = QF + 4, QF + 12
    vxr = lambda x: lg.op(("vx",x), f"ds_read_b128 {vr(VX+4*x,4)}, v{W16} offset:{L_VX+1024*x}")
    E(lg.need(("k",1,1)), SM(0), vxr(0), vxr(1), SM(1), lg.need(("k",3,1)), cvt(PX+1,EX+2,EX+3), ex(EX+1,AQ+5))
    E(SM(2), ex(EX+2,AQ+6), SM(3), f"s_cmp_eq_u32 s{sS}, 63", ex(EX+3,AQ+7), cvt(PX+2,EX,EX+1), cvt(PX+3,EX+2,EX+3))
    P("l")
    E(add(AV+4,AV+4,AV+5), add(AV+6,AV+6,AV+7))
    E(d32(LL, ONES, PX, True), lg.need(("vx",1)), ex(EX,DM))
    E(d32(OA, VX, PX, True), ex(EX+1,DM+1))
    E(d32(OA+4, VX+4, PX, True), cvt(PM0,EX,EX+1), cvt(KV+2,AV,AV+2), cvt(KV+3,AV+4,AV+6))
    E(d16(LL, ONES, PM0), "s_cbranch_scc1 L_team_last", cvt(PM1+1,EX,EX+1), wv_next(0))
    P(5)
    RI = LL + 1
    WA = M + 16
    zw = [f"v_mov_b64 {vr(WA+2*i,2)}, 0" for i in range(8)]
    E(d16(OA, KV+2, PM0), dmaK(1), zw[4], zw[5])
    E(d16(OA+4, KV+2, PM1), f"v_rcp_f32 v{RI}, v{LL}", f"v_subrev_u32 v{LL+2}, s{sLO}, v{LL}", f"v_cmp_le_u32 vcc, s{sRANGE}, v{LL+2}", zw[6])
    a(f"L_smback{sfx}:")
    for i in range(4): a(f"v_mul_f32 v{OA+i}, v{OA+i}, v{RI}")
    E(cvt(OP, OA, OA+1), cvt(OP+1, OA+2, OA+3))
    for i in range(4, 8): a(f"v_mul_f32 v{OA+i}, v{OA+i}, v{RI}")
    E(cvt(OP+2, OA+4, OA+5), cvt(OP+3, OA+6, OA+7), f"s_cbranch_vccnz L_smslow{sfx}")
    OF = [OP, KW + 4, KW + 8, KW + 12]
    WOm = lambda n, il: sm(WA + 4*n, OF[il], vr(WO + (n*4 + il)*8, 8))
    SEL, RD, HD = M, M + 4, M + 8
    sel = [f"v_lshrrev_b32 v{RD}, 16, v{ONES}", f"v_cndmask_b32 v{RD}, v{RD}, 1.0, s[{sODD}:{sODD+1}]"] + [f"v_cndmask_b32 v{SEL+i}, 0, v{RD}, s[{sSEL+2*i}:{sSEL+2*i+1}]" for i in range(4)]
    P("e")
    E(lg.op("ow", f"ds_write_b128 v{OXW}, {vr(OP,4)}"), zw[7], zw[:4])
    for il in range(1, 4): a(f"v_xor_b32 v{OF[il]}, {il*512}, v{OXW}")
    E(sel[:2])
    P("f")
    E(lg.need("ow"), "s_barrier")
    P("g")
    for il in range(1, 4): a(lg.op(("o", il), f"ds_read_b128 {vr(OF[il],4)}, v{OF[il]}"))
    E(WOm(0,0), sel[2], WOm(1,0), sel[3], WOm(2,0), sel[4], WOm(3,0), sel[5], lg.need(("o",1)))
    P(6)
    def post(n):
        b = WA + 4*n
        return [cvt(b, b, b+1), cvt(b+1, b+2, b+3), f"v_and_or_b32 v{b}, v{b}, -2, s{sTAG}",
                f"buffer_store_dwordx2 {vr(b,2)}, v{H1ST}, {WSR}, s{sH1+n} offen {stf}"]
    z = [f"v_mov_b64 {vr(AQ+2*i,2)}, 0" for i in range(12)]
    p0, p1, p2, p3 = post(0), post(1), post(2), post(3)
    E(WOm(0,1), lg.need(("o",2)), z[0], WOm(0,2), lg.need(("o",3)), z[1], WOm(0,3), N1, z[2])
    E(WOm(1,1), N1, z[3], WOm(1,2), p0[0], WOm(1,3), N1, p0[1])
    E(WOm(2,1), N1, p0[2], WOm(2,2), p0[3], p1[0], WOm(2,3), N1, p1[1])
    E(WOm(3,1), N1, p1[2], WOm(3,2), p1[3], p2[0], WOm(3,3))
    P("h")
    E(N1, p2[1], p2[2], p2[3], "s_nop 2", p3)
    P(7)
    d1, d1s, d2 = OPTS.get("d1", 250), OPTS.get("d1s", 48), OPTS.get("d2", 200)
    prev = 0
    for w in range(4):
        want = max(0, d1 - (3 - w) * d1s)
        if w > 0 and want > prev: a(f"s_cmp_lt_u32 s{S_WAVE}, {w}\ns_cbranch_scc1 L_poll1{sfx}"); prev += 8
        E(warm(max(0, want - prev))); prev = max(prev, want)
    g1, g2 = OPTS.get("g1", 120), OPTS.get("g2", 100)
    T1 = M + 24
    def ld1(b): E(f"buffer_load_dwordx4 {vr(b,4)}, v{H1LD}, {WSR}, s{sH1L} offen sc1", f"buffer_load_dwordx4 {vr(b+4,4)}, v{H1LD}, {WSR}, s{sH1L} offen offset:1024 sc1")
    def try1(b, n):
        E(f"s_waitcnt vmcnt({n+1})")
        if b == HD: P("b")
        E(d32(RD, b, SEL, True), f"v_bitop3_b32 v{T1}, v{b}, v{b+2}, s{sTAG} bitop3:0x7e", f"s_waitcnt vmcnt({n})")
        if b == HD: P("c")
        E(d32(RD, b+4, SEL, False), f"v_bitop3_b32 v{T1+1}, v{b+4}, v{b+6}, s{sTAG} bitop3:0x7e",
          f"v_or_b32 v{T1}, v{T1}, v{T1+1}", f"v_and_b32 v{T1}, 1, v{T1}", f"v_cmp_ne_u32 vcc, 0, v{T1}", "s_nop 2")
    a(f"L_poll1{sfx}:")
    P("a")
    ld1(HD)
    if not g1:
        spin_check(a)
        E(z[4:], warm(OPTS.get("w1", 0)))
        try1(HD, 0)
        E(f"s_cbranch_vccnz L_poll1{sfx}")
    else:
        E(z[4:], warm(g1 - 40))
        ld1(HD + 8)
        E(warm(OPTS.get("w1", 0)))
        a(f"L_poll1b{sfx}:")
        try1(HD, 2)
        E(f"s_cbranch_vccnz L_retry1{sfx}")
        a(f"L_got1{sfx}:")
    P("d")
    E(add(RD,RD,RD+1), add(RD+2,RD+2,RD+3), N1, f"v_permlane16_swap_b32 v{RD}, v{RD+2}", add(RD,RD,RD+2), cvt(RD, RD, ZERO),
      f"v_min_u32 v{RD}, s{sFFFE}, v{RD}", f"v_cndmask_b32 v{RD}, v{RD}, -1, s[{sSENT}:{sSENT+1}]")
    E(f"buffer_store_short v{RD}, v{H2ST}, {WSR}, s{sH2S} offen {stf}")
    P(8)
    E(wv_prefetch())
    E(f"v_cmp_gt_u32 vcc, s{sNEED}, v{DUM}", f"v_xor_b32 v{H2ST}, 0x2000, v{H2ST}", f"v_xor_b32 v{WT}, 0x2000, v{WT}", f"v_xor_b32 v{A16}, 0x2000, v{A16}",
      "s_waitcnt vmcnt(1)", ms_addrs(), f"s_cbranch_vccnz L_fs{sfx}")
    a(f"L_fsback{sfx}:")
    E(warm_addr())
    if OPTS.get("tsteps") and sfx == "_f":
        a(f"""s_memrealtime s[8:9]
        s_lshl_b32 s10, s{sS}, 2
        s_add_u32 s10, s10, s{sTF}
        s_add_u32 s10, s10, {hex(WS_STAMP + 0x20000 - FLAG_T)}
        s_lshl_b32 s11, s{S_RANK}, 7
        s_add_u32 s10, s10, s11
        s_waitcnt lgkmcnt(0)
        v_mov_b32 v{M+26}, s8
        buffer_store_dword v{M+26}, v{ZERO}, {WSR}, s10 offen""")
    advance(a)
    if prof:
        a("s_waitcnt lgkmcnt(0)\ns_sub_u32 s4, s8, s26\ns_add_u32 s36, s36, s4\ns_mov_b32 s26, s24")
        for k in range(8): a(f"s_sub_u32 s4, s{10+2*k}, s{8+2*k}\ns_add_u32 s{28+k}, s{28+k}, s4")
    E(warm(max(0, d2 - 160)), f"s_branch L_poll2{sfx}")
    a(f"L_retry2{sfx}:")
    if not g2:
        E("s_nop 7", z[:6], f"s_branch L_poll2{sfx}")
    else:
        E("s_waitcnt vmcnt(0)", f"v_max3_u32 v{C0}, v{B0_}, v{B0_+1}, v{B0_+2}", f"v_max3_u32 v{C0+1}, v{B0_+3}, v{B1_}, v{B1_+1}",
          f"v_max3_u32 v{C0}, v{C0}, v{B1_+2}, v{B1_+3}", f"v_max_u32 v{C0}, v{C0}, v{C0+1}", f"v_cmp_eq_u32 vcc, -1, v{C0}",
          [f"v_mov_b64 {vr(M+2*i,2)}, {vr((B0_ if i < 2 else B1_ - 4)+2*i,2)}" for i in range(4)], z[:6])
        if prof: a("s_add_u32 s37, s37, 1")
        E(f"s_cbranch_vccnz L_poll2{sfx}", f"s_branch L_entry{sfx}")
    if g1:
        a(f"L_retry1{sfx}:")
        ld1(HD)
        spin_check(a)
        try1(HD + 8, 2)
        E(f"s_cbranch_vccz L_got1{sfx}")
        ld1(HD + 8)
        E(f"s_branch L_poll1b{sfx}")
    a(f"L_smslow{sfx}:")
    E(f"v_max3_f32 v{EX+2}, v{AQ}, v{AQ+1}, v{AQ+2}", f"v_max3_f32 v{EX+2}, v{EX+2}, v{AQ+3}, v{AQ+4}",
      f"v_max3_f32 v{EX+2}, v{EX+2}, v{AQ+5}, v{AQ+6}", f"v_max3_f32 v{EX+2}, v{EX+2}, v{AQ+7}, v{DM}", f"v_max_f32 v{EX+2}, v{EX+2}, v{DM+1}")
    for sw in ("v_permlane32_swap_b32", "v_permlane16_swap_b32"):
        E(f"v_mov_b32 v{EX}, v{EX+2}", N1, f"{sw} v{EX}, v{EX+2}", f"v_max_f32 v{EX+2}, v{EX+2}, v{EX}")
    for i in range(5):
        s0 = AQ + 2*i if i < 4 else DM
        E(f"v_sub_f32 v{EX}, v{s0}, v{EX+2}", f"v_sub_f32 v{EX+1}, v{s0+1}, v{EX+2}", ex(EX, EX), ex(EX+1, EX+1), N0)
        if i < 4: E(cvt(PX+i, EX, EX+1))
        else: E(cvt(PM0, EX, EX+1), cvt(PM1+1, EX, EX+1))
    E(N1, d32(LL, ONES, PX, True), d32(OA, VX, PX, True), d32(OA+4, VX+4, PX, True), "s_nop 3",
      d16(LL, ONES, PM0), d16(OA, KV+2, PM0), d16(OA+4, KV+2, PM1), "s_nop 7",
      f"v_rcp_f32 v{RI}, v{LL}", "s_mov_b64 vcc, 0", f"s_branch L_smback{sfx}")
    flag_spin(a, sfx, sFLG)
    a(f"s_branch L_fsback{sfx}")

def flag_spin(a, sfx, reg):
    a(f"""
    L_fs{sfx}:
    buffer_load_dword v{DUM}, v{ZERO}, {WSR}, s{reg} offen sc1
    """)
    spin_check(a)
    a(f"""
    s_waitcnt vmcnt(0)
    v_cmp_gt_u32 vcc, s{sNEED}, v{DUM}
    s_cbranch_vccnz L_fs{sfx}
    """)

def advance(a):
    a(f"""
    s_max_i32 s{sTV}, s{sS}, 0
    s_add_u32 s{sS}, s{sS}, 1
    s_xor_b32 s{sTAG}, s{sTAG}, 1
    s_add_u32 s{sVX}, s{sKX}, 0x1000000
    s_add_u32 s{sT0}, s{sS}, 1
    s_min_u32 s{sT0}, s{sT0}, 63
    s_lshl_b32 s{sT0}, s{sT0}, 13
    s_add_u32 s{sKX}, s{sKB0}, s{sT0}
    s_add_u32 s{sWARM}, s{sKX}, s{sWD}
    s_add_u32 s{sT0}, s{sS}, 3
    s_min_u32 s{sNEED}, s{sT0}, 64
    s_add_u32 s{sKVM}, s{sKVM}, 0x20000
    s_xor_b32 s{sMK}, s{sMK}, 0x2000
    """)

def gen_team(a):
    h, w = S_RANK, S_WAVE
    T = 20
    a("L_team:")
    a(f"""
    s_mov_b32 s{sSPIN}, 0
    v_lshrrev_b32 v{T}, 4, v0          ; g
    v_and_b32 v{T+1}, 15, v0           ; r
    s_lshl_b32 s{sT0}, s{w}, 11
    s_add_u32 s{sT0}, s{sT0}, {LB}
    v_lshl_add_u32 v{W16}, v0, 4, s{sT0}
    v_add_u32 v{WT}, {L_X + 0x2000}, v{W16}
    s_mov_b32 s{sWD}, s{sT0}
    s_lshl_b32 s{sT0}, s{w}, 12
    v_lshl_add_u32 v{WVB}, v0, 4, s{sT0}
    s_lshl_b32 s{sT0}, s{w}, 9
    s_add_u32 s{sT0}, s{sT0}, {LB}
    v_bfe_u32 v{T+2}, v0, 3, 1
    v_lshl_add_u32 v{XTW}, v{T+2}, 8, s{sT0}
    v_lshl_add_u32 v{XTW}, v{T}, 6, v{XTW}
    v_and_b32 v{T+2}, 7, v0
    v_lshl_add_u32 v{XTW}, v{T+2}, 3, v{XTW}
    v_lshrrev_b32 v{T+2}, 5, v0
    v_lshlrev_b32 v{XTR}, 8, v{T+2}
    v_and_b32 v{T+2}, 3, v0
    v_lshl_add_u32 v{XTR}, v{T+2}, 6, v{XTR}
    v_bfe_u32 v{T+2}, v0, 2, 3
    v_lshl_add_u32 v{XTR}, v{T+2}, 3, v{XTR}
    v_add_u32 v{XTR}, {LB}, v{XTR}
    s_lshl_b32 s{sT0}, s{w}, 9
    s_add_u32 s{sT0}, s{sT0}, {LB + L_QT}
    v_lshrrev_b32 v{T+2}, 1, v0
    v_lshl_add_u32 v{OXW}, v{T+2}, 4, s{sT0}
    ; H1ST = (8w + (l>>3))*2048 + h*64 + (l&7)*8
    s_lshl_b32 s{sT0}, s{w}, 14
    s_lshl_b32 s{sT1}, s{h}, 6
    s_add_u32 s{sT0}, s{sT0}, s{sT1}
    v_lshrrev_b32 v{T+2}, 3, v0
    v_lshl_add_u32 v{H1ST}, v{T+2}, 11, s{sT0}
    v_and_b32 v{T+2}, 7, v0
    v_lshl_add_u32 v{H1ST}, v{T+2}, 3, v{H1ST}
    v_lshlrev_b32 v{H1LD}, 8, v{T}
    v_bfe_u32 v{T+2}, v0, 2, 1
    v_lshl_add_u32 v{H1LD}, v{T+2}, 7, v{H1LD}
    v_and_b32 v{T+2}, 1, v0
    v_lshl_add_u32 v{H1LD}, v{T+2}, 6, v{H1LD}
    v_bfe_u32 v{T+2}, v0, 3, 1
    v_lshl_add_u32 v{H1LD}, v{T+2}, 5, v{H1LD}
    v_bfe_u32 v{T+2}, v0, 1, 1
    v_lshl_add_u32 v{H1LD}, v{T+2}, 4, v{H1LD}
    s_lshl_b32 s{sT0}, s{w}, 16
    s_lshl_b32 s{sT1}, s{h}, 11
    s_add_u32 s{sT0}, s{sT0}, s{sT1}
    s_add_u32 s{sH1L}, s{sT0}, {hex(WS_HOP1)}
    v_bfe_u32 v{T+2}, v0, 3, 1
    v_lshlrev_b32 v{H2ST}, 13, v{T+2}
    v_lshl_add_u32 v{H2ST}, v{T}, 3, v{H2ST}
    v_bfe_u32 v{T+2}, v0, 1, 1
    v_lshl_add_u32 v{H2ST}, v{T+2}, 5, v{H2ST}
    v_bfe_u32 v{T+2}, v0, 2, 1
    v_lshl_add_u32 v{H2ST}, v{T+2}, 2, v{H2ST}
    v_and_b32 v{T+2}, 1, v0
    v_lshl_add_u32 v{H2ST}, v{T+2}, 1, v{H2ST}
    s_lshl_b32 s{sH2S}, s{w}, 11
    s_lshr_b32 s{sT0}, s{h}, 3
    s_lshl_b32 s{sT0}, s{sT0}, 9
    s_add_u32 s{sH2S}, s{sH2S}, s{sT0}
    s_and_b32 s{sT0}, s{h}, 1
    s_lshl_b32 s{sT0}, s{sT0}, 8
    s_add_u32 s{sH2S}, s{sH2S}, s{sT0}
    s_bfe_u32 s{sT0}, s{h}, 0x20001
    s_lshl_b32 s{sT0}, s{sT0}, 6
    s_add_u32 s{sH2S}, s{sH2S}, s{sT0}
    s_add_u32 s{sH2S}, s{sH2S}, {hex(WS_HOP2)}
    s_mov_b32 s{sH2L}, {hex(WS_HOP2 - LB - L_X)}
    s_lshl_b32 s{sFLG}, s{h}, 7
    s_add_u32 s{sFLG}, s{sFLG}, {hex(FLAG_F)}
    s_lshl_b32 s{sKB0}, s{h}, 19
    s_add_u32 s{sKB0}, s{sKB0}, {hex(WS_PROJ + (4 << 24) - LB)}
    s_mov_b32 s{sODD}, 0xaaaaaaaa
    s_mov_b32 s{sODD+1}, 0xaaaaaaaa
    v_mov_b32 v{ZERO}, 0
    v_mov_b32 v{PM1}, 0
    v_mov_b32 v{PM0}, 0
    v_mov_b32 v{ONES+0}, 0x3f803f80
    v_mov_b32 v{ONES+1}, 0x3f803f80
    v_mov_b32 v{ONES+2}, 0x3f803f80
    v_mov_b32 v{ONES+3}, 0x3f803f80
    s_mov_b32 s{sSENT}, 0xff00ff00
    s_mov_b32 s{sSENT+1}, 0xff00ff00
    s_mov_b32 s{sC}, {fbits(SM_SCALE)}
    s_mov_b32 s{sLO}, {hex((127 - 60) << 23)}
    s_mov_b32 s{sRANGE}, {hex(OPTS.get('smrange', 120) << 23)}
    s_mov_b32 s{sFFFE}, 0xfffe
    s_lshl_b32 s{sT0}, s{w}, 11
    s_add_u32 s{sMK}, s{sT0}, {LB + L_X}
    s_add_u32 s{sMV}, s{sT0}, {LB + L_VX}
    s_lshl_b32 s{sT0}, s{h}, 7
    s_add_u32 s{sT0}, s{sT0}, {hex(FLAG_T)}
    s_cmp_eq_u32 s{w}, 0
    s_cselect_b32 s{sTF}, s{sT0}, {hex(OOB)}
    """)
    for i in range(4):
        a(f"s_mov_b32 s{sSEL+2*i}, {hex(0x03030303 << (2*i))}\ns_mov_b32 s{sSEL+2*i+1}, {hex(0x03030303 << (2*i))}\ns_mov_b32 s{sH1+i}, {hex(WS_HOP1 + i*65536)}")
    for n in range(4): a(f"buffer_store_dwordx2 {vr(PM0,2)}, v{H1ST}, {WSR}, s{sH1+n} offen sc1")
    a(f"""
    v_mov_b32 v{T+2}, 0xffff
    buffer_store_short v{T+2}, v{H2ST}, {WSR}, s{sH2S} offen sc1
    s_mul_i32 s{sT0}, s{w}, 4
    s_lshr_b32 s{sT0}, 0x7640, s{sT0}
    s_and_b32 s{sT0}, s{sT0}, 15
    s_lshl_b32 s{sT0}, s{sT0}, 12
    s_lshl_b32 s{sT1}, s{h}, 7
    s_add_u32 s{sT0}, s{sT0}, s{sT1}
    s_add_u32 s{sT0}, s{sT0}, {hex(WS_FLAG + OPTS.get('noclear', 0) * OOB)}
    v_and_b32 v{T+3}, 31, v0
    v_lshlrev_b32 v{T+3}, 2, v{T+3}
    v_lshrrev_b32 v{T+4}, 5, v0
    v_lshl_add_u32 v{T+3}, v{T+4}, 12, v{T+3}
    buffer_store_dword v{ZERO}, v{T+3}, {WSR}, s{sT0} offen sc1
    """)
    set_srd(a, S_SRD2, S_DBG, 256)
    a(f"""
    s_lshl_b32 s{sT0}, 1, s{S_XCC}
    v_mov_b32 v{T+2}, s{sT0}
    s_cmp_eq_u32 s{w}, 0
    s_cselect_b32 s{sT1}, 0, {hex(OOB)}
    s_mov_b64 exec, 1
    buffer_atomic_or v{T+2}, v{ZERO}, s[52:55], s{sT1} offen offset:128
    s_mov_b64 exec, -1
    """)
    D0, D1, R0 = T + 6, T + 7, T + 8
    a(f"""
    v_bfe_u32 v{T+2}, v0, 4, 1          ; lo
    v_lshrrev_b32 v{T+3}, 5, v0         ; a
    s_lshl_b32 s{sT0}, s{w}, 1
    v_or_b32 v{T+4}, s{sT0}, v{T+2}
    v_lshlrev_b32 v{T+4}, 1, v{T+4}
    v_xor_b32 v{T+4}, v{T+4}, v{T+1}
    v_lshlrev_b32 v{T+4}, 4, v{T+4}
    v_lshl_add_u32 v{T+5}, v{T+2}, 4, v{T+3}
    v_add_u32 v{T+5}, s{sT0}, v{T+5}
    v_lshl_add_u32 v{D0}, v{T+5}, 13, v{T+4}
    s_lshl_b32 s{sT1}, s{h}, 8
    v_add_u32 v{D0}, s{sT1}, v{D0}
    s_lshl_b32 s{sT0}, s{w}, 4
    v_add_u32 v{T+5}, s{sT0}, v{T}
    v_lshl_add_u32 v{D1}, v{T+5}, 10, v{T+4}
    s_lshl_b32 s{sT1}, s{h}, 17
    v_add_u32 v{D1}, s{sT1}, v{D1}
    v_lshrrev_b32 v{T+2}, 5, v0
    v_lshlrev_b32 v{R0}, 12, v{T+2}
    v_bfe_u32 v{T+2}, v0, 3, 1          ; hf
    v_lshl_add_u32 v{R0}, v{T+2}, 11, v{R0}
    v_lshlrev_b32 v{T+4}, 2, v{T+2}
    v_bfe_u32 v{T+2}, v0, 4, 1          ; gl
    v_lshl_add_u32 v{R0}, v{T+2}, 10, v{R0}
    v_lshl_add_u32 v{T+4}, v{T+2}, 1, v{T+4}
    v_bfe_u32 v{T+2}, v0, 2, 1          ; lo
    v_lshl_add_u32 v{R0}, v{T+2}, 8, v{R0}
    v_add_u32 v{T+4}, v{T+4}, v{T+2}
    s_lshl_b32 s{sT0}, s{w}, 1
    v_xor_b32 v{T+4}, s{sT0}, v{T+4}
    v_lshl_add_u32 v{R0}, v{T+4}, 5, v{R0}
    v_and_b32 v{T+2}, 3, v0
    v_lshl_add_u32 v{R0}, v{T+2}, 3, v{R0}
    v_xor_b32 v{R0+1}, 32, v{R0}
    v_bfe_u32 v{T+2}, v0, 3, 1
    v_mul_u32_u24 v{T+2}, {2048 + 128 + 32}, v{T+2}
    v_xor_b32 v{R0+4}, v{T+2}, v{R0}
    v_xor_b32 v{R0+5}, {2048 + 128}, v{R0+4}
    s_mov_b32 s50, 0x400000
    s_mov_b32 s51, 0x20000
    s_lshl_b32 s{sS}, s{w}, 10
    """)
    ptr = [S_WQB, S_WKB, S_WOB, S_WVB]
    MORD = [int(x) for x in str(OPTS.get("tord", "2013")).zfill(4)]
    def wdma(q):
        mt, j = MORD[q >> 3], q & 7
        if j == 0: a(f"s_mov_b32 s48, s{ptr[mt]}\ns_and_b32 s49, s{ptr[mt]+1}, 0xffff")
        for i in range(4):
            u, gh = i >> 1, i & 1
            if mt == 2: so = (64 * (j & 1) + 8 * u + 4 * gh) * 1024 + (j >> 1) * 256
            else: so = (64 * j + 32 * u + 8 * gh) * 8192
            a(f"s_add_u32 m0, s{sS}, {j*16384 + i*4096}\ns_mov_b32 s{sT0}, {so}\nbuffer_load_dwordx4 v{D1 if mt == 2 else D0}, s[48:51], s{sT0} offen {'nt' if OPTS.get('tnt') else ''} lds")
    stamp(a, 4, 40)
    for q in range(7): wdma(q)
    stamp(a, 5, 40)
    for q in range(32):
        mt, j = MORD[q >> 3], q & 7
        a(f"s_waitcnt vmcnt({4*min(6, 31-q)})\ns_barrier")
        if q in (0, 8, 16, 24): stamp(a, {0: 6, 8: 7, 16: 8, 24: 9}[q], 40)
        if q == 0:
            a(f"""
            v_mov_b32 v{T+2}, 1
            s_cmp_eq_u32 s{w}, 0
            s_cselect_b32 s{sT1}, 0, {hex(OOB)}
            s_mov_b64 exec, 1
            buffer_atomic_add v{T+2}, v{ZERO}, s[52:55], s{sT1} offen
            s_mov_b64 exec, -1
            """)
        if q + 7 < 32: wdma(q + 7)
        rb = R0 + 4 if mt == 2 else R0
        a(f"v_add_u32 v{R0+2}, {j*16384}, v{rb}\nv_add_u32 v{R0+3}, {j*16384}, v{rb+1}")
        def reads(wv):
            for tl in range(2):
                for u in range(2):
                    for x in range(2):
                        o = 4 * u + 2 * x
                        if mt == 0: d = ar((tl*8 + (j ^ 2*wv))*8 + o, 2)
                        elif mt == 1: d = ar(128 + (tl*8 + (j ^ 2*wv))*8 + o, 2)
                        elif mt == 2: d = vr(WO + ((j >> 1)*4 + ((2*(j & 1) + tl) ^ wv))*8 + o, 2)
                        else: d = vr(ST + 8*tl + o, 2)
                        a(f"ds_read_b64_tr_b16 {d}, v{R0+2+tl} offset:{u*8192 + x*512}")
        if mt == 3: reads(0)
        else:
            for wv in range(4):
                if wv < 3: a(f"s_cmp_lg_u32 s{w}, {wv}\ns_cbranch_scc1 L_wr_{q}_{wv+1}")
                reads(wv)
                if wv < 3: a(f"s_branch L_wr_{q}_e\nL_wr_{q}_{wv+1}:")
            a(f"L_wr_{q}_e:")
        a("s_waitcnt lgkmcnt(0)")
        if mt == 3:
            a(f"s_barrier\nv_add_u32 v{R0+2}, {j*16384}, v{WVB}")
            for tl in range(2):
                for u in range(2):
                    a(f"ds_write_b128 v{R0+2}, {vr(ST + 8*tl + 4*u, 4)} offset:{tl*2048 + u*1024}")
            a("s_waitcnt lgkmcnt(0)")
    a(f"s_lshl_b32 s{sT0}, s{w}, 15\nv_add_u32 v{WVB}, s{sT0}, v{WVB}")
    stamp(a, 1)
    a(f"""
    v_and_b32 v{T+2}, 1, v0
    v_cmp_eq_u32 vcc, 1, v{T+2}
    v_mov_b32 v{T+3}, 0x44444444
    v_mov_b32 v{T+4}, 0xeeeeeeee
    v_cndmask_b32 v{IDX}, v{T+3}, v{T+4}, vcc
    """)
    set_srd(a, S_SRD1, S_MEM0, 8192)
    a(f"""
    v_bfe_u32 v{T+2}, v0, 1, 3
    v_lshlrev_b32 v{T+3}, 10, v{T+2}
    v_lshrrev_b32 v{T+2}, 5, v0
    v_lshl_add_u32 v{T+3}, v{T+2}, 6, v{T+3}
    v_bfe_u32 v{T+2}, v0, 4, 1
    v_lshl_add_u32 v{T+3}, v{T+2}, 4, v{T+3}
    v_and_b32 v{T+2}, 1, v0
    v_lshl_add_u32 v{T+3}, v{T+2}, 3, v{T+3}
    s_lshl_b32 s{sT0}, s{w}, 8
    buffer_load_dwordx2 {vr(KW,2)}, v{T+3}, s[48:51], s{sT0} offen
    buffer_load_dwordx2 {vr(KW+2,2)}, v{T+3}, s[48:51], s{sT0} offen offset:32
    buffer_load_dwordx2 {vr(KW+4,2)}, v{T+3}, s[48:51], s{sT0} offen offset:128
    buffer_load_dwordx2 {vr(KW+6,2)}, v{T+3}, s[48:51], s{sT0} offen offset:160
    v_lshlrev_b32 v{A16}, 4, v0
    v_add_u32 v{A16}, {LB + L_X}, v{A16}
    s_mov_b32 s{sT0}, 0x05040100
    s_mov_b32 s{sT1}, 0x07060302
    s_waitcnt vmcnt(0)
    """)
    for jj in range(2):
        x, y, d = KW + 4*jj, KW + 4*jj + 2, M + 4*jj
        a(f"""
        v_perm_b32 v{d}, v{y}, v{x}, s{sT0}
        v_perm_b32 v{d+1}, v{y}, v{x}, s{sT1}
        v_perm_b32 v{d+2}, v{y+1}, v{x+1}, s{sT0}
        v_perm_b32 v{d+3}, v{y+1}, v{x+1}, s{sT1}
        v_min_u32 v{d}, -2, v{d}
        v_min_u32 v{d+1}, -2, v{d+1}
        v_min_u32 v{d+2}, -2, v{d+2}
        v_min_u32 v{d+3}, -2, v{d+3}
        """)
    a(f"""
    L_team_init:
    buffer_load_dword v{AQ}, v{ZERO}, s[52:55], 0 offen sc1
    """)
    spin_check(a)
    a(f"""
    s_waitcnt vmcnt(0)
    v_cmp_gt_u32 vcc, 32, v{AQ}
    s_cbranch_vccnz L_team_init
    buffer_load_dword v{AQ}, v{ZERO}, s[52:55], 0 offen offset:128 sc1
    s_mov_b32 s{sNEED}, 2
    """)
    flag_spin(a, "_pre", sFLG)
    a(f"""
    v_readfirstlane_b32 s{sT1}, v{AQ}
    s_mov_b32 m0, s{sMK}
    s_mov_b32 s{sKX}, s{sKB0}
    buffer_load_dwordx4 v{W16}, {WSR}, s{sKX} offen sc1 lds
    buffer_load_dwordx4 v{W16}, {WSR}, s{sKX} offen offset:1024 sc1 lds
    s_mov_b32 s{sS}, -1
    s_mov_b32 s{sTAG}, 0
    s_lshl_b32 s{sKVM}, s{h}, 12
    s_lshl_b32 s{sT0}, s{w}, 10
    s_sub_u32 s{sKVM}, s{sKVM}, s{sT0}
    s_add_u32 s{sKVM}, s{sKVM}, {hex(WS_KVM - 2*0x20000 - LB)}
    """)
    advance(a)
    a.emit(wv_prefetch())
    for i in range(12): a(f"v_mov_b64 {vr(AQ+2*i,2)}, 0")
    a("s_waitcnt vmcnt(0) lgkmcnt(0)")
    stamp(a, 2)
    if OPTS.get("tprof"):
        for k in range(10): a(f"s_mov_b32 s{28+k}, 0")
        a("s_memtime s[26:27]\ns_waitcnt lgkmcnt(0)")
    a.emit(ms_addrs())
    a.emit(warm_addr())
    a(f"""
    s_bcnt1_i32_b32 s{sT1}, s{sT1}
    s_cmp_eq_u32 s{sT1}, {2 if OPTS.get('forceslow') else 1}
    s_cbranch_scc0 L_entry_x
    s_branch L_entry_f
    """)
    step_loop(a, "_f", "")
    step_loop(a, "_x", "sc1")
    a(f"""
    L_team_last:
    s_waitcnt vmcnt(0)
    s_add_u32 s{sKVM}, s{sKVM}, 0x20000
    v_mov_b32 v{DUM}, 64
    buffer_store_dwordx4 {vr(KV,4)}, v{W16}, {WSR}, s{sKVM} offen sc1
    s_waitcnt vmcnt(0)
    s_barrier
    buffer_store_dword v{DUM}, v{ZERO}, {WSR}, s{sTF} offen sc1
    """)
    stamp(a, 3)
    if OPTS.get("tprof"):
        a(f"s_lshl_b32 s4, s{h}, 2\ns_add_u32 s4, s4, s{w}\ns_lshl_b32 s4, s4, 6\ns_add_u32 s4, s4, {hex(WS_STAMP + 0x10000)}")
        for k in range(9): a(f"v_mov_b32 v20, s{28+k}\nbuffer_store_dword v20, v{ZERO}, {WSR}, s4 offen offset:{4*k}")
        a(f"v_mov_b32 v20, s{sSPIN}\nbuffer_store_dword v20, v{ZERO}, {WSR}, s4 offen offset:36")
        a(f"v_mov_b32 v20, s37\nbuffer_store_dword v20, v{ZERO}, {WSR}, s4 offen offset:40")
    a("s_waitcnt vmcnt(0)\ns_endpgm")
```

```python
import sys
from common import *
import team, att, barr, feed, sched, lint

def build(opts):
    a = Asm()
    OPTS.clear(); OPTS.update(opts)
    kernel_head(a)
    prologue(a)
    stamp(a, 0)
    a(f"""
    s_cmp_eq_u32 s{S_GRP}, 0
    s_cbranch_scc1 L_team
    """)
    if opts.get("teamonly"): a("s_branch L_exit")
    if opts.get("attonly"):
        a(f"s_branch L_att_test")
    a(f"""
    s_lshl2_add_u32 s3, s{S_CU}, s{S_WAVE}
    v_lshlrev_b32 v2, 7, v0
    s_mov_b32 s{S_TASK}, 0
    s_mov_b32 s50, 0x200000
    s_mov_b32 s51, 0x20000
    """)
    names = {"o": S_WOB, "q": S_WQB, "k": S_WKB, "v": S_WVB, "a": S_WOA}
    segs = []
    for ch in str(opts.get("pref", "x")):
        if ch == "x": segs += [(S_X, 0), (S_C, 0)]
        elif ch == "c": segs += [(S_C, 0)]
        elif ch in names: segs += [(names[ch], 0), (names[ch], 1)]
    npf = (len(segs) * 256 + 895) // 896
    for r in range(npf):
        a(f"s_add_u32 s4, s3, {896*r}\ns_lshr_b32 s5, s4, 8\ns_and_b32 s4, s4, 255\ns_lshl_b32 s4, s4, 13\ns_mov_b64 s[48:49], s[{S_X}:{S_X+1}]\ns_mov_b32 s6, 0")
        for n, (p, hi) in enumerate(segs):
            if (896*r) >> 8 <= n <= (896*r + 895) >> 8:
                a(f"s_cmp_eq_u32 s5, {n}\ns_cselect_b64 s[48:49], s[{p}:{p+1}], s[48:49]\ns_cselect_b32 s6, {hex(hi << 21)}, s6")
        a(f"s_add_u32 s48, s48, s6\ns_addc_u32 s49, s49, 0\ns_and_b32 s49, s49, 0xffff\ns_cmp_lt_u32 s5, {len(segs)}\ns_cselect_b32 s4, s4, {hex(OOB)}")
        a("buffer_load_dword v31, v2, s[48:51], s4 offen")
    a(f"""
    s_waitcnt vmcnt({npf})
    L_next:
    v_readlane_b32 s3, v{V_TAB}, s{S_TASK}
    s_add_u32 s{S_TASK}, s{S_TASK}, 1
    s_nop 0
    s_and_b32 s4, s3, 3
    s_cmp_eq_u32 s4, 0
    s_cbranch_scc1 L_after_p
    s_cmp_eq_u32 s4, 2
    s_cbranch_scc1 L_go_outx
    """)
    full = not (opts.get("attonly"))
    a("L_go_att:")
    if full:
        a(f"s_bfe_u32 s{att.sH}, s3, 0x50004\ns_bfe_u32 s{att.sQB}, s3, 0x3000c\ns_bitcmp1_b32 s3, 3\ns_cbranch_scc1 L_feed")
        att.gen_att(a, "L_att_end")
        a("L_att_end:")
        stamp(a, 11)
        a("s_branch L_next")
    a("L_go_outx:")
    if full:
        a(f"""
        s_bfe_u32 s{barr.sHP}, s3, 0x40004
        s_bfe_u32 s{barr.sSTG}, s3, 0x10004
        s_bitcmp1_b32 s3, 3
        s_cbranch_scc1 L_red
        """)
        barr.gen_barr(a, "L_next")
        barr.gen_red(a, "L_next")
        feed.gen_feed(a, "L_next")
    a("L_after_p:")
    stamp(a, 2)
    a("s_waitcnt vmcnt(0)\ns_endpgm")
    if opts.get("attonly"):
        a(f"""
        L_team:
        L_att_test:
        s_lshl_b32 s{att.sH}, s{S_GRP}, 2
        s_lshr_b32 s3, s{S_RANK}, 3
        s_add_u32 s{att.sH}, s{att.sH}, s3
        s_and_b32 s{att.sQB}, s{S_RANK}, 7
        """)
        att.gen_att(a, "L_after_p")
    elif opts.get("btest"):
        a("L_team:")
    else:
        team.gen_team(a)
    a("L_exit:\ns_endpgm")
    a.lines.append(".p2align 8\n.type L_ptab,@object\nL_ptab:")
    for row in sched.tables():
        a.lines.append(".long " + ",".join(hex(x) if x > 9 else str(x) for x in row))
    kernel_tail(a)
    return a.text()

if __name__ == "__main__":
    out = sys.argv[1]
    opts = dict(kv.split("=") for kv in sys.argv[2:])
    opts = {k: (int(v) if v.lstrip('-').isdigit() else v) for k, v in opts.items()}
    opts.setdefault('m16', 1)
    t = build(opts)
    open(out, "w").write(t)
    lint.lint(t)
```

```python
from common import *

LB = 131072
L_QT, L_KT, L_VX, L_X = 0, 4096, 8192, 16384
A16, IDX, W16, WVB, DUM, XTW, XTR, OXW, H1ST, H1LD, H2ST, WT = range(12)
ONES = 12
PM0, ZERO, PM1 = 16, 17, 18
M, AQ, AK, AV, QF, KW, ST, KV = 20, 52, 60, 68, 76, 92, 108, 124
WO = 128
sS, sKX, sVX, sWARM, sFLG, sKVM, sH1L, sH2L, sH2S, sTAG, sTF, sSPIN, sT0, sT1, sMK, sMV, sKB0 = range(56, 73)
sH1 = 74
sSENT = 78
sSEL = 80
sC = 88; sLO = 89; sFFFE = 90; sRANGE = 91; sNEED = 92; sTV = 93; sODD = 94; sWD = 73; sUSEB = 7

class LG:
    def __init__(self): self.n = 0; self.t = {}; self.done = 0
    def op(self, tag, ins):
        self.n += 1; self.t[tag] = self.n; return ins
    def need(self, *tags):
        m = max(self.t[t] for t in tags)
        if m <= self.done: return []
        self.done = m
        return [f"s_waitcnt lgkmcnt({min(15, self.n - m)})"]

def nops(cyc):
    r = []; n = cyc // 4
    while n > 0:
        k = min(n, 16); r.append(f"s_nop {k-1}"); n -= k
    return r

def sm(acc, A, B): return f"v_smfmac_f32_16x16x64_bf16 {vr(acc,4)}, {vr(A,4)}, {B}, v{IDX}"
def d32(D, A, B, first): return f"v_mfma_f32_16x16x32_bf16 {vr(D,4)}, {vr(A,4)}, {vr(B,4)}, {'0' if first else vr(D,4)}"
def d16(D, A, B): return f"v_mfma_f32_16x16x16_bf16 {vr(D,4)}, {vr(A,2)}, {vr(B,2)}, {vr(D,4)}"

VORD = [(k >> 1, k & 1) for k in range(12)] + [(6, 0), (7, 0), (6, 1), (7, 1)]
VBUF = [QF, QF + 8, KW, KW + 8, ST, ST + 8, QF, QF + 8, ST, ST + 8, QF, QF + 8, ST, ST + 8, ST, ST + 8]
def wv_read(lg, k, u):
    j, tl = VORD[k]
    if OPTS.get("nowv") and k >= 6:
        lg.t[("wv", k, u)] = 0
        return "s_nop 0"
    return lg.op(("wv", k, u), f"ds_read_b128 {vr(VBUF[k] + 4*u, 4)}, v{WVB} offset:{(j&1)*16384 + tl*2048 + u*1024}")
def wv_next(cl):
    return f"v_xor_b32 v{WVB}, {hex(32768 * (1 if cl & 1 else 3))}, v{WVB}"
def wv_prefetch():
    lg = LG()
    return [wv_read(lg, k, u) for k in range(4) for u in range(2)] + [wv_next(1)] + [wv_read(lg, k, u) for k in (4, 5) for u in range(2)]
def warm_addr():
    return [f"v_bfe_u32 v{M+25}, v{W16}, 9, 1", f"v_and_b32 v{DUM}, 0x1ff, v{W16}", f"v_lshlrev_b32 v{DUM}, 2, v{DUM}",
            f"v_lshl_add_u32 v{DUM}, v{M+25}, 24, v{DUM}", f"s_sub_u32 s{sT0}, s{sFLG}, s{sWARM}", f"v_mov_b32 v{PM0}, s{sTV}", f"v_writelane_b32 v{DUM}, s{sT0}, 1"]
def ms_addrs():
    return [f"v_xor_b32 v{M + 8*cl + 4}, {cl*2048}, v{WT}" for cl in range(1, 4)]

def spin_check(a):
    a(f"s_add_u32 s{sSPIN}, s{sSPIN}, 1\ns_cmp_gt_u32 s{sSPIN}, {SPIN_MAX}\ns_cbranch_scc1 L_exit")

def step_loop(a_, sfx, stf):
    lg = LG()
    drop = [f"s{r} offen" for k, r in (("nokvm", sKVM), ("nowarm", sWARM), ("noflg", sFLG), ("notf", sTF), ("nodma", sKX), ("nodma", sVX)) if OPTS.get(k)]
    if OPTS.get("nohop"): drop += [f"s{sH1L} offen", f"s{sH2L} offen", f"s{sH2S} offen", "L_retry2", "L_retry1", "L_smslow", "L_fs"]
    if OPTS.get("nochk"): drop += ["L_retry2", "L_retry1", "L_smslow"]
    if OPTS.get("nost"): drop += [f"s{sH1+n} offen" for n in range(4)]
    kill = []
    if OPTS.get("nobar"): kill += ["s_barrier"]
    if OPTS.get("nods"): kill += ["ds_read", "ds_write", "lgkmcnt"]
    if OPTS.get("nodsw"): kill += ["lgkmcnt"]
    if OPTS.get("novm"): kill += ["buffer_"]
    if OPTS.get("novalu"): kill += ["v_add", "v_mul", "v_cvt", "v_exp", "v_max", "v_mov", "v_xor", "v_cnd", "v_cmp", "v_rcp", "v_sub", "v_and", "v_lsh", "v_or", "v_bit", "v_min", "v_perm"]
    if OPTS.get("nonop"): kill += ["s_nop"]
    a0 = a_
    def a(x):
        for l in x.split("\n"):
            if not any(k in l for k in kill): a0(l)
    E = lambda *l: [a(x if not any(d in x for d in drop) else "s_nop 0") for y in l for x in (y if isinstance(y, list) else [y])]
    Q = lambda j, tl: sm(AQ + 4*tl, M + 4*j, ar((tl*8 + j)*8, 8))
    K = lambda j, tl: sm(AK + 4*tl, M + 4*j, ar(128 + (tl*8 + j)*8, 8))
    Vv = lambda k: sm(AV + 4*VORD[k][1], M + 4*VORD[k][0], vr(VBUF[k], 8))
    kxreg = lambda t, tt: (M if tt else KW) + 4*t
    kxr = lambda t, tt: lg.op(("kx", t, tt), f"ds_read_b128 {vr(kxreg(t,tt),4)}, v{A16} offset:{(2*t+tt)*1024}")
    qr = lambda t, x: lg.op(("q", t, x), f"ds_read_b64_tr_b16 {vr(QF + 4*t + 2*x, 2)}, v{XTR} offset:{L_QT + x*2048 + t*512}")
    kr = lambda t, x: lg.op(("k", t, x), f"ds_read_b64_tr_b16 {vr(KW + 4*t + 2*x, 2)}, v{XTR} offset:{L_KT + x*2048 + t*512}")
    mr = lambda j: lg.op(("m", j), f"ds_read_b128 {vr(M+4*j,4)}, v{M + 8*(j>>1) + 4} offset:{(j&1)*1024}")
    wr = lambda k, u: wv_read(lg, k, u)
    nv = lambda k: lg.need(("wv", k, 0), ("wv", k, 1))
    add = lambda d, x, y: f"v_add_f32 v{d}, v{x}, v{y}"
    mulc = lambda d: f"v_mul_f32 v{d}, s{sC}, v{d}"
    cvt = lambda d, x, y: f"v_cvt_pk_bf16_f32 v{d}, v{x}, v{y}"
    ex = lambda d, s_: f"v_exp_f32 v{d}, v{s_}"
    N0, N1 = "s_nop 0", "s_nop 1"
    prof = OPTS.get("tprof") and sfx == "_f"
    PSET = {1: [0,1,2,3,4,5,6,7,8], 2: [0,1,6,7,"a","b","c","d",8], 3: [0,5,"e","f","g",6,"h",7,8], 4: [0,2,"i","j",3,"k",4,"l",8]}.get(OPTS.get("tprof"), [])
    def P(k):
        if prof and k in PSET: k = PSET.index(k); a(f"s_memtime s[{8+2*k}:{9+2*k}]")
    def warm(cyc):
        if not OPTS.get("warm"): return nops(cyc)
        r = []
        for i in range(cyc // 16): r += [f"v_mov_b32 v{M+26}, 0", "s_nop 2"]
        return r + nops(cyc % 16)
    g2 = OPTS.get("g2", 100)
    B0_, B1_ = M + 8, M + 16
    def ld2(x, y): E(f"buffer_load_dwordx4 {vr(x,4)}, v{WT}, {WSR}, s{sH2L} offen sc1", f"buffer_load_dwordx4 {vr(y,4)}, v{WT}, {WSR}, s{sH2L} offen offset:1024 sc1")
    a(f"L_poll2{sfx}:")
    ld2(M, M + 4)
    n2 = 2 if g2 else 0
    bg = OPTS.get('bg', 0)
    if g2:
        E(warm(g2 - 8))
        ld2(B0_, B1_)
    E(f"v_readlane_b32 s{sT1}, v{DUM}, 1", f"v_xor_b32 v{H2ST}, 0x2000, v{H2ST}", f"s_waitcnt vmcnt({n2+3})", ms_addrs(), f"s_cmp_lt_u32 s{sT1}, s{sNEED}", f"s_cbranch_scc1 L_fs{sfx}")
    a(f"L_fsback{sfx}:")
    if OPTS.get("tsteps") and sfx == "_f":
        a(f"""s_memrealtime s[8:9]
        s_lshl_b32 s10, s{sS}, 2
        s_add_u32 s10, s10, s{sTF}
        s_add_u32 s10, s10, {hex(WS_STAMP + 0x20000 - FLAG_T)}
        s_lshl_b32 s11, s{S_RANK}, 7
        s_add_u32 s10, s10, s11
        s_waitcnt lgkmcnt(0)
        v_mov_b32 v{M+26}, s8
        buffer_store_dword v{M+26}, v{ZERO}, {WSR}, s10 offen""")
    advance(a)
    E(warm_addr())
    if prof and OPTS.get("traw"):
        a(f"""s_lshl2_add_u32 s4, s{S_RANK}, s{S_WAVE}
        s_lshl_b32 s4, s4, 6
        s_add_u32 s4, s4, s{sS}
        s_lshl_b32 s4, s4, 6
        s_add_u32 s4, s4, {hex(WS_STAMP + 0x40000)}
        s_waitcnt lgkmcnt(0)""")
        for k in range(9): a(f"v_writelane_b32 v{M+26}, s{8+2*k}, {k}")
        a(f"v_writelane_b32 v{M+26}, s{sSPIN}, 9\nv_writelane_b32 v{M+26}, s37, 10\nv_bfe_u32 v{M+27}, v{W16}, 2, 8\ns_mov_b64 exec, 0x7ff\nbuffer_store_dword v{M+26}, v{M+27}, {WSR}, s4 offen\ns_mov_b64 exec, -1")
    elif prof:
        a("s_waitcnt lgkmcnt(0)\ns_sub_u32 s4, s8, s26\ns_add_u32 s36, s36, s4\ns_mov_b32 s26, s24")
        for k in range(8): a(f"s_sub_u32 s4, s{10+2*k}, s{8+2*k}\ns_add_u32 s{28+k}, s{28+k}, s4")
    stK = f"buffer_store_dwordx4 {vr(KV,4)}, v{W16}, {WSR}, s{sKVM} offen sc1"
    stF = f"buffer_store_dword v{PM0}, v{ZERO}, {WSR}, s{sTF} offen sc1"
    ldW = f"buffer_load_dword v{DUM}, v{DUM}, {WSR}, s{sWARM} offen sc1"
    E(warm(OPTS.get("w2", 0)))
    a(f"L_entry{sfx}:")
    C0 = M + 24
    dmaV = lambda x: f"buffer_load_dwordx4 v{W16}, {WSR}, s{sVX} offen offset:{1024*x} sc1 lds"
    dmaK = lambda x: f"buffer_load_dwordx4 v{W16}, {WSR}, s{sKX} offen offset:{1024*x} sc1 lds"
    E(f"s_waitcnt vmcnt({n2+1})", f"ds_write_b128 v{WT}, {vr(M,4)}")
    P(0)
    early = OPTS.get("early", 1)
    chk = [f"v_max3_u32 v{C0}, v{M}, v{M+1}, v{M+2}", f"v_max3_u32 v{C0}, v{C0}, v{M+3}, v{M+4}", f"v_max3_u32 v{C0}, v{C0}, v{M+5}, v{M+6}",
           f"v_max_u32 v{C0}, v{C0}, v{M+7}", f"v_cmp_eq_u32 vcc, -1, v{C0}"]
    E(Q(0,0), f"s_waitcnt vmcnt({n2})", f"ds_write_b128 v{WT}, {vr(M+4,4)} offset:1024")
    if early:
        E(chk, Q(0,1), f"s_mov_b32 m0, s{sMV}", Q(1,0), f"s_cbranch_vccnz L_retry2{sfx}", Q(1,1), K(0,0), K(0,1), K(1,0))
    else:
        E(chk[0], Q(0,1), chk[1], Q(1,0), chk[2], Q(1,1), f"s_mov_b32 m0, s{sMV}", chk[3], K(0,0), chk[4], K(0,1), K(1,0),
          f"s_cbranch_vccnz L_retry2{sfx}")
    kpos = OPTS.get('kpos', 3); spos = OPTS.get('spos', 1)
    KP = lambda p, x: dmaK(x) if kpos == p else []
    pre = {0: [], 1: [dmaV(0), dmaV(1), ldW, stK], 2: [dmaV(0), dmaV(1), ldW], 3: [stK]}[bg]
    X = lambda op: [] if op in pre else op
    E(pre, f"s_waitcnt vmcnt({len(pre)}) lgkmcnt(0)", "s_barrier")
    P(1)
    E(mr(2), K(1,1), mr(3), mr(4), Vv(0), mr(5), mr(6), Vv(1), mr(7), X(dmaV(0)))
    E(Vv(2), X(dmaV(1)))
    E(Vv(3), lg.need(("m",2)), wr(6,0), Q(2,0), lg.need(("m",3)), wr(6,1), X(ldW))
    E(Q(3,0), lg.need(("m",4)), wr(7,0), stK if spos else [], Q(4,0), lg.need(("m",5)), wr(7,1), wv_next(2), Q(5,0), lg.need(("m",7)), kxr(0,0))
    E(Q(6,0), kxr(1,0), stF, Q(7,0), N0, kxr(2,0))
    E(Vv(4), f"s_mov_b32 m0, s{sMK}", kxr(3,0), Q(2,1), N0, wr(8,0), add(AQ,AQ,AQ+1))
    E(Q(3,1), wr(8,1), add(AQ+2,AQ+2,AQ+3), Vv(5), kxr(0,1), mulc(AQ), Q(4,1), wr(9,0), mulc(AQ+2))
    E(Q(5,1), wr(9,1), cvt(AQ,AQ,AQ), Q(6,1), kxr(1,1), cvt(AQ+1,AQ+2,AQ+2))
    E(Q(7,1), nv(7), lg.op("qw0", f"ds_write_b64 v{XTW}, {vr(AQ,2)} offset:{L_QT}"))
    P(2)
    E(Vv(6), N0, (X(stK) if not spos else []) or N0, Vv(7), N0, wr(10,0), add(AQ+4,AQ+4,AQ+5))
    E(K(2,0), wr(10,1), add(AQ+6,AQ+6,AQ+7), K(3,0), nv(9), wr(11,0), mulc(AQ+4))
    E(Vv(8), wr(11,1), mulc(AQ+6), K(4,0), cvt(AQ+4,AQ+4,AQ+4), Vv(9), cvt(AQ+5,AQ+6,AQ+6))
    E(K(5,0), lg.op("qw", f"ds_write_b64 v{XTW}, {vr(AQ+4,2)} offset:{L_QT+2048}"), wv_next(3))
    P("i")
    E(K(6,0), wr(12,0), K(7,0), nv(11), wr(12,1), Vv(10), N0, wr(13,0), Vv(11), N0, wr(13,1), add(AK,AK,AK+1))
    E(K(2,1), lg.need("qw"), "s_barrier", add(AK+2,AK+2,AK+3))
    P("j")
    E(K(3,1), qr(0,0), qr(0,1), K(4,1), qr(1,0), qr(1,1), K(5,1), qr(2,0), qr(2,1), K(6,1), qr(3,0), qr(3,1))
    E(K(7,1), nv(13), kxr(2,1), cvt(KV,AK,AK+2), Vv(12), N0, kxr(3,1), KP(0,0), Vv(13), lg.need(("q",3,1)), wr(14,0), add(AK+4,AK+4,AK+5))
    P(3)
    SX = lambda t, tt: d32(AQ + 4*tt, kxreg(t,tt), QF + 4*t, t == 0)
    EX, PX, VX = M, M + 4, M + 16
    DM, LL = AK, AK + 4
    vxr = lambda x: lg.op(("vx",x), f"ds_read_b128 {vr(VX+4*x,4)}, v{W16} offset:{L_VX+1024*x}")
    E(SX(0,0), add(AK+6,AK+6,AK+7), cvt(KV+1,AK+4,AK+6))
    E(SX(1,0), f"s_waitcnt vmcnt({(3 if bg == 3 else 4) - (kpos > 0)})", lg.op("kw", f"ds_write2st64_b32 v{XTW}, v{KV}, v{KV+1} offset0:{L_KT//256} offset1:{L_KT//256+8}"), add(AV,AV,AV+1))
    E(SX(2,0), wr(14,1), add(AV+2,AV+2,AV+3), SX(3,0), lg.need(("kx",3,1)), wr(15,0), cvt(KV+2,AV,AV+2))
    E(SX(0,1), wr(15,1), KP(0,1), SX(1,1), vxr(0), vxr(1), SX(2,1), lg.need("kw"), "s_barrier")
    P("k")
    E(kr(0,0), kr(0,1), SX(3,1), nv(15), kr(1,0), kr(1,1), Vv(14), kr(2,0), kr(2,1), Vv(15), kr(3,0), kr(3,1))
    E(ex(EX,AQ), ex(EX+1,AQ+1), ex(EX+2,AQ+2))
    P(4)
    SM = lambda t: d32(DM, KW + 4*t, QF + 4*t, t == 0)
    OA, OP = QF + 4, QF + 12
    E2 = M + 8
    E(lg.need(("k",1,1)), SM(0), ex(EX+3,AQ+3), SM(1), lg.need(("k",3,1)), ex(E2,AQ+4))
    E(SM(2), ex(E2+1,AQ+5), SM(3), f"s_cmp_eq_u32 s{sS}, 63", ex(E2+2,AQ+6), ex(E2+3,AQ+7))
    P("l")
    E(cvt(PX,EX,EX+1), cvt(PX+1,EX+2,EX+3), cvt(PX+2,E2,E2+1), cvt(PX+3,E2+2,E2+3), add(AV+4,AV+4,AV+5), ex(EX,DM))
    E(d32(LL, ONES, PX, True), ex(EX+1,DM+1))
    E(d32(OA, VX, PX, True), add(AV+6,AV+6,AV+7), cvt(PM0,EX,EX+1))
    E(d32(OA+4, VX+4, PX, True), cvt(KV+3,AV+4,AV+6), cvt(PM1+1,EX,EX+1))
    RI = LL + 1
    WA = M + 16
    zw = [f"v_mov_b64 {vr(WA+2*i,2)}, 0" for i in range(8)]
    E(d16(LL, ONES, PM0), "s_cbranch_scc1 L_team_last", KP(1,0), wv_next(0), zw[4])
    P(5)
    E(d16(OA, KV+2, PM0), N0, KP(1,1), zw[5], zw[6])
    E(d16(OA+4, KV+2, PM1), f"v_rcp_f32 v{RI}, v{LL}", f"v_subrev_u32 v{LL+2}, s{sLO}, v{LL}", f"v_cmp_le_u32 vcc, s{sRANGE}, v{LL+2}", zw[7])
    a(f"L_smback{sfx}:")
    for i in range(4): a(f"v_mul_f32 v{OA+i}, v{OA+i}, v{RI}")
    E(cvt(OP, OA, OA+1), cvt(OP+1, OA+2, OA+3))
    if OPTS.get("ow2", 1): E(lg.op("ow0", f"ds_write_b64 v{OXW}, {vr(OP,2)}"))
    for i in range(4, 8): a(f"v_mul_f32 v{OA+i}, v{OA+i}, v{RI}")
    E(cvt(OP+2, OA+4, OA+5), cvt(OP+3, OA+6, OA+7), f"s_cbranch_vccnz L_smslow{sfx}")
    OF = [OP, KW + 4, KW + 8, KW + 12]
    WOm = lambda n, il: sm(WA + 4*n, OF[il], vr(WO + (n*4 + il)*8, 8))
    SEL, RD, HD = M, M + 4, M + 8
    sel = [f"v_lshrrev_b32 v{RD}, 16, v{ONES}", f"v_cndmask_b32 v{RD}, v{RD}, 1.0, s[{sODD}:{sODD+1}]"] + [f"v_cndmask_b32 v{SEL+i}, 0, v{RD}, s[{sSEL+2*i}:{sSEL+2*i+1}]" for i in range(4)]
    z = [f"v_mov_b64 {vr(AQ+2*i,2)}, 0" for i in range(12)]
    P("e")
    E(lg.op("ow", f"ds_write_b64 v{OXW}, {vr(OP+2,2)} offset:8" if OPTS.get("ow2", 1) else f"ds_write_b128 v{OXW}, {vr(OP,4)}"))
    E(KP(2,0), KP(2,1))
    for il in range(1, 4): a(f"v_xor_b32 v{OF[il]}, {il*512}, v{OXW}")
    npre, nwo, nz = OPTS.get("npre", 6), OPTS.get("nwo", 1), OPTS.get("nz", 2)
    own = [WOm(3,0), WOm(2,0), WOm(1,0), WOm(0,0)]
    E(zw[:4], sel[:npre], own[:nwo])
    P("f")
    E(lg.need("ow"), "s_barrier")
    P("g")
    ord_ = lambda il: lg.op(("o", il), f"ds_read_b128 {vr(OF[il],4)}, v{OF[il]}")
    E(ord_(1), own[nwo:nwo+1], ord_(2), ord_(3))
    fill = sel[npre:] + z[4:6+nz]
    for k_, m in enumerate(own[nwo+1:]): E(m, KP(3,k_), fill.pop(0))
    E(fill, lg.need(("o",1)))
    P(6)
    def post(n):
        b = WA + 4*n
        return [cvt(b, b, b+1), cvt(b+1, b+2, b+3), f"v_and_or_b32 v{b}, v{b}, -2, s{sTAG}",
                f"buffer_store_dwordx2 {vr(b,2)}, v{H1ST}, {WSR}, s{sH1+n} offen {stf}"]
    p0, p1, p2, p3 = post(0), post(1), post(2), post(3)
    if not OPTS.get("prompt", 1):
        E(WOm(0,1), lg.need(("o",2)), z[0], WOm(0,2), lg.need(("o",3)), z[1], WOm(0,3), N1, z[2])
        E(WOm(1,1), N1, z[3], WOm(1,2), p0[0], WOm(1,3), N1, p0[1])
        E(WOm(2,1), N1, p0[2], WOm(2,2), p0[3], p1[0], WOm(2,3), N1, p1[1])
        E(WOm(3,1), N1, p1[2], WOm(3,2), p1[3], p2[0], WOm(3,3))
        P("h")
        E(N1, p2[1], p2[2], p2[3], "s_nop 2", p3)
    else:
        E(WOm(0,1), lg.need(("o",2)), z[0], WOm(0,2), lg.need(("o",3)), z[1], WOm(0,3), N1, z[2])
        E(WOm(1,1), N1, z[3], WOm(1,2), p0[:3], WOm(1,3), N1, p0[3])
        E(WOm(2,1), "s_nop 2", WOm(2,2), p1[:3], WOm(2,3), N1, p1[3])
        E(WOm(3,1), "s_nop 2", WOm(3,2), p2[:3], WOm(3,3))
        P("h")
        E(N1, p2[3], "s_nop 4", p3)
    P(7)
    d1, d1s, d2 = OPTS.get("d1", 250), OPTS.get("d1s", 48), OPTS.get("d2", 220)
    prev = 0
    for w in range(4):
        want = max(0, d1 - (3 - w) * d1s)
        if w > 0 and want > prev: a(f"s_cmp_lt_u32 s{S_WAVE}, {w}\ns_cbranch_scc1 L_poll1{sfx}"); prev += 8
        E(warm(max(0, want - prev))); prev = max(prev, want)
    g1, g2 = OPTS.get("g1", 120), OPTS.get("g2", 100)
    T1 = M + 24
    def ld1(b): E(f"buffer_load_dwordx4 {vr(b,4)}, v{H1LD}, {WSR}, s{sH1L} offen sc1", f"buffer_load_dwordx4 {vr(b+4,4)}, v{H1LD}, {WSR}, s{sH1L} offen offset:1024 sc1")
    def try1(b, n, re=None):
        E(f"s_waitcnt vmcnt({n+1})")
        if b == HD: P("b")
        E(d32(RD, b, SEL, True), f"v_bitop3_b32 v{T1}, v{b}, v{b+2}, s{sTAG} bitop3:0x7e", f"s_waitcnt vmcnt({n})")
        if b == HD: P("c")
        E(d32(RD, b+4, SEL, False), f"v_bitop3_b32 v{T1+1}, v{b+4}, v{b+6}, s{sTAG} bitop3:0x7e",
          f"v_or_b32 v{T1}, v{T1}, v{T1+1}", f"v_and_b32 v{T1}, 1, v{T1}", f"v_cmp_ne_u32 vcc, 0, v{T1}")
        if re is None: E("s_nop 2")
        else: ld1(re); E(N0)
    a(f"L_poll1{sfx}:")
    P("a")
    ld1(HD)
    tog = [f"v_xor_b32 v{WT}, 0x2000, v{WT}", f"v_xor_b32 v{A16}, 0x2000, v{A16}"]
    E(z[6:], tog)
    if g1:
        E(warm(g1 - 40))
        ld1(HD + 8)
    E(wv_prefetch(), warm(OPTS.get("w1", 0)))
    a(f"L_poll1b{sfx}:")
    try1(HD, 2 if g1 else 0)
    E(f"s_cbranch_vccnz L_retry1{sfx}")
    a(f"L_got1{sfx}:")
    def tail1():
        P("d")
        E(add(RD,RD,RD+1), add(RD+2,RD+2,RD+3), N1, f"v_permlane16_swap_b32 v{RD}, v{RD+2}", add(RD,RD,RD+2), cvt(RD, RD, ZERO),
          f"v_min_u32 v{RD}, s{sFFFE}, v{RD}", f"v_cndmask_b32 v{RD}, v{RD}, -1, s[{sSENT}:{sSENT+1}]")
        E(f"buffer_store_short v{RD}, v{H2ST}, {WSR}, s{sH2S} offen {stf}")
        P(8)
        E(warm(max(0, d2 - 20)), f"s_branch L_poll2{sfx}")
    tail1()
    a(f"L_retry2{sfx}:")
    if prof: a("s_add_u32 s37, s37, 1")
    if not g2:
        ld2(M, M + 4)
        spin_check(a)
        E("s_nop 3", z[:8], f"s_branch L_entry{sfx}")
    else:
        E("s_waitcnt vmcnt(0)", f"v_max3_u32 v{C0}, v{B0_}, v{B0_+1}, v{B0_+2}", f"v_max3_u32 v{C0+1}, v{B0_+3}, v{B1_}, v{B1_+1}",
          f"v_max3_u32 v{C0}, v{C0}, v{B1_+2}, v{B1_+3}", f"v_max_u32 v{C0}, v{C0}, v{C0+1}", f"v_cmp_eq_u32 vcc, -1, v{C0}",
          [f"v_mov_b64 {vr(M+2*i,2)}, {vr((B0_ if i < 2 else B1_ - 4)+2*i,2)}" for i in range(4)], z[:4 if early else 8])
        E(f"s_cbranch_vccz L_entry{sfx}")
        ld2(M, M + 4)
        spin_check(a)
        E(nops(g2 - 20))
        ld2(B0_, B1_)
        E(f"s_branch L_entry{sfx}")
    a(f"L_retry1{sfx}:")
    if g1 and OPTS.get("r1", 1) == 1:
        ld1(HD)
        try1(HD + 8, 2)
        E(f"s_cbranch_vccnz L_retry1b{sfx}")
        if prof: a(f"s_add_u32 s{sSPIN}, s{sSPIN}, 1")
        tail1()
        a(f"L_retry1b{sfx}:")
        ld1(HD + 8)
        spin_check(a)
        E(f"s_branch L_poll1b{sfx}")
    elif g1:
        try1(HD + 8, 0, HD)
        E(f"s_cbranch_vccnz L_retry1b{sfx}")
        if prof: a(f"s_add_u32 s{sSPIN}, s{sSPIN}, 1")
        tail1()
        a(f"L_retry1b{sfx}:")
        spin_check(a)
        E(nops(max(0, g1 - 60)))
        ld1(HD + 8)
        E(f"s_branch L_poll1b{sfx}")
    else:
        ld1(HD)
        spin_check(a)
        E(f"s_branch L_poll1b{sfx}")
    a(f"L_smslow{sfx}:")
    E(f"v_max3_f32 v{EX+2}, v{AQ}, v{AQ+1}, v{AQ+2}", f"v_max3_f32 v{EX+2}, v{EX+2}, v{AQ+3}, v{AQ+4}",
      f"v_max3_f32 v{EX+2}, v{EX+2}, v{AQ+5}, v{AQ+6}", f"v_max3_f32 v{EX+2}, v{EX+2}, v{AQ+7}, v{DM}", f"v_max_f32 v{EX+2}, v{EX+2}, v{DM+1}")
    for sw in ("v_permlane32_swap_b32", "v_permlane16_swap_b32"):
        E(f"v_mov_b32 v{EX}, v{EX+2}", N1, f"{sw} v{EX}, v{EX+2}", f"v_max_f32 v{EX+2}, v{EX+2}, v{EX}")
    for i in range(5):
        s0 = AQ + 2*i if i < 4 else DM
        E(f"v_sub_f32 v{EX}, v{s0}, v{EX+2}", f"v_sub_f32 v{EX+1}, v{s0+1}, v{EX+2}", ex(EX, EX), ex(EX+1, EX+1), N0)
        if i < 4: E(cvt(PX+i, EX, EX+1))
        else: E(cvt(PM0, EX, EX+1), cvt(PM1+1, EX, EX+1))
    E(N1, d32(LL, ONES, PX, True), d32(OA, VX, PX, True), d32(OA+4, VX+4, PX, True), "s_nop 3",
      d16(LL, ONES, PM0), d16(OA, KV+2, PM0), d16(OA+4, KV+2, PM1), "s_nop 7",
      f"v_rcp_f32 v{RI}, v{LL}", "s_mov_b64 vcc, 0", f"s_branch L_smback{sfx}")
    flag_spin(a, sfx, sFLG)
    a(f"s_branch L_fsback{sfx}")

def flag_spin(a, sfx, reg):
    a(f"""
    L_fs{sfx}:
    buffer_load_dword v{DUM}, v{ZERO}, {WSR}, s{reg} offen sc1
    """)
    spin_check(a)
    a(f"""
    s_waitcnt vmcnt(0)
    v_cmp_gt_u32 vcc, s{sNEED}, v{DUM}
    s_cbranch_vccnz L_fs{sfx}
    """)

def advance(a):
    a(f"""
    s_max_i32 s{sTV}, s{sS}, 0
    s_add_u32 s{sS}, s{sS}, 1
    s_xor_b32 s{sTAG}, s{sTAG}, 1
    s_add_u32 s{sVX}, s{sKX}, 0x1000000
    s_add_u32 s{sT0}, s{sS}, 1
    s_min_u32 s{sT0}, s{sT0}, 63
    s_lshl_b32 s{sT0}, s{sT0}, 13
    s_add_u32 s{sKX}, s{sKB0}, s{sT0}
    s_add_u32 s{sWARM}, s{sKX}, s{sWD}
    s_add_u32 s{sT0}, s{sS}, 3
    s_min_u32 s{sNEED}, s{sT0}, 64
    s_add_u32 s{sKVM}, s{sKVM}, 0x20000
    s_xor_b32 s{sMK}, s{sMK}, 0x2000
    """)

def gen_team(a):
    h, w = S_RANK, S_WAVE
    T = 20
    a("L_team:")
    a(f"""
    s_mov_b32 s{sSPIN}, 0
    v_lshrrev_b32 v{T}, 4, v0          ; g
    v_and_b32 v{T+1}, 15, v0           ; r
    s_lshl_b32 s{sT0}, s{w}, 11
    s_add_u32 s{sT0}, s{sT0}, {LB}
    v_lshl_add_u32 v{W16}, v0, 4, s{sT0}
    v_add_u32 v{WT}, {L_X + 0x2000}, v{W16}
    s_mov_b32 s{sWD}, s{sT0}
    s_lshl_b32 s{sT0}, s{w}, 12
    v_lshl_add_u32 v{WVB}, v0, 4, s{sT0}
    s_lshl_b32 s{sT0}, s{w}, 9
    s_add_u32 s{sT0}, s{sT0}, {LB}
    v_bfe_u32 v{T+2}, v0, 3, 1
    v_lshl_add_u32 v{XTW}, v{T+2}, 8, s{sT0}
    v_lshl_add_u32 v{XTW}, v{T}, 6, v{XTW}
    v_and_b32 v{T+2}, 7, v0
    v_lshl_add_u32 v{XTW}, v{T+2}, 3, v{XTW}
    v_lshrrev_b32 v{T+2}, 5, v0
    v_lshlrev_b32 v{XTR}, 8, v{T+2}
    v_and_b32 v{T+2}, 3, v0
    v_lshl_add_u32 v{XTR}, v{T+2}, 6, v{XTR}
    v_bfe_u32 v{T+2}, v0, 2, 3
    v_lshl_add_u32 v{XTR}, v{T+2}, 3, v{XTR}
    v_add_u32 v{XTR}, {LB}, v{XTR}
    s_lshl_b32 s{sT0}, s{w}, 9
    s_add_u32 s{sT0}, s{sT0}, {LB + L_QT}
    v_lshrrev_b32 v{T+2}, 1, v0
    v_lshl_add_u32 v{OXW}, v{T+2}, 4, s{sT0}
    ; H1ST = (8w + (l>>3))*2048 + h*64 + (l&7)*8
    s_lshl_b32 s{sT0}, s{w}, 14
    s_lshl_b32 s{sT1}, s{h}, 6
    s_add_u32 s{sT0}, s{sT0}, s{sT1}
    v_lshrrev_b32 v{T+2}, 3, v0
    v_lshl_add_u32 v{H1ST}, v{T+2}, 11, s{sT0}
    v_and_b32 v{T+2}, 7, v0
    v_lshl_add_u32 v{H1ST}, v{T+2}, 3, v{H1ST}
    v_lshlrev_b32 v{H1LD}, 8, v{T}
    v_bfe_u32 v{T+2}, v0, 2, 1
    v_lshl_add_u32 v{H1LD}, v{T+2}, 7, v{H1LD}
    v_and_b32 v{T+2}, 1, v0
    v_lshl_add_u32 v{H1LD}, v{T+2}, 6, v{H1LD}
    v_bfe_u32 v{T+2}, v0, 3, 1
    v_lshl_add_u32 v{H1LD}, v{T+2}, 5, v{H1LD}
    v_bfe_u32 v{T+2}, v0, 1, 1
    v_lshl_add_u32 v{H1LD}, v{T+2}, 4, v{H1LD}
    s_lshl_b32 s{sT0}, s{w}, 16
    s_lshl_b32 s{sT1}, s{h}, 11
    s_add_u32 s{sT0}, s{sT0}, s{sT1}
    s_add_u32 s{sH1L}, s{sT0}, {hex(WS_HOP1)}
    v_bfe_u32 v{T+2}, v0, 3, 1
    v_lshlrev_b32 v{H2ST}, 13, v{T+2}
    v_lshl_add_u32 v{H2ST}, v{T}, 3, v{H2ST}
    v_bfe_u32 v{T+2}, v0, 1, 1
    v_lshl_add_u32 v{H2ST}, v{T+2}, 5, v{H2ST}
    v_bfe_u32 v{T+2}, v0, 2, 1
    v_lshl_add_u32 v{H2ST}, v{T+2}, 2, v{H2ST}
    v_and_b32 v{T+2}, 1, v0
    v_lshl_add_u32 v{H2ST}, v{T+2}, 1, v{H2ST}
    s_lshl_b32 s{sH2S}, s{w}, 11
    s_lshr_b32 s{sT0}, s{h}, 3
    s_lshl_b32 s{sT0}, s{sT0}, 9
    s_add_u32 s{sH2S}, s{sH2S}, s{sT0}
    s_and_b32 s{sT0}, s{h}, 1
    s_lshl_b32 s{sT0}, s{sT0}, 8
    s_add_u32 s{sH2S}, s{sH2S}, s{sT0}
    s_bfe_u32 s{sT0}, s{h}, 0x20001
    s_lshl_b32 s{sT0}, s{sT0}, 6
    s_add_u32 s{sH2S}, s{sH2S}, s{sT0}
    s_add_u32 s{sH2S}, s{sH2S}, {hex(WS_HOP2)}
    s_mov_b32 s{sH2L}, {hex(WS_HOP2 - LB - L_X)}
    s_lshl_b32 s{sFLG}, s{h}, 7
    s_add_u32 s{sFLG}, s{sFLG}, {hex(FLAG_F)}
    s_lshl_b32 s{sKB0}, s{h}, 19
    s_add_u32 s{sKB0}, s{sKB0}, {hex(WS_PROJ + (4 << 24) - LB)}
    s_mov_b32 s{sODD}, 0xaaaaaaaa
    s_mov_b32 s{sODD+1}, 0xaaaaaaaa
    v_mov_b32 v{ZERO}, 0
    v_mov_b32 v{PM1}, 0
    v_mov_b32 v{PM0}, 0
    v_mov_b32 v{ONES+0}, 0x3f803f80
    v_mov_b32 v{ONES+1}, 0x3f803f80
    v_mov_b32 v{ONES+2}, 0x3f803f80
    v_mov_b32 v{ONES+3}, 0x3f803f80
    s_mov_b32 s{sSENT}, 0xff00ff00
    s_mov_b32 s{sSENT+1}, 0xff00ff00
    s_mov_b32 s{sC}, {fbits(SM_SCALE)}
    s_mov_b32 s{sLO}, {hex((127 - 60) << 23)}
    s_mov_b32 s{sRANGE}, {hex(OPTS.get('smrange', 120) << 23)}
    s_mov_b32 s{sFFFE}, 0xfffe
    s_lshl_b32 s{sT0}, s{w}, 11
    s_add_u32 s{sMK}, s{sT0}, {LB + L_X}
    s_add_u32 s{sMV}, s{sT0}, {LB + L_VX}
    s_lshl_b32 s{sT0}, s{h}, 7
    s_add_u32 s{sT0}, s{sT0}, {hex(FLAG_T)}
    s_cmp_eq_u32 s{w}, 0
    s_cselect_b32 s{sTF}, s{sT0}, {hex(OOB)}
    """)
    for i in range(4):
        a(f"s_mov_b32 s{sSEL+2*i}, {hex(0x03030303 << (2*i))}\ns_mov_b32 s{sSEL+2*i+1}, {hex(0x03030303 << (2*i))}\ns_mov_b32 s{sH1+i}, {hex(WS_HOP1 + i*65536)}")
    for n in range(4): a(f"buffer_store_dwordx2 {vr(PM0,2)}, v{H1ST}, {WSR}, s{sH1+n} offen sc1")
    a(f"""
    v_mov_b32 v{T+2}, 0xffff
    buffer_store_short v{T+2}, v{H2ST}, {WSR}, s{sH2S} offen sc1
    s_mul_i32 s{sT0}, s{w}, 4
    s_lshr_b32 s{sT0}, 0x7640, s{sT0}
    s_and_b32 s{sT0}, s{sT0}, 15
    s_lshl_b32 s{sT0}, s{sT0}, 12
    s_lshl_b32 s{sT1}, s{h}, 7
    s_add_u32 s{sT0}, s{sT0}, s{sT1}
    s_add_u32 s{sT0}, s{sT0}, {hex(WS_FLAG + OPTS.get('noclear', 0) * OOB)}
    v_and_b32 v{T+3}, 31, v0
    v_lshlrev_b32 v{T+3}, 2, v{T+3}
    v_lshrrev_b32 v{T+4}, 5, v0
    v_lshl_add_u32 v{T+3}, v{T+4}, 12, v{T+3}
    buffer_store_dword v{ZERO}, v{T+3}, {WSR}, s{sT0} offen sc1
    """)
    set_srd(a, S_SRD2, S_DBG, 256)
    a(f"""
    s_lshl_b32 s{sT0}, 1, s{S_XCC}
    v_mov_b32 v{T+2}, s{sT0}
    s_cmp_eq_u32 s{w}, 0
    s_cselect_b32 s{sT1}, 0, {hex(OOB)}
    s_mov_b64 exec, 1
    buffer_atomic_or v{T+2}, v{ZERO}, s[52:55], s{sT1} offen offset:128
    s_mov_b64 exec, -1
    """)
    D0, D1, R0 = T + 6, T + 7, T + 8
    a(f"""
    v_bfe_u32 v{T+2}, v0, 4, 1          ; lo
    v_lshrrev_b32 v{T+3}, 5, v0         ; a
    s_lshl_b32 s{sT0}, s{w}, 1
    v_or_b32 v{T+4}, s{sT0}, v{T+2}
    v_lshlrev_b32 v{T+4}, 1, v{T+4}
    v_xor_b32 v{T+4}, v{T+4}, v{T+1}
    v_lshlrev_b32 v{T+4}, 4, v{T+4}
    v_lshl_add_u32 v{T+5}, v{T+2}, 4, v{T+3}
    v_add_u32 v{T+5}, s{sT0}, v{T+5}
    v_lshl_add_u32 v{D0}, v{T+5}, 13, v{T+4}
    s_lshl_b32 s{sT1}, s{h}, 8
    v_add_u32 v{D0}, s{sT1}, v{D0}
    s_lshl_b32 s{sT0}, s{w}, 4
    v_add_u32 v{T+5}, s{sT0}, v{T}
    v_lshl_add_u32 v{D1}, v{T+5}, 10, v{T+4}
    s_lshl_b32 s{sT1}, s{h}, 17
    v_add_u32 v{D1}, s{sT1}, v{D1}
    v_lshrrev_b32 v{T+2}, 5, v0
    v_lshlrev_b32 v{R0}, 12, v{T+2}
    v_bfe_u32 v{T+2}, v0, 3, 1          ; hf
    v_lshl_add_u32 v{R0}, v{T+2}, 11, v{R0}
    v_lshlrev_b32 v{T+4}, 2, v{T+2}
    v_bfe_u32 v{T+2}, v0, 4, 1          ; gl
    v_lshl_add_u32 v{R0}, v{T+2}, 10, v{R0}
    v_lshl_add_u32 v{T+4}, v{T+2}, 1, v{T+4}
    v_bfe_u32 v{T+2}, v0, 2, 1          ; lo
    v_lshl_add_u32 v{R0}, v{T+2}, 8, v{R0}
    v_add_u32 v{T+4}, v{T+4}, v{T+2}
    s_lshl_b32 s{sT0}, s{w}, 1
    v_xor_b32 v{T+4}, s{sT0}, v{T+4}
    v_lshl_add_u32 v{R0}, v{T+4}, 5, v{R0}
    v_and_b32 v{T+2}, 3, v0
    v_lshl_add_u32 v{R0}, v{T+2}, 3, v{R0}
    v_xor_b32 v{R0+1}, 32, v{R0}
    v_bfe_u32 v{T+2}, v0, 3, 1
    v_mul_u32_u24 v{T+2}, {2048 + 128 + 32}, v{T+2}
    v_xor_b32 v{R0+4}, v{T+2}, v{R0}
    v_xor_b32 v{R0+5}, {2048 + 128}, v{R0+4}
    s_mov_b32 s50, 0x400000
    s_mov_b32 s51, 0x20000
    s_lshl_b32 s{sS}, s{w}, 10
    """)
    ptr = [S_WQB, S_WKB, S_WOB, S_WVB]
    MORD = [int(x) for x in str(OPTS.get("tord", "2013")).zfill(4)]
    def wdma(q):
        mt, j = MORD[q >> 3], q & 7
        if j == 0: a(f"s_mov_b32 s48, s{ptr[mt]}\ns_and_b32 s49, s{ptr[mt]+1}, 0xffff")
        for i in range(4):
            u, gh = i >> 1, i & 1
            if mt == 2: so = (64 * (j & 1) + 8 * u + 4 * gh) * 1024 + (j >> 1) * 256
            else: so = (64 * j + 32 * u + 8 * gh) * 8192
            a(f"s_add_u32 m0, s{sS}, {j*16384 + i*4096}\ns_mov_b32 s{sT0}, {so}\nbuffer_load_dwordx4 v{D1 if mt == 2 else D0}, s[48:51], s{sT0} offen {'nt' if OPTS.get('tnt') else ''} lds")
    stamp(a, 4, 40)
    for q in range(7): wdma(q)
    stamp(a, 5, 40)
    for q in range(32):
        mt, j = MORD[q >> 3], q & 7
        a(f"s_waitcnt vmcnt({4*min(6, 31-q)})\ns_barrier")
        if q in (0, 8, 16, 24): stamp(a, {0: 6, 8: 7, 16: 8, 24: 9}[q], 40)
        if q == 0:
            a(f"""
            v_mov_b32 v{T+2}, 1
            s_cmp_eq_u32 s{w}, 0
            s_cselect_b32 s{sT1}, 0, {hex(OOB)}
            s_mov_b64 exec, 1
            buffer_atomic_add v{T+2}, v{ZERO}, s[52:55], s{sT1} offen
            s_mov_b64 exec, -1
            """)
        if q + 7 < 32: wdma(q + 7)
        rb = R0 + 4 if mt == 2 else R0
        a(f"v_add_u32 v{R0+2}, {j*16384}, v{rb}\nv_add_u32 v{R0+3}, {j*16384}, v{rb+1}")
        def reads(wv):
            for tl in range(2):
                for u in range(2):
                    for x in range(2):
                        o = 4 * u + 2 * x
                        if mt == 0: d = ar((tl*8 + (j ^ 2*wv))*8 + o, 2)
                        elif mt == 1: d = ar(128 + (tl*8 + (j ^ 2*wv))*8 + o, 2)
                        elif mt == 2: d = vr(WO + ((j >> 1)*4 + ((2*(j & 1) + tl) ^ wv))*8 + o, 2)
                        else: d = vr(ST + 8*tl + o, 2)
                        a(f"ds_read_b64_tr_b16 {d}, v{R0+2+tl} offset:{u*8192 + x*512}")
        if mt == 3: reads(0)
        else:
            for wv in range(4):
                if wv < 3: a(f"s_cmp_lg_u32 s{w}, {wv}\ns_cbranch_scc1 L_wr_{q}_{wv+1}")
                reads(wv)
                if wv < 3: a(f"s_branch L_wr_{q}_e\nL_wr_{q}_{wv+1}:")
            a(f"L_wr_{q}_e:")
        a("s_waitcnt lgkmcnt(0)")
        if mt == 3:
            a(f"s_barrier\nv_add_u32 v{R0+2}, {j*16384}, v{WVB}")
            for tl in range(2):
                for u in range(2):
                    a(f"ds_write_b128 v{R0+2}, {vr(ST + 8*tl + 4*u, 4)} offset:{tl*2048 + u*1024}")
            a("s_waitcnt lgkmcnt(0)")
    a(f"s_lshl_b32 s{sT0}, s{w}, 15\nv_add_u32 v{WVB}, s{sT0}, v{WVB}")
    stamp(a, 1)
    a(f"""
    v_and_b32 v{T+2}, 1, v0
    v_cmp_eq_u32 vcc, 1, v{T+2}
    v_mov_b32 v{T+3}, 0x44444444
    v_mov_b32 v{T+4}, 0xeeeeeeee
    v_cndmask_b32 v{IDX}, v{T+3}, v{T+4}, vcc
    """)
    set_srd(a, S_SRD1, S_MEM0, 8192)
    a(f"""
    v_bfe_u32 v{T+2}, v0, 1, 3
    v_lshlrev_b32 v{T+3}, 10, v{T+2}
    v_lshrrev_b32 v{T+2}, 5, v0
    v_lshl_add_u32 v{T+3}, v{T+2}, 6, v{T+3}
    v_bfe_u32 v{T+2}, v0, 4, 1
    v_lshl_add_u32 v{T+3}, v{T+2}, 4, v{T+3}
    v_and_b32 v{T+2}, 1, v0
    v_lshl_add_u32 v{T+3}, v{T+2}, 3, v{T+3}
    s_lshl_b32 s{sT0}, s{w}, 8
    buffer_load_dwordx2 {vr(KW,2)}, v{T+3}, s[48:51], s{sT0} offen
    buffer_load_dwordx2 {vr(KW+2,2)}, v{T+3}, s[48:51], s{sT0} offen offset:32
    buffer_load_dwordx2 {vr(KW+4,2)}, v{T+3}, s[48:51], s{sT0} offen offset:128
    buffer_load_dwordx2 {vr(KW+6,2)}, v{T+3}, s[48:51], s{sT0} offen offset:160
    v_lshlrev_b32 v{A16}, 4, v0
    v_add_u32 v{A16}, {LB + L_X}, v{A16}
    s_mov_b32 s{sT0}, 0x05040100
    s_mov_b32 s{sT1}, 0x07060302
    s_waitcnt vmcnt(0)
    """)
    for jj in range(2):
        x, y, d = KW + 4*jj, KW + 4*jj + 2, M + 4*jj
        a(f"""
        v_perm_b32 v{d}, v{y}, v{x}, s{sT0}
        v_perm_b32 v{d+1}, v{y}, v{x}, s{sT1}
        v_perm_b32 v{d+2}, v{y+1}, v{x+1}, s{sT0}
        v_perm_b32 v{d+3}, v{y+1}, v{x+1}, s{sT1}
        v_min_u32 v{d}, -2, v{d}
        v_min_u32 v{d+1}, -2, v{d+1}
        v_min_u32 v{d+2}, -2, v{d+2}
        v_min_u32 v{d+3}, -2, v{d+3}
        """)
    a(f"""
    L_team_init:
    buffer_load_dword v{AQ}, v{ZERO}, s[52:55], 0 offen sc1
    """)
    spin_check(a)
    a(f"""
    s_waitcnt vmcnt(0)
    v_cmp_gt_u32 vcc, 32, v{AQ}
    s_cbranch_vccnz L_team_init
    buffer_load_dword v{AQ}, v{ZERO}, s[52:55], 0 offen offset:128 sc1
    s_mov_b32 s{sNEED}, 2
    """)
    flag_spin(a, "_pre", sFLG)
    a(f"""
    v_readfirstlane_b32 s{sT1}, v{AQ}
    s_mov_b32 m0, s{sMK}
    s_mov_b32 s{sKX}, s{sKB0}
    buffer_load_dwordx4 v{W16}, {WSR}, s{sKX} offen sc1 lds
    buffer_load_dwordx4 v{W16}, {WSR}, s{sKX} offen offset:1024 sc1 lds
    s_mov_b32 s{sS}, -1
    s_mov_b32 s{sTAG}, 0
    s_mov_b32 s{sUSEB}, 0
    s_lshl_b32 s{sKVM}, s{h}, 12
    s_lshl_b32 s{sT0}, s{w}, 10
    s_sub_u32 s{sKVM}, s{sKVM}, s{sT0}
    s_add_u32 s{sKVM}, s{sKVM}, {hex(WS_KVM - 2*0x20000 - LB)}
    """)
    advance(a)
    a.emit(wv_prefetch())
    for i in range(12): a(f"v_mov_b64 {vr(AQ+2*i,2)}, 0")
    a("s_waitcnt vmcnt(0) lgkmcnt(0)")
    stamp(a, 2)
    if OPTS.get("tprof"):
        for k in range(10): a(f"s_mov_b32 s{28+k}, 0")
        a("s_memtime s[26:27]\ns_waitcnt lgkmcnt(0)")
    a.emit(ms_addrs())
    a.emit(warm_addr())
    a(f"""
    s_bcnt1_i32_b32 s{sT1}, s{sT1}
    s_cmp_eq_u32 s{sT1}, {2 if OPTS.get('forceslow') else 1}
    s_cbranch_scc0 L_entry_x
    s_branch L_entry_f
    """)
    step_loop(a, "_f", "")
    step_loop(a, "_x", "sc1")
    a(f"""
    L_team_last:
    s_waitcnt vmcnt(0)
    s_add_u32 s{sKVM}, s{sKVM}, 0x20000
    v_mov_b32 v{DUM}, 64
    buffer_store_dwordx4 {vr(KV,4)}, v{W16}, {WSR}, s{sKVM} offen sc1
    s_waitcnt vmcnt(0)
    s_barrier
    buffer_store_dword v{DUM}, v{ZERO}, {WSR}, s{sTF} offen sc1
    """)
    stamp(a, 3)
    if OPTS.get("tprof"):
        a(f"s_lshl_b32 s4, s{h}, 2\ns_add_u32 s4, s4, s{w}\ns_lshl_b32 s4, s4, 6\ns_add_u32 s4, s4, {hex(WS_STAMP + 0x10000)}")
        for k in range(9): a(f"v_mov_b32 v20, s{28+k}\nbuffer_store_dword v20, v{ZERO}, {WSR}, s4 offen offset:{4*k}")
        a(f"v_mov_b32 v20, s{sSPIN}\nbuffer_store_dword v20, v{ZERO}, {WSR}, s4 offen offset:36")
        a(f"v_mov_b32 v20, s37\nbuffer_store_dword v20, v{ZERO}, {WSR}, s4 offen offset:40")
    a("s_waitcnt vmcnt(0)\ns_endpgm")
```

```python
from common import *

NINF = "0xff800000"
def mf(D, A, B, Cc): return f"v_mfma_f32_16x16x32_bf16 {D}, {A}, {B}, {Cc}"
def mf16(D, A, B): return f"v_mfma_f32_16x16x16_bf16 {D}, {A}, {B}, {D}"

A16, T0, T1, T2, T3, ZERO, XTW, XTR, GT, GTN, QA, CW, CR, FL = 2, 3, 4, 5, 6, 7, 8, 9, 10, 11, 12, 13, 14, 248
ONES, CM, GA, PMZ, PX, S, LL, KVM, KM, Q, K, V, OA, ACC, SQ = 16, 20, 31, 32, 36, 40, 52, 56, 72, 88, 104, 136, 168, 200, 232
sHP, sSPIN, sT0, sT1, sT2, sHD, sSEG, sNXT, sPRV, sRDY, sM0, sSRC, sTF, sKV0, sPB, sP0, sCB, sFF = range(56, 74)
L_CTX, L_XT = 98304, 131072

def spin(a): a(f"s_add_u32 s{sSPIN}, s{sSPIN}, 1\ns_cmp_gt_u32 s{sSPIN}, {SPIN_MAX}\ns_cbranch_scc1 L_exit")

def qkv_dma(a, seg):
    l = a.newlabel("b_nodma")
    a(f"""
    s_bitcmp1_b32 s{seg}, 2
    s_cbranch_scc1 {l}
    s_lshr_b32 s{sT1}, s{seg}, 4
    {l}_c:
    v_cmp_lt_u32 vcc, s{sT1}, v{FL+1}
    s_cbranch_vccnz {l}_go
    buffer_load_dword v{FL+1}, v{ZERO}, {WSR}, s{sFF} offen sc1
    """)
    spin(a)
    a(f"s_waitcnt vmcnt(0)\ns_branch {l}_c\n{l}_go:\ns_lshl_b32 s{sT0}, s{seg}, 9\ns_add_u32 s{sT0}, s{sT0}, s{sSRC}")
    for m in range(3):
        a(f"s_add_u32 m0, s{sM0}, {m*8192}\ns_add_u32 s{sT1}, s{sT0}, {hex(m << 24)}")
        for i in range(4): a(f"buffer_load_dwordx4 v{A16}, {WSR}, s{sT1} offen offset:{1024*i} sc1 lds")
    a(f"s_lshl_b32 s{sT0}, s{seg}, 3\nbuffer_load_dword v{GTN}, v{GA}, {WSR}, s{sT0} offen sc1\n{l}:")

def kvm_loads(seg):
    return [f"s_lshl_b32 s{sT0}, s{seg}, 13", f"s_add_u32 s{sT0}, s{sT0}, s{sKV0}"] + \
           [f"buffer_load_dwordx4 {vr(KVM+4*t,4)}, v{A16}, {WSR}, s{sT0} offen offset:{1024*t} sc1" for t in range(4)]

def signal(a):
    a(f"""
    s_lshl_b32 s{sT0}, s{sPRV}, 2
    s_add_u32 s{sT0}, s{sT0}, s{sCB}
    s_bitcmp1_b32 s{sPRV}, 2
    s_cselect_b32 s{sT0}, {hex(OOB)}, s{sT0}
    v_mov_b32 v{T0}, 1
    s_mov_b64 exec, 1
    buffer_atomic_add v{T0}, v{ZERO}, {WSR}, s{sT0} offen
    s_mov_b64 exec, -1
    """)

def gen_barr(a, next_label):
    w = S_WAVE
    a("L_barr:")
    set_srd(a, S_SRD1, S_WOB, 0x400000)
    D0, RB = Q, K
    a(f"""
    v_lshlrev_b32 v{A16}, 4, v0
    v_mov_b32 v{ZERO}, 0
    s_mov_b32 s{sSPIN}, 0
    v_lshrrev_b32 v{T0}, 4, v0
    v_and_b32 v{T1}, 15, v0
    v_lshlrev_b32 v{T2}, 1, v{T0}
    v_xor_b32 v{T2}, v{T2}, v{T1}
    v_lshlrev_b32 v{T2}, 4, v{T2}
    v_lshl_add_u32 v{D0}, v{T0}, 10, v{T2}
    v_xor_b32 v{D0+1}, 128, v{D0}
    s_lshl_b32 s{sM0}, s{w}, 15
    s_lshl_b32 s{sT2}, s{sHP}, 18
    s_lshl_b32 s{sT0}, s{w}, 8
    s_add_u32 s{sT2}, s{sT2}, s{sT0}
    """)
    def wdma(hh):
        for p in range(32):
            a(f"s_add_u32 m0, s{sM0}, {p*1024}\ns_add_u32 s{sT0}, s{sT2}, {hh*131072 + p*4096}\nbuffer_load_dwordx4 v{D0+(p&1)}, s[48:51], s{sT0} offen lds")
    def wread(hh):
        for t in range(4):
            a(f"s_waitcnt vmcnt({24 - 8*t})")
            for ct in range(8):
                for x in range(2):
                    a(f"ds_read_b64_tr_b16 {ar((ct*8 + hh*4 + t)*4 + 2*x, 2)}, v{RB+ct} offset:{t*8192 + x*4096}")
        a("s_waitcnt lgkmcnt(0)")
    wdma(0)
    a(f"""
    v_lshrrev_b32 v{T2}, 2, v0
    v_lshl_add_u32 v{RB}, v{T2}, 8, s{sM0}
    v_and_b32 v{T2}, 7, v{T2}
    v_lshl_add_u32 v{RB}, v{T2}, 5, v{RB}
    v_and_b32 v{T2}, 3, v0
    v_lshl_add_u32 v{RB}, v{T2}, 3, v{RB}
    """)
    for ct in range(1, 8): a(f"v_xor_b32 v{RB+ct}, {32*ct}, v{RB}")
    wread(0); wdma(1)
    a(f"""
    s_lshr_b32 s{sT0}, s{w}, 1
    s_lshl1_add_u32 s{sHD}, s{sHP}, s{sT0}         ; head of this wave
    s_and_b32 s{sT1}, s{w}, 1
    ; transpose addresses
    s_lshl_b32 s{sT2}, s{w}, 12
    s_add_u32 s{sT2}, s{sT2}, {L_XT}
    v_bfe_u32 v{T3}, v0, 3, 1
    v_lshl_add_u32 v{XTW}, v{T3}, 8, s{sT2}
    v_lshl_add_u32 v{XTW}, v{T0}, 6, v{XTW}
    v_and_b32 v{T3}, 7, v0
    v_lshl_add_u32 v{XTW}, v{T3}, 3, v{XTW}
    v_lshrrev_b32 v{T3}, 5, v0
    v_lshl_add_u32 v{XTR}, v{T3}, 8, s{sT2}
    v_and_b32 v{T3}, 3, v0
    v_lshl_add_u32 v{XTR}, v{T3}, 6, v{XTR}
    v_bfe_u32 v{T3}, v0, 2, 3
    v_lshl_add_u32 v{XTR}, v{T3}, 3, v{XTR}
    ; q/k/v read base, ctx write / read base, gate address
    s_mul_i32 s{sT2}, s{sT0}, 24576
    v_add_u32 v{QA}, s{sT2}, v{A16}
    s_lshl_b32 s{sM0}, s{sT1}, 12
    s_lshl_b32 s{sSRC}, s{sHD}, 19
    s_add_u32 s{sSRC}, s{sSRC}, s{sM0}
    s_add_u32 s{sSRC}, s{sSRC}, {hex(WS_PROJ + (3 << 24))}
    s_add_u32 s{sM0}, s{sM0}, s{sT2}
    s_lshl1_add_u32 s{sT2}, s{sT1}, s{sT0}
    s_lshl_b32 s{sT2}, s{sT2}, 12
    s_add_u32 s{sT2}, s{sT2}, {L_CTX}
    v_add_u32 v{CW}, s{sT2}, v{A16}
    v_add_u32 v{CR}, {L_CTX}, v{A16}
    s_lshl_b32 s{sT2}, s{sT1}, 4
    v_add_u32 v{T1}, s{sT2}, v{T1}
    v_lshlrev_b32 v{GA}, 2, v{T1}
    v_add_u32 v{GA}, {hex(WS_GATE)}, v{GA}
    v_lshlrev_b32 v{T0}, 2, v{T0}
    v_sub_u32 v{T1}, v{T1}, v{T0}
    v_mov_b32 v{T3}, {NINF}
    s_lshl_b32 s{sTF}, s{sHD}, 7
    s_add_u32 s{sFF}, s{sTF}, {hex(FLAG_F)}
    s_add_u32 s{sTF}, s{sTF}, {hex(FLAG_T)}
    s_lshl_b32 s{sKV0}, s{sHD}, 12
    s_add_u32 s{sKV0}, s{sKV0}, {hex(WS_KVM)}
    s_lshl2_add_u32 s{sPB}, s{sHP}, s{w}
    s_lshl_b32 s{sPB}, s{sPB}, 12
    s_add_u32 s{sPB}, s{sPB}, {hex(WS_PART + 32*16384)}
    s_cmp_eq_u32 s{w}, 0
    s_cselect_b32 s{sCB}, {hex(CNT_B)}, {hex(OOB)}
    """.replace(f"s_cselect_b32 s{sCB}, {hex(CNT_B)}, {hex(OOB)}", f"s_mov_b32 s{sCB}, {hex(OOB)}\ns_cmov_b32 s{sCB}, {hex(CNT_B)}"))
    for i in range(8):
        a(f"v_cmp_gt_i32 vcc, {16*(i>>2) + (i&3)}, v{T1}\nv_mov_b32 v{ONES+(i&3)}, 0x3f803f80\ns_nop 0\nv_cndmask_b32 v{CM+i}, 0, v{T3}, vcc")
    a(f"v_mov_b32 v{PMZ+1}, 0\nv_mov_b32 v{PMZ+2}, 0")
    wread(1)
    a(f"""
    s_lshl_b32 s{sT0}, s{sHD}, 7
    s_add_u32 s{sT0}, s{sT0}, {hex(WS_FLAG + 16)}
    v_lshl_add_u32 v{T0}, v0, 2, s{sT0}
    v_and_b32 v{T1}, 7, v0
    v_lshlrev_b32 v{T1}, 7, v{T1}
    v_add_u32 v{T1}, {hex(CNT_GATE)}, v{T1}
    v_cmp_gt_u32 vcc, 2, v0
    v_mov_b32 v{FL+1}, 0
    s_nop 0
    v_cndmask_b32 v{T0}, v{T1}, v{T0}, vcc
    v_cndmask_b32 v{T1}, 16, 32, vcc
    L_b_w0:
    buffer_load_dword v{T2}, v{T0}, {WSR}, 0 offen sc1
    """)
    spin(a)
    a(f"""
    s_waitcnt vmcnt(0)
    v_cmp_ne_u32 vcc, v{T1}, v{T2}
    s_cbranch_vccnz L_b_w0
    v_readlane_b32 s{sNXT}, v{V_TAB}, s{S_TASK}
    s_mov_b32 s{sSEG}, 4
    s_mov_b32 s{sRDY}, 0
    s_barrier
    """)
    stamp(a, 13)
    qkv_dma(a, sNXT)
    a.emit(kvm_loads(sNXT))
    a(f"""
    L_b_round:
    s_mov_b32 s{sPRV}, s{sSEG}
    s_mov_b32 s{sSEG}, s{sNXT}
    s_add_u32 s{S_TASK}, s{S_TASK}, 1
    s_xor_b32 s{sT0}, s{sM0}, -1
    v_readlane_b32 s{sNXT}, v{V_TAB}, s{S_TASK}
    s_cmp_ge_u32 s{sM0}, 49152
    s_cselect_b32 s{sT2}, -49152, 49152
    s_add_u32 s{sM0}, s{sM0}, s{sT2}
    s_waitcnt vmcnt(0)
    s_barrier
    v_sub_f32 v{GT}, 1.0, v{GTN}
    s_and_b32 s{sT1}, s{w}, 1
    s_lshl_b32 s{sT1}, s{sT1}, 10
    v_add_u32 v{T1}, s{sT1}, v{QA}
    """.replace("s_cselect_b32 s%d, -49152, 49152" % sT2, f"s_mov_b32 s{sT2}, 49152\ns_cmov_b32 s{sT2}, -49152").replace(f"    s_xor_b32 s{sT0}, s{sM0}, -1\n", ""))
    for t in range(4):
        a(f"ds_read_b128 {vr(Q+4*t,4)}, v{T1} offset:{t*2048}")
        for kt in range(2): a(f"ds_read_b128 {vr(K+4*(2*t+kt),4)}, v{QA} offset:{8192 + (2*t+kt)*1024}")
    signal(a)
    a(f"""
    L_b_chk:
    v_max3_u32 v{T0}, v{KVM}, v{KVM+4}, v{KVM+8}
    v_max_u32 v{T0}, v{T0}, v{KVM+12}
    v_cmp_eq_u32 vcc, -1, v{T0}
    s_cbranch_vccnz L_b_late
    """)
    for t in range(4):
        a(f"ds_write2st64_b32 v{XTW}, v{KVM+4*t}, v{KVM+4*t+1} offset0:{2*t} offset1:{2*t+8}")
    a("s_waitcnt lgkmcnt(4)")
    D0_, D1_, DM = S, S + 4, S + 8
    for t in range(4):
        for kt in range(2):
            d = vr(S + 4*kt, 4)
            a(mf(d, vr(K+4*(2*t+kt),4), vr(Q+4*t,4), vr(CM+4*kt,4) if t == 0 else d))
            a(f"ds_read_b64_tr_b16 {vr(KM+4*t+2*kt,2)}, v{XTR} offset:{kt*2048 + t*512}")
    for f in range(6): a(f"ds_read_b128 {vr(V+4*f,4)}, v{QA} offset:{16384 + f*1024}")
    qkv_dma(a, sNXT)
    a("s_waitcnt lgkmcnt(6)")
    for t in range(4):
        a(mf(vr(DM,4), vr(KM+4*t,4), vr(Q+4*t,4), "0" if t == 0 else vr(DM,4)))
        if t < 2: a(f"ds_read_b128 {vr(V+4*(6+t),4)}, v{QA} offset:{16384 + (6+t)*1024}")
    vals = [S + i for i in range(10)]
    a(f"v_add_u32 v{QA}, s{sT2}, v{QA}")
    a(f"v_max_f32 v{T0}, v{S}, v{S+1}")
    for i in range(2, 8, 2): a(f"v_max3_f32 v{T0}, v{T0}, v{S+i}, v{S+i+1}")
    a(f"s_nop 2\nv_max3_f32 v{T0}, v{T0}, v{DM}, v{DM+1}")
    for sw in ("v_permlane32_swap_b32", "v_permlane16_swap_b32"):
        a(f"v_mov_b32 v{T1}, v{T0}\ns_nop 1\n{sw} v{T1}, v{T0}\nv_max_f32 v{T0}, v{T0}, v{T1}")
    for v in vals: a(f"v_sub_f32 v{v}, v{v}, v{T0}")
    for v in vals: a(f"v_exp_f32 v{v}, v{v}")
    for i in range(4): a(f"v_cvt_pk_bf16_f32 v{PX+i}, v{S+2*i}, v{S+2*i+1}")
    a(f"v_cvt_pk_bf16_f32 v{PMZ}, v{DM}, v{DM+1}\nv_cvt_pk_bf16_f32 v{PMZ+3}, v{DM}, v{DM+1}\ns_waitcnt lgkmcnt(0)")
    a(mf(vr(LL,4), vr(ONES,4), vr(PX,4), "0"))
    for f in range(8):
        a(mf(vr(OA+4*f,4), vr(V+4*f,4), vr(PX,4), "0"))
        if f == 5: a(mf16(vr(LL,4), vr(ONES,2), vr(PMZ,2)))
    post = []
    for t in range(4):
        b = OA + 8*t
        post.append([f"v_mul_f32 v{b+i}, v{b+i}, v{T0}" for i in range(8)] + [f"v_cvt_pk_bf16_f32 v{SQ+4*t+i}, v{b+2*i}, v{b+2*i+1}" for i in range(4)] +
                    [f"ds_write_b128 v{CW}, {vr(SQ+4*t,4)} offset:{t*1024}"])
    for f in range(8):
        a(mf16(vr(OA+4*f,4), vr(KVM+4*(f>>1)+2,2), vr(PMZ+2*(f&1),2)))
        if f == 5: a(f"v_rcp_f32 v{T0}, v{LL}")
        if f == 6: a(f"v_mul_f32 v{T0}, v{T0}, v{GT}")
    for p in post: a.emit(p)
    a(f"""
    buffer_load_dword v{FL+1}, v{ZERO}, {WSR}, s{sFF} offen sc1
    v_xor_b32 v{CW}, 0x4000, v{CW}
    s_mul_i32 s{sP0}, s{sSEG}, {PART_T // 8}
    s_add_u32 s{sP0}, s{sP0}, s{sPB}
    s_waitcnt lgkmcnt(0)
    s_barrier
    """)
    CF = K
    for tt in range(2):
        for k in range(8):
            if tt == 0: a(f"ds_read_b128 {vr(CF+4*k,4)}, v{CR} offset:{k*1024}")
    ms = []
    acc = lambda u: ACC + 4*(u & 7)
    for u in range(16):
        tt, ct = u >> 3, u & 7
        d = vr(acc(u), 4)
        for k in range(8): ms.append(mf(d, ar((ct*8 + k)*4, 4), vr(CF + 32*tt + 4*k, 4), "0" if k == 0 else d))
    def epi(c):
        b = acc(2*c); q = SQ + 4*(c & 3)
        return [f"v_cvt_pk_bf16_f32 v{q+i}, v{b+2*i}, v{b+2*i+1}" for i in range(4)] + \
               [f"buffer_store_dwordx4 {vr(q,4)}, v{A16}, {WSR}, s{sP0} offen offset:{(c & 3)*1024} sc1"]
    G = Gaps(ms)
    a("s_waitcnt lgkmcnt(7)")
    for k in range(7): G.add(k, f"s_waitcnt lgkmcnt({6-k})")
    for k in range(8): G.add(8 + k, f"ds_read_b128 {vr(CF+32+4*k,4)}, v{CR} offset:{8192 + k*1024}")
    G.add(40, "s_waitcnt lgkmcnt(0)", f"v_xor_b32 v{CR}, 0x4000, v{CR}")
    for c in range(7):
        e = epi(c); g = 16*(c+1) + 7
        if c == 4: G.add(g - 1, f"s_add_u32 s{sP0}, s{sP0}, {PART_T}")
        G.add(g, *e[:2]); G.add(g + 1, *e[2:4]); G.add(g + 2, e[4])
    kl = kvm_loads(sNXT)
    G.add(92, *kl[:2])
    for k in range(4): G.add(93 + 2*k, kl[2+k])
    G.emit(a)
    a("s_nop 7"); a.emit(epi(7))
    a(f"""
    s_bitcmp1_b32 s{sNXT}, 2
    s_cbranch_scc0 L_b_round
    s_mov_b32 s{sPRV}, s{sSEG}
    s_waitcnt vmcnt(0)
    s_barrier
    """)
    signal(a)
    stamp(a, 14)
    a(f"s_branch {next_label}")
    a("L_b_late:")
    a.emit(kvm_loads(sSEG))
    spin(a)
    a("s_waitcnt vmcnt(0)\ns_branch L_b_chk")

SEL, RD, RING, OA_ = 8, 16, 64, 24
sCUR, sSTG, sLO, sOO, sBC = 61, 62, 64, 65, 66
def gen_red(a, next_label):
    w = S_WAVE
    a("L_red:")
    set_srd(a, S_SRD1, S_OUT, 2048 * 512 * 2)
    a(f"""
    v_lshlrev_b32 v{A16}, 4, v0
    v_mov_b32 v{ZERO}, 0
    s_mov_b32 s{sSPIN}, 0
    v_and_b32 v{T0}, 4, v{V_TAB}
    v_cmp_ne_u32 vcc, 0, v{T0}
    v_bfe_u32 v{T0}, v{V_TAB}, 4, 6
    v_lshrrev_b32 v{T1}, 3, v{T0}
    s_lshr_b32 s{sT0}, vcc_lo, s{S_TASK}
    s_ff1_i32_b32 s{sT0}, s{sT0}
    s_bfm_b32 s{sT0}, s{sT0}, s{S_TASK}
    s_cmp_eq_u32 s{sSTG}, 0
    s_cselect_b32 s{sT1}, s{sT0}, 0
    v_lshlrev_b32 v{T1}, 7, v{T1}
    v_add_u32 v{T1}, {hex(CNT_CTX)}, v{T1}
    v_lshlrev_b32 v{T0}, 6, v{T0}
    v_add_u32 v{T0}, {hex(CNT_B)}, v{T0}
    v_cmp_gt_u32 vcc, 32, v0
    v_and_b32 v{T2}, 15, v0
    v_lshrrev_b32 v{T3}, 4, v0
    v_cndmask_b32 v{T0}, v{T0}, v{T1}, vcc
    v_cndmask_b32 v{T1}, 16, 32, vcc
    buffer_load_dword v{RD}, v{T0}, {WSR}, 0 offen sc1
    v_lshlrev_b32 v{OA_}, 10, v{T2}
    v_lshl_add_u32 v{OA_}, v{T3}, 4, v{OA_}
    """)
    a(f"""
    v_bfe_u32 v{RD+1}, v0, 2, 1
    v_lshlrev_b32 v{RD+1}, 1, v{RD+1}
    v_sub_u32 v{RD+1}, v{T3}, v{RD+1}
    v_bfe_u32 v{RD+2}, v0, 3, 1
    v_bfe_u32 v{RD+3}, v0, 1, 1
    v_lshl_add_u32 v{RD+2}, v{RD+2}, 1, v{RD+3}
    v_lshl_add_u32 v{RD+1}, v{RD+1}, 2, v{RD+2}
    v_and_b32 v{RD+2}, 1, v0
    v_lshlrev_b32 v{RD+2}, 4, v{RD+2}
    v_mov_b32 v{RD+3}, 0x3f80
    v_lshlrev_b32 v{RD+2}, v{RD+2}, v{RD+3}
    """)
    for i in range(8): a(f"v_cmp_eq_u32 vcc, {i}, v{RD+1}\ns_nop 1\nv_cndmask_b32 v{SEL+i}, 0, v{RD+2}, vcc")
    a(f"""
    v_readlane_b32 s{sNXT}, v{V_TAB}, s{S_TASK}
    L_r_wait:
    s_waitcnt vmcnt(0)
    v_cmp_gt_u32 vcc, v{T1}, v{RD}
    s_nop 0
    s_and_b64 vcc, vcc, s[{sT0}:{sT1}]
    s_cbranch_scc0 L_r_go
    buffer_load_dword v{RD}, v{T0}, {WSR}, 0 offen sc1
    """)
    spin(a)
    a("s_branch L_r_wait\nL_r_go:")
    stamp(a, 15)
    def decode():
        return [f"s_bfe_u32 s{sT0}, s{sNXT}, 0x60004", f"s_bfe_u32 s{sT1}, s{sNXT}, 0x1000e", f"s_lshl1_add_u32 s{sT0}, s{sT0}, s{sT1}",
                f"s_mul_i32 s{sLO}, s{sT0}, {PART_T}", f"s_bfe_u32 s{sT1}, s{sNXT}, 0x2000c", f"s_lshl2_add_u32 s{sT1}, s{sT1}, s{w}",
                f"s_lshl_b32 s{sT0}, s{sT0}, 14", f"s_lshl_b32 s{sP0}, s{sT1}, 6", f"s_add_u32 s{sP0}, s{sP0}, s{sT0}",
                f"s_lshl_b32 s{sT1}, s{sT1}, 10", f"s_add_u32 s{sLO}, s{sLO}, s{sT1}", f"s_add_u32 s{sLO}, s{sLO}, {hex(WS_PART)}",
                f"s_bitcmp1_b32 s{sNXT}, 2", f"s_cselect_b32 s{sLO}, {hex(OOB)}, s{sLO}"]
    ld = lambda p: [f"buffer_load_dwordx4 {vr(RING + 4*(p & 15), 4)}, v{A16}, {WSR}, s{sLO} offen sc1", f"s_add_u32 s{sLO}, s{sLO}, 0x4000"]
    a.emit(decode())
    LD = OPTS.get('rdepth', 15)
    for p in range(LD): a.emit(ld(p))
    a(f"""
    L_r_loop:
    s_mov_b32 s{sCUR}, s{sNXT}
    s_mov_b32 s{sOO}, s{sP0}
    s_add_u32 s{S_TASK}, s{S_TASK}, 1
    s_nop 0
    v_readlane_b32 s{sNXT}, v{V_TAB}, s{S_TASK}
    """)
    for p in range(48):
        if p == 32 - LD: a(f"s_cmp_lg_u32 s{sSTG}, 0\ns_cbranch_scc1 L_r_stage\nL_r_stageback:")
        if p == 48 - LD: a.emit(decode())
        a.emit(ld(p + LD))
        a(f"s_waitcnt vmcnt({LD})")
        for x in range(2):
            d = vr(RD + 4*x, 4)
            a(mf(d, vr(SEL + 4*x, 4), vr(RING + 4*(p & 15), 4), "0" if p == 0 else d))
    a("s_nop 6")
    for i in range(4): a(f"v_cvt_pk_bf16_f32 v{RD+16+i}, v{RD+2*i}, v{RD+2*i+1}")
    a(f"""
    buffer_store_dwordx4 {vr(RD+16,4)}, v{OA_}, s[48:51], s{sOO} offen
    s_bitcmp1_b32 s{sNXT}, 2
    s_cbranch_scc0 L_r_loop
    s_waitcnt vmcnt(1)
    """)
    stamp(a, 16)
    a(f"""
    s_branch {next_label}
    L_r_stage:
    s_bfe_u32 s{sBC}, s{sCUR}, 0x60004
    s_lshl_b32 s{sBC}, s{sBC}, 6
    s_add_u32 s{sBC}, s{sBC}, {hex(CNT_B)}
    L_r_st2:
    buffer_load_dword v{T0}, v{ZERO}, {WSR}, s{sBC} offen sc1
    """)
    spin(a)
    a(f"s_waitcnt vmcnt(0)\nv_cmp_gt_u32 vcc, 16, v{T0}\ns_cbranch_vccnz L_r_st2\ns_branch L_r_stageback")
```

```python
from common import *

A16, T0, T1, T2, ZERO, FV = 2, 3, 4, 5, 6, 7
XD, RA, WD, RB = 8, 16, 20, 24
SENT = 36
XF, ACC, SQ = 64, 128, 192
sH, sJ, sT0, sT1, sM0, sXO, sOUT, sI, sFA, sDL, sSLOT, sN, sSPIN, sSC, sJX, sJO, sMAT, sST, sVT, sWO, sGA, sGO, sROT, sKV = range(56, 80)

def mf(D, A, B, Cc): return f"v_mfma_f32_16x16x32_bf16 {D}, {A}, {B}, {Cc}"
def acc(par, vtype, tt, ct):
    piece, sub = (ct, tt) if vtype else (2*(ct >> 1) + tt, ct & 1)
    return ACC + 32*par + 8*piece + 4*sub
def xrd(g, j):
    s, tt = 4*g + (j >> 1), j & 1
    return f"ds_read_b128 {vr(XF + 32*(g & 1) + 4*j, 4)}, v{RA + (s & 3)} offset:{tt*16384 + (s >> 2)*256}"
def xdma(i):
    return [f"s_add_u32 m0, s{sSLOT}, {i*1024}", f"s_add_u32 s{sT0}, s{sXO}, {i*1024}", f"buffer_load_dwordx4 v{XD+i}, s[52:55], s{sT0} offen lds"]
def xadv():
    return [f"s_add_u32 s{sXO}, s{sXO}, 0x8000", f"s_add_u32 s{sSLOT}, s{sSLOT}, 0x8000", f"s_and_b32 s{sSLOT}, s{sSLOT}, 0x1ffff"]
def epi(par, scale):
    l = []
    for p in range(4):
        b = ACC + 32*par + 8*p; q = SQ + 4*p
        l.append(([f"v_mul_f32 v{b+i}, s{sSC}, v{b+i}" for i in range(8)] if scale else []) + [f"v_cvt_pk_bf16_f32 v{q+i}, v{b+2*i}, v{b+2*i+1}" for i in range(4)] +
                 [f"buffer_store_dwordx4 {vr(q,4)}, v{A16}, {WSR}, s{sOUT} offen offset:{p*1024} sc1"])
    return l

def prewrite(lbl):
    return [f"s_cmp_lg_u32 s{sJ}, 6", f"s_cbranch_scc1 {lbl}", f"buffer_store_dwordx4 {vr(SENT,4)}, v{A16}, {WSR}, s{sKV} offen sc1",
            f"s_add_u32 s{sKV}, s{sKV}, 0x20000", f"{lbl}:"]
def body(a, par, vtype):
    a(f"L_f_{vtype}{par}:")
    ms = []
    for g in range(4):
        for ct in range(4):
            for tt in range(2):
                d = vr(acc(par, vtype, tt, ct), 4)
                for k in range(4):
                    x = vr(XF + 32*(g & 1) + 8*k + 4*tt, 4); wv = ar((ct*16 + 4*g + k)*4, 4)
                    A, B = (x, wv) if vtype else (wv, x)
                    ms.append(mf(d, A, B, "0" if g == 0 and k == 0 else d))
    G = Gaps(ms)
    G.add(96, "s_waitcnt vmcnt(20)"); G.add(97, "s_barrier")
    for g in range(4):
        for j in range(8): G.add(32*g + 2 + 2*j, xrd((g + 1) & 3, j))
        G.add(32*g + 31, "s_waitcnt lgkmcnt(0)")
    G.add(3, *prewrite(a.newlabel('f_pw')))
    g = 9
    for e in epi(1 - par, not vtype):
        k = 0
        while k < len(e):
            busy = any(x.startswith("ds_") for x in G.g[g])
            if e[k].startswith("buffer"):
                if not busy: G.add(g, e[k]); k += 1
            else:
                n = 1 if busy or e[k+1].startswith("buffer") else 2
                G.add(g, *e[k:k+n]); k += n
            g += 1
    assert g <= 50, g
    G.add(50, f"s_add_u32 s{sOUT}, s{sOUT}, s{sDL}", f"s_cmp_eq_u32 s{sI}, 15", f"s_cselect_b32 s{sDL}, s{sJO}, 0x2000")
    for i in range(8):
        d = xdma(i); g = 51 + 4*i
        G.add(g, *d[:2]); G.add(g + 2, d[2])
    G.add(83, f"s_cmp_eq_u32 s{sI}, 12", f"s_cselect_b32 s{sT1}, s{sJX}, 0", f"s_add_u32 s{sXO}, s{sXO}, s{sT1}")
    for k, x in enumerate(xadv()): G.add(85 + k, x)
    for j in range(4):
        G.add(84 + 2*j, f"v_add_u32 v{RA+j}, 0x8000, v{RA+j}"); G.add(85 + 2*j, f"v_and_b32 v{RA+j}, 0x1ffff, v{RA+j}")
    G.add(92, f"s_sub_u32 s{sT1}, s{sI}, 1", f"s_max_i32 s{sT1}, s{sT1}, 0"); G.add(93, f"v_mov_b32 v{FV}, s{sT1}")
    G.add(99, f"buffer_store_dword v{FV}, v{ZERO}, {WSR}, s{sFA} offen sc1")
    if par and not vtype:
        G.add(115, "s_mov_b64 exec, 1", f"buffer_atomic_add v33, v{ZERO}, {WSR}, s{sGA} offen", "s_mov_b64 exec, -1")
        G.add(116, f"s_mov_b32 s{sGA}, {hex(OOB)}")
    G.add(120, f"s_add_u32 s{sI}, s{sI}, 1"); G.add(126, f"s_cmp_lt_u32 s{sI}, s{sN}")
    G.emit(a)
    if par: a(f"s_cbranch_scc1 L_f_{vtype}0\ns_branch L_f_done")

def gen_feed(a, next_label):
    w = S_WAVE
    a("L_feed:")
    stamp(a, 4)
    a(f"""
    s_cmp_lt_u32 s{sJ}, 4
    s_cselect_b64 s[52:53], s[{S_C}:{S_C+1}], s[{S_X}:{S_X+1}]
    s_cselect_b64 s[48:49], s[{S_WUK}:{S_WUK+1}], s[{S_WQA}:{S_WQA+1}]
    s_cselect_b64 s[4:5], s[{S_WUV}:{S_WUV+1}], s[{S_WQB}:{S_WQB+1}]
    s_cselect_b32 s{sMAT}, 0x21, 0x30
    s_cselect_b32 s{sN}, 16, 32
    s_cselect_b32 s{sSC}, 1.0, {fbits(SM_SCALE)}
    s_cselect_b32 s{sJX}, 0, {hex(-48*0x8000 & 0xffffffff)}
    s_cselect_b32 s{sVT}, 2, 4
    s_cmp_eq_u32 s{sJ}, 6
    s_cselect_b64 s[48:49], s[{S_WKB}:{S_WKB+1}], s[48:49]
    s_cselect_b64 s[4:5], s[{S_WVB}:{S_WVB+1}], s[4:5]
    s_cselect_b32 s{sMAT}, 0x54, s{sMAT}
    s_cselect_b32 s{sN}, 64, s{sN}
    s_cselect_b32 s{sSC}, 1.0, s{sSC}
    s_cselect_b32 s{sJX}, 0, s{sJX}
    s_cselect_b32 s{sVT}, 2, s{sVT}
    s_lshl_b32 s{sT0}, s{sJ}, 2
    s_lshr_b32 s{sST}, 0x0233210, s{sT0}
    s_and_b32 s{sST}, s{sST}, 15
    s_ashr_i32 s{sJO}, s{sJX}, 2
    s_add_u32 s{sJO}, s{sJO}, 0x2000
    s_and_b32 s53, s53, 0xffff
    s_mov_b32 s54, 0x200000
    s_mov_b32 s55, 0x20000
    s_cmp_lt_u32 s{w}, 2
    s_cselect_b64 s[48:49], s[48:49], s[4:5]
    s_cselect_b32 s{sT0}, 0, 4
    s_lshr_b32 s{sMAT}, s{sMAT}, s{sT0}
    s_and_b32 s{sMAT}, s{sMAT}, 15
    s_and_b32 s49, s49, 0xffff
    s_mov_b32 s50, 0x400000
    s_mov_b32 s51, 0x20000
    v_lshlrev_b32 v{A16}, 4, v0
    v_mov_b32 v{ZERO}, 0
    v_lshrrev_b32 v{T0}, 3, v0
    v_lshlrev_b32 v{WD}, 13, v{T0}
    v_and_b32 v{T0}, 2, v{T0}
    v_and_b32 v{T1}, 7, v0
    v_xor_b32 v{T0}, v{T0}, v{T1}
    v_lshl_add_u32 v{WD}, v{T0}, 4, v{WD}
    v_xor_b32 v{WD+1}, 64, v{WD}
    s_lshl_b32 s{sM0}, s{w}, 14
    s_add_u32 s{sM0}, s{sM0}, 0x18000
    s_and_b32 s{sT1}, s{w}, 1
    s_lshl1_add_u32 s{sWO}, s{sH}, s{sT1}
    s_lshl_b32 s{sWO}, s{sWO}, 7
    s_lshl_b32 s{sT0}, s{sJ}, 2
    s_lshr_b32 s{sROT}, {OPTS.get('rot', 0)}, s{sT0}
    s_and_b32 s{sROT}, s{sROT}, 15
    s_lshl_b32 s{sT0}, s{sROT}, 20
    s_or_b32 s{sWO}, s{sWO}, s{sT0}
    """)
    def wdma(c):
        l = a.newlabel("f_w")
        a(f"s_cmp_lt_u32 s{sMAT}, {OPTS.get('ntm', 3)}\ns_cbranch_scc1 {l}")
        for nt in ("", "nt"):
            for p in range(4):
                a(f"s_add_u32 m0, s{sM0}, {(c & 3)*4096 + p*1024}\ns_xor_b32 s{sT0}, s{sWO}, {(32*c + 8*p)*8192}\nbuffer_load_dwordx4 v{WD+(p&1)}, s[48:51], s{sT0} offen {nt} lds")
            a(f"s_branch {l}e\n{l}:" if not nt else f"{l}e:")
    for c in range(4): wdma(c)
    GR = 32
    a(f"""
    s_mov_b32 s{sGA}, {hex(OOB)}
    v_and_b32 v{GR}, 15, v0
    v_mov_b32 v{GR+1}, 1
    s_lshl2_add_u32 s{sT0}, s{w}, s{sJ}
    s_cmp_ge_u32 s{sT0}, 4
    s_cbranch_scc1 L_f_nogate
    s_mov_b64 s[4:5], s[{S_X}:{S_X+1}]
    s_mov_b64 s[6:7], s[{S_GATEW}:{S_GATEW+1}]
    v_lshrrev_b32 v{T1}, 4, v0
    v_lshlrev_b32 v{T1}, 4, v{T1}
    v_lshl_add_u32 v{T2}, v{GR}, 10, v{T1}
    s_lshl2_add_u32 s{sGO}, s{sH}, s{sJ}
    s_lshl_b32 s{sT0}, s{sGO}, 14
    v_add_u32 v{T2}, s{sT0}, v{T2}
    """)
    for s in range(16):
        a(f"global_load_dwordx4 {vr(64+4*s,4)}, v{T2}, s[4:5] offset:{64*s}")
        a(f"global_load_dwordx4 {vr(128+4*s,4)}, v{T1}, s[6:7] offset:{64*s}")
    a(f"""
    v_lshlrev_b32 v{GR}, 2, v{GR}
    s_lshl_b32 s{sGO}, s{sGO}, 6
    s_add_u32 s{sGO}, s{sGO}, {hex(WS_GATE)}
    s_lshr_b32 s{sGA}, s{sH}, 2
    s_lshl_b32 s{sGA}, s{sGA}, 7
    s_add_u32 s{sGA}, s{sGA}, {hex(CNT_GATE)}
    L_f_nogate:
    """)
    a(f"""
    v_lshrrev_b32 v{T0}, 4, v0
    v_lshl_add_u32 v{RB}, v{T0}, 10, s{sM0}
    v_bfe_u32 v{T1}, v0, 2, 2
    v_lshl_add_u32 v{RB}, v{T1}, 7, v{RB}
    v_bfe_u32 v{T1}, v0, 3, 2
    v_lshl_add_u32 v{RB}, v{T1}, 5, v{RB}
    v_and_b32 v{T1}, 3, v0
    v_lshl_add_u32 v{RB}, v{T1}, 3, v{RB}
    v_and_b32 v{T1}, 15, v0
    v_xor_b32 v{T0}, v{T0}, v{T1}
    v_lshlrev_b32 v{T0}, 4, v{T0}
    v_lshl_add_u32 v{RA}, v{T1}, 10, v{T0}
    s_lshl1_add_u32 s{sT0}, s{sROT}, s{sT1}
    s_lshl_b32 s{sT0}, s{sT0}, 7
    v_xor_b32 v{XD}, s{sT0}, v{A16}
    s_lshl_b32 s{sOUT}, s{sMAT}, 24
    s_lshl_b32 s{sT0}, s{sH}, 19
    s_add_u32 s{sOUT}, s{sOUT}, s{sT0}
    s_lshl_b32 s{sT0}, s{sST}, 17
    s_add_u32 s{sOUT}, s{sOUT}, s{sT0}
    s_lshl_b32 s{sT0}, s{sT1}, 12
    s_add_u32 s{sOUT}, s{sOUT}, s{sT0}
    s_add_u32 s{sOUT}, s{sOUT}, {hex(WS_PROJ + OOB)}
    s_mov_b32 s{sDL}, {hex(-OOB & 0xffffffff)}
    s_lshl_b32 s{sT0}, s{sJ}, 2
    s_cmp_eq_u32 s{sJ}, 6
    s_cselect_b32 s{sT0}, {hex(FLAG_F - WS_FLAG)}, s{sT0}
    s_lshl_b32 s{sFA}, s{sH}, 7
    s_add_u32 s{sFA}, s{sFA}, s{sT0}
    s_add_u32 s{sFA}, s{sFA}, {hex(WS_FLAG)}
    s_cmp_eq_u32 s{w}, 0
    s_cselect_b32 s{sFA}, s{sFA}, {hex(OOB)}
    """)
    for c in range(1, 4): a(f"v_xor_b32 v{RB+c}, {c*32}, v{RB}\nv_xor_b32 v{RA+c}, {c << 6}, v{RA}")
    for i in range(1, 8): a(f"v_xor_b32 v{XD+i}, {i*16}, v{XD}")
    a(f"""
    s_lshl_b32 s{sSLOT}, s{w}, 13
    s_lshl_b32 s{sXO}, s{sST}, 19
    s_add_u32 s{sXO}, s{sXO}, s{sSLOT}
    s_mov_b32 s{sI}, 0
    s_mov_b32 s{sSPIN}, 0
    s_lshl2_add_u32 s{sKV}, s{sH}, s{w}
    s_lshl_b32 s{sKV}, s{sKV}, 10
    s_add_u32 s{sKV}, s{sKV}, {hex(WS_KVM)}
    v_mov_b64 {vr(SENT,2)}, -1
    v_mov_b64 {vr(SENT+2,2)}, -1
    """)
    for c in range(16):
        if c == 0: stamp(a, 5)
        a(f"s_waitcnt vmcnt({12 if c < 13 else (17, 21, 25)[c - 13]})")
        if c in (0, 8, 15): stamp(a, {0: 6, 8: 7, 15: 17}[c])
        for ct in range(4):
            for x in range(2):
                a(f"ds_read_b64_tr_b16 {ar((ct*16 + c)*4 + 2*x, 2)}, v{RB+ct} offset:{(c & 3)*4096 + x*512}")
        if c + 4 < 16:
            a("s_waitcnt lgkmcnt(0)"); wdma(c + 4)
        elif c < 15:
            if c == 12:
                set_srd(a, S_SRD1, S_DBG, 256)
                a(f"buffer_load_dword v{T0}, v{ZERO}, s[48:51], 0 offen sc1")
            for i in range(8): a.emit(xdma(i))
            a.emit(xadv())
    a(f"s_cmp_eq_u32 s{sGA}, {hex(OOB)}\ns_cbranch_scc1 L_f_nogate2")
    for s in range(16): a(mf(vr(SQ,4), vr(128+4*s,4), vr(64+4*s,4), vr(SQ,4) if s else "0"))
    a(f"""
    s_nop 7
    v_mul_f32 v{SQ}, {fbits(-1.4426950408889634)}, v{SQ}
    v_exp_f32 v{SQ}, v{SQ}
    s_nop 0
    v_add_f32 v{SQ}, 1.0, v{SQ}
    v_rcp_f32 v{SQ}, v{SQ}
    s_nop 0
    buffer_store_dword v{SQ}, v{GR}, {WSR}, s{sGO} offen sc1
    L_f_nogate2:
    s_waitcnt vmcnt(16) lgkmcnt(0)
    L_f_init:
    v_cmp_gt_u32 vcc, 32, v{T0}
    s_cbranch_vccz L_f_go
    buffer_load_dword v{T0}, v{ZERO}, s[48:51], 0 offen sc1
    s_add_u32 s{sSPIN}, s{sSPIN}, 1
    s_cmp_gt_u32 s{sSPIN}, {SPIN_MAX}
    s_cbranch_scc1 L_exit
    s_waitcnt vmcnt(0)
    s_branch L_f_init
    L_f_go:
    s_barrier
    """)
    stamp(a, 1)
    for j in range(8): a(xrd(0, j))
    a(f"s_cmp_lt_u32 s{w}, s{sVT}\ns_waitcnt lgkmcnt(0)\ns_cbranch_scc0 L_f_10")
    body(a, 0, 0); body(a, 1, 0); body(a, 0, 1); body(a, 1, 1)
    a("L_f_done:\ns_nop 7")
    for e in epi(1, True): a.emit(e)
    a(f"""
    v_mov_b32 v{FV}, s{sN}
    s_waitcnt vmcnt(0) lgkmcnt(0)
    s_barrier
    buffer_store_dword v{FV}, v{ZERO}, {WSR}, s{sFA} offen sc1
    """)
    stamp(a, 3)
    a(f"s_branch {next_label}")
```

```python
from common import *

LB = 131072
L_QT, L_KT, L_VX, L_X = 0, 4096, 8192, 16384
A16, IDX, W16, WVB, DUM, XTW, XTR, OXW, H1ST, H1LD, H2ST, WT = range(12)
ONES = 12
PM0, ZERO, PM1 = 16, 17, 18
M, AQ, AK, AV, QF, KW, ST, KV = 20, 52, 60, 68, 76, 92, 108, 124
WO = 128
sS, sKX, sVX, sWARM, sFLG, sKVM, sH1L, sH2L, sH2S, sTAG, sTF, sSPIN, sT0, sT1, sMK, sMV, sKB0 = range(56, 73)
sH1 = 74
sSENT = 78
sSEL = 80
sC = 88; sLO = 89; sFFFE = 90; sRANGE = 91; sNEED = 92; sTV = 93; sODD = 94; sWD = 73; sUSEB = 7

class LG:
    def __init__(self): self.n = 0; self.t = {}; self.done = 0
    def op(self, tag, ins):
        self.n += 1; self.t[tag] = self.n; return ins
    def need(self, *tags):
        m = max(self.t[t] for t in tags)
        if m <= self.done: return []
        self.done = m
        return [f"s_waitcnt lgkmcnt({min(15, self.n - m)})"]

def nops(cyc):
    r = []; n = cyc // 4
    while n > 0:
        k = min(n, 16); r.append(f"s_nop {k-1}"); n -= k
    return r

def sm(acc, A, B): return f"v_smfmac_f32_16x16x64_bf16 {vr(acc,4)}, {vr(A,4)}, {B}, v{IDX}"
def d32(D, A, B, first): return f"v_mfma_f32_16x16x32_bf16 {vr(D,4)}, {vr(A,4)}, {vr(B,4)}, {'0' if first else vr(D,4)}"
def d16(D, A, B): return f"v_mfma_f32_16x16x16_bf16 {vr(D,4)}, {vr(A,2)}, {vr(B,2)}, {vr(D,4)}"

VORD = [(k >> 1, k & 1) for k in range(12)] + [(6, 0), (7, 0), (6, 1), (7, 1)]
VBUF = [QF, QF + 8, KW, KW + 8, ST, ST + 8, QF, QF + 8, ST, ST + 8, QF, QF + 8, ST, ST + 8, ST, ST + 8]
def wv_read(lg, k, u):
    j, tl = VORD[k]
    if OPTS.get("nowv") and k >= 6:
        lg.t[("wv", k, u)] = 0
        return "s_nop 0"
    return lg.op(("wv", k, u), f"ds_read_b128 {vr(VBUF[k] + 4*u, 4)}, v{WVB} offset:{(j&1)*16384 + tl*2048 + u*1024}")
def wv_next(cl):
    return f"v_xor_b32 v{WVB}, {hex(32768 * (1 if cl & 1 else 3))}, v{WVB}"
def wv_prefetch():
    lg = LG()
    return [wv_read(lg, k, u) for k in range(4) for u in range(2)] + [wv_next(1)] + [wv_read(lg, k, u) for k in (4, 5) for u in range(2)]
def warm_addr():
    return [f"v_bfe_u32 v{M+25}, v{W16}, 9, 1", f"v_and_b32 v{DUM}, 0x1ff, v{W16}", f"v_lshlrev_b32 v{DUM}, 2, v{DUM}",
            f"v_lshl_add_u32 v{DUM}, v{M+25}, 24, v{DUM}", f"s_sub_u32 s{sT0}, s{sFLG}, s{sWARM}", f"v_min_u32 v{KV}, -2, v{KV}", f"v_writelane_b32 v{DUM}, s{sT0}, 1"][:-1 if OPTS.get("noflaglane") else None]
def ms_addrs():
    return [f"v_xor_b32 v{M + 8*cl + 4}, {cl*2048}, v{WT}" for cl in range(1, 4)]

def spin_check(a):
    a(f"s_add_u32 s{sSPIN}, s{sSPIN}, 1\ns_cmp_gt_u32 s{sSPIN}, {SPIN_MAX}\ns_cbranch_scc1 L_exit")

def step_loop(a_, sfx, stf):
    lg = LG()
    drop = [f"s{r} offen" for k, r in (("nokvm", sKVM), ("nowarm", sWARM), ("noflg", sFLG), ("notf", sTF), ("nodma", sKX), ("nodma", sVX)) if OPTS.get(k)]
    if OPTS.get("nohop"): drop += [f"s{sH1L} offen", f"s{sH2L} offen", f"s{sH2S} offen", "L_retry2", "L_retry1", "L_smslow", "L_fs"]
    if OPTS.get("nochk"): drop += ["L_retry2", "L_retry1", "L_smslow"]
    if OPTS.get("nost"): drop += [f"s{sH1+n} offen" for n in range(4)]
    kill = []
    if OPTS.get("nobar"): kill += ["s_barrier"]
    if OPTS.get("nods"): kill += ["ds_read", "ds_write", "lgkmcnt"]
    if OPTS.get("nodsw"): kill += ["lgkmcnt"]
    if OPTS.get("novm"): kill += ["buffer_"]
    if OPTS.get("novalu"): kill += ["v_add", "v_mul", "v_cvt", "v_exp", "v_max", "v_mov", "v_xor", "v_cnd", "v_cmp", "v_rcp", "v_sub", "v_and", "v_lsh", "v_or", "v_bit", "v_min", "v_perm"]
    if OPTS.get("nonop"): kill += ["s_nop"]
    a0 = a_
    def a(x):
        for l in x.split("\n"):
            if not any(k in l for k in kill): a0(l)
    E = lambda *l: [a(x if not any(d in x for d in drop) else "s_nop 0") for y in l for x in (y if isinstance(y, list) else [y])]
    Q = lambda j, tl: sm(AQ + 4*tl, M + 4*j, ar((tl*8 + j)*8, 8))
    K = lambda j, tl: sm(AK + 4*tl, M + 4*j, ar(128 + (tl*8 + j)*8, 8))
    Vv = lambda k: sm(AV + 4*VORD[k][1], M + 4*VORD[k][0], vr(VBUF[k], 8))
    kxreg = lambda t, tt: (M if tt else KW) + 4*t
    kxr = lambda t, tt: lg.op(("kx", t, tt), f"ds_read_b128 {vr(kxreg(t,tt),4)}, v{A16} offset:{(2*t+tt)*1024}")
    qr = lambda t, x: lg.op(("q", t, x), f"ds_read_b64_tr_b16 {vr(QF + 4*t + 2*x, 2)}, v{XTR} offset:{L_QT + x*2048 + t*512}")
    kr = lambda t, x: lg.op(("k", t, x), f"ds_read_b64_tr_b16 {vr(KW + 4*t + 2*x, 2)}, v{XTR} offset:{L_KT + x*2048 + t*512}")
    mr = lambda j: lg.op(("m", j), f"ds_read_b128 {vr(M+4*j,4)}, v{M + 8*(j>>1) + 4} offset:{(j&1)*1024}")
    wr = lambda k, u: wv_read(lg, k, u)
    nv = lambda k: lg.need(("wv", k, 0), ("wv", k, 1))
    add = lambda d, x, y: f"v_add_f32 v{d}, v{x}, v{y}"
    mulc = lambda d: f"v_mul_f32 v{d}, s{sC}, v{d}"
    cvt = lambda d, x, y: f"v_cvt_pk_bf16_f32 v{d}, v{x}, v{y}"
    ex = lambda d, s_: f"v_exp_f32 v{d}, v{s_}"
    N0, N1 = "s_nop 0", "s_nop 1"
    prof = OPTS.get("tprof") and sfx == "_f"
    PSET = {1: [0,1,2,3,4,5,6,7,8], 2: [0,1,6,7,"a","b","c","d",8], 3: [0,5,"e","f","g",6,"h",7,8], 4: [0,2,"i","j",3,"k",4,"l",8]}.get(OPTS.get("tprof"), [])
    def P(k):
        if prof and k in PSET: k = PSET.index(k); a(f"s_memtime s[{8+2*k}:{9+2*k}]")
    def warm(cyc):
        if not OPTS.get("warm"): return nops(cyc)
        r = []
        for i in range(cyc // 16): r += [f"v_mov_b32 v{M+26}, 0", "s_nop 2"]
        return r + nops(cyc % 16)
    g2 = OPTS.get("g2", 100)
    B0_, B1_ = M + 8, M + 16
    def ld2(x, y): E(f"buffer_load_dwordx4 {vr(x,4)}, v{WT}, {WSR}, s{sH2L} offen sc1", f"buffer_load_dwordx4 {vr(y,4)}, v{WT}, {WSR}, s{sH2L} offen offset:1024 sc1")
    a(f"L_poll2{sfx}:")
    ld2(M, M + 4)
    n2 = 2 if g2 else 0
    bg = OPTS.get('bg', 0)
    if g2:
        E(warm(g2 - 8))
        ld2(B0_, B1_)
    E(f"v_readlane_b32 s{sT1}, v{DUM}, 1", f"v_xor_b32 v{H2ST}, 0x2000, v{H2ST}", f"s_waitcnt vmcnt({n2+3})", ms_addrs(), f"s_cmp_lt_u32 s{sT1}, s{sNEED}", f"s_cbranch_scc1 L_fs{sfx}" if not OPTS.get("noflaglane") else N0)
    a(f"L_fsback{sfx}:")
    if OPTS.get("tsteps") and sfx == "_f":
        a(f"""s_lshl3_add_u32 s10, s{sS}, {LB + L_KT + 4}
        v_mov_b32 v{M+26}, s8
        v_mov_b32 v{M+27}, s10
        ds_write_b32 v{M+27}, v{M+26}
        s_memrealtime s[8:9]""")
    advance(a)
    E(warm_addr())
    if prof and OPTS.get("traw"):
        a(f"""s_lshl2_add_u32 s4, s{S_RANK}, s{S_WAVE}
        s_lshl_b32 s4, s4, 6
        s_add_u32 s4, s4, s{sS}
        s_lshl_b32 s4, s4, 6
        s_add_u32 s4, s4, {hex(WS_STAMP + 0x40000)}
        s_waitcnt lgkmcnt(0)""")
        for k in range(9): a(f"v_writelane_b32 v{M+26}, s{8+2*k}, {k}")
        a(f"v_writelane_b32 v{M+26}, s{sSPIN}, 9\nv_writelane_b32 v{M+26}, s37, 10\nv_bfe_u32 v{M+27}, v{W16}, 2, 8\ns_mov_b64 exec, 0x7ff\nbuffer_store_dword v{M+26}, v{M+27}, {WSR}, s4 offen\ns_mov_b64 exec, -1")
    elif prof:
        a("s_waitcnt lgkmcnt(0)\ns_sub_u32 s4, s8, s26\ns_add_u32 s36, s36, s4\ns_mov_b32 s26, s24")
        for k in range(8): a(f"s_sub_u32 s4, s{10+2*k}, s{8+2*k}\ns_add_u32 s{28+k}, s{28+k}, s4")
    stK = f"buffer_store_dwordx4 {vr(KV,4)}, v{W16}, {WSR}, s{sKVM} offen sc1"
    stF = f"buffer_store_dword v{PM0}, v{ZERO}, {WSR}, s{sTF} offen sc1"
    ldW = f"buffer_load_dword v{DUM}, v{DUM}, {WSR}, s{sWARM} offen sc1"
    E(warm(OPTS.get("w2", 0)))
    a(f"L_entry{sfx}:")
    C0 = M + 24
    dmaV = lambda x: f"buffer_load_dwordx4 v{W16}, {WSR}, s{sVX} offen offset:{1024*x} sc1 lds"
    dmaK = lambda x: f"buffer_load_dwordx4 v{W16}, {WSR}, s{sKX} offen offset:{1024*x} sc1 lds"
    E(f"s_waitcnt vmcnt({n2+1})", f"ds_write_b128 v{WT}, {vr(M,4)}")
    P(0)
    early = OPTS.get("early", 1)
    chk = [f"v_max3_u32 v{C0}, v{M}, v{M+1}, v{M+2}", f"v_max3_u32 v{C0}, v{C0}, v{M+3}, v{M+4}", f"v_max3_u32 v{C0}, v{C0}, v{M+5}, v{M+6}",
           f"v_max_u32 v{C0}, v{C0}, v{M+7}", f"v_cmp_eq_u32 vcc, -1, v{C0}"]
    E(Q(0,0), f"s_waitcnt vmcnt({n2})", f"ds_write_b128 v{WT}, {vr(M+4,4)} offset:1024")
    if early:
        E(chk, Q(0,1), f"s_mov_b32 m0, s{sMV}", Q(1,0), f"s_cbranch_vccnz L_retry2{sfx}", Q(1,1), K(0,0), K(0,1), K(1,0))
    else:
        E(chk[0], Q(0,1), chk[1], Q(1,0), chk[2], Q(1,1), f"s_mov_b32 m0, s{sMV}", chk[3], K(0,0), chk[4], K(0,1), K(1,0),
          f"s_cbranch_vccnz L_retry2{sfx}")
    kpos = OPTS.get('kpos', 3); spos = OPTS.get('spos', 1)
    KP = lambda p, x: dmaK(x) if kpos == p else []
    pre = {0: [], 1: [dmaV(0), dmaV(1), ldW, stK], 2: [dmaV(0), dmaV(1), ldW], 3: [stK]}[bg]
    X = lambda op: [] if op in pre else op
    E(pre, f"s_waitcnt vmcnt({len(pre)}) lgkmcnt(0)", "s_barrier")
    P(1)
    E(mr(2), K(1,1), mr(3), mr(4), Vv(0), mr(5), mr(6), Vv(1), mr(7), X(dmaV(0)))
    E(Vv(2), X(dmaV(1)))
    E(Vv(3), lg.need(("m",2)), wr(6,0), Q(2,0), lg.need(("m",3)), wr(6,1), X(ldW))
    E(Q(3,0), lg.need(("m",4)), wr(7,0), stK if spos else [], Q(4,0), lg.need(("m",5)), wr(7,1), wv_next(2), Q(5,0), lg.need(("m",7)), kxr(0,0))
    E(Q(6,0), kxr(1,0), Q(7,0), N0, kxr(2,0))
    E(Vv(4), f"s_mov_b32 m0, s{sMK}", kxr(3,0), Q(2,1), N0, wr(8,0), add(AQ,AQ,AQ+1))
    E(Q(3,1), wr(8,1), add(AQ+2,AQ+2,AQ+3), Vv(5), kxr(0,1), mulc(AQ), Q(4,1), wr(9,0), mulc(AQ+2))
    E(Q(5,1), wr(9,1), cvt(AQ,AQ,AQ), Q(6,1), kxr(1,1), cvt(AQ+1,AQ+2,AQ+2))
    E(Q(7,1), nv(7), lg.op("qw0", f"ds_write_b64 v{XTW}, {vr(AQ,2)} offset:{L_QT}"))
    P(2)
    E(Vv(6), N0, (X(stK) if not spos else []) or N0, Vv(7), N0, wr(10,0), add(AQ+4,AQ+4,AQ+5))
    E(K(2,0), wr(10,1), add(AQ+6,AQ+6,AQ+7), K(3,0), nv(9), wr(11,0), mulc(AQ+4))
    E(Vv(8), wr(11,1), mulc(AQ+6), K(4,0), cvt(AQ+4,AQ+4,AQ+4), Vv(9), cvt(AQ+5,AQ+6,AQ+6))
    E(K(5,0), lg.op("qw", f"ds_write_b64 v{XTW}, {vr(AQ+4,2)} offset:{L_QT+2048}"), wv_next(3))
    P("i")
    E(K(6,0), wr(12,0), K(7,0), nv(11), wr(12,1), Vv(10), N0, wr(13,0), Vv(11), N0, wr(13,1), add(AK,AK,AK+1))
    E(K(2,1), lg.need("qw"), "s_barrier", add(AK+2,AK+2,AK+3))
    P("j")
    E(K(3,1), qr(0,0), qr(0,1), K(4,1), qr(1,0), qr(1,1), K(5,1), qr(2,0), qr(2,1), K(6,1), qr(3,0), qr(3,1))
    E(K(7,1), nv(13), kxr(2,1), cvt(KV,AK,AK+2), Vv(12), N0, kxr(3,1), KP(0,0), Vv(13), lg.need(("q",3,1)), wr(14,0), add(AK+4,AK+4,AK+5))
    P(3)
    SX = lambda t, tt: d32(AQ + 4*tt, kxreg(t,tt), QF + 4*t, t == 0)
    EX, PX, VX = M, M + 4, M + 16
    DM, LL = AK, AK + 4
    vxr = lambda x: lg.op(("vx",x), f"ds_read_b128 {vr(VX+4*x,4)}, v{W16} offset:{L_VX+1024*x}")
    E(SX(0,0), add(AK+6,AK+6,AK+7), cvt(KV+1,AK+4,AK+6))
    E(SX(1,0), f"s_waitcnt vmcnt({(2 if bg == 3 else 3) - (kpos > 0)})", lg.op("kw", f"ds_write2st64_b32 v{XTW}, v{KV}, v{KV+1} offset0:{L_KT//256} offset1:{L_KT//256+8}"), add(AV,AV,AV+1))
    E(SX(2,0), wr(14,1), add(AV+2,AV+2,AV+3), SX(3,0), lg.need(("kx",3,1)), wr(15,0), cvt(KV+2,AV,AV+2))
    E(SX(0,1), wr(15,1), KP(0,1), SX(1,1), vxr(0), vxr(1), SX(2,1), lg.need("kw"), "s_barrier")
    P("k")
    E(kr(0,0), kr(0,1), SX(3,1), nv(15), kr(1,0), kr(1,1), Vv(14), kr(2,0), kr(2,1), Vv(15), kr(3,0), kr(3,1))
    E(ex(EX,AQ), ex(EX+1,AQ+1), ex(EX+2,AQ+2))
    P(4)
    SM = lambda t: d32(DM, KW + 4*t, QF + 4*t, t == 0)
    OA, OP = QF + 4, QF + 12
    E2 = M + 8
    E(lg.need(("k",1,1)), SM(0), ex(EX+3,AQ+3), SM(1), lg.need(("k",3,1)), ex(E2,AQ+4))
    E(SM(2), ex(E2+1,AQ+5), SM(3), f"s_cmp_eq_u32 s{sS}, 63", ex(E2+2,AQ+6), ex(E2+3,AQ+7))
    P("l")
    E(cvt(PX,EX,EX+1), cvt(PX+1,EX+2,EX+3), cvt(PX+2,E2,E2+1), cvt(PX+3,E2+2,E2+3), add(AV+4,AV+4,AV+5), ex(EX,DM))
    E(d32(LL, ONES, PX, True), ex(EX+1,DM+1))
    E(d32(OA, VX, PX, True), add(AV+6,AV+6,AV+7), cvt(PM0,EX,EX+1))
    E(d32(OA+4, VX+4, PX, True), cvt(KV+3,AV+4,AV+6), cvt(PM1+1,EX,EX+1))
    RI = LL + 1
    WA = M + 16
    zw = [f"v_mov_b64 {vr(WA+2*i,2)}, 0" for i in range(8)]
    E(d16(LL, ONES, PM0), "s_cbranch_scc1 L_team_last", KP(1,0), wv_next(0), zw[4])
    P(5)
    E(d16(OA, KV+2, PM0), N0, KP(1,1), zw[5], zw[6])
    E(d16(OA+4, KV+2, PM1), f"v_rcp_f32 v{RI}, v{LL}", f"v_subrev_u32 v{LL+2}, s{sLO}, v{LL}", f"v_cmp_le_u32 vcc, s{sRANGE}, v{LL+2}", zw[7])
    a(f"L_smback{sfx}:")
    for i in range(4): a(f"v_mul_f32 v{OA+i}, v{OA+i}, v{RI}")
    E(cvt(OP, OA, OA+1), cvt(OP+1, OA+2, OA+3))
    if OPTS.get("ow2", 1): E(lg.op("ow0", f"ds_write_b64 v{OXW}, {vr(OP,2)}"))
    for i in range(4, 8): a(f"v_mul_f32 v{OA+i}, v{OA+i}, v{RI}")
    E(cvt(OP+2, OA+4, OA+5), cvt(OP+3, OA+6, OA+7), f"s_cbranch_vccnz L_smslow{sfx}")
    OF = [OP, KW + 4, KW + 8, KW + 12]
    WOm = lambda n, il: sm(WA + 4*n, OF[il], vr(WO + (n*4 + il)*8, 8))
    SEL, RD, HD = M, M + 4, M + 8
    sel = [f"v_lshrrev_b32 v{RD}, 16, v{ONES}", f"v_cndmask_b32 v{RD}, v{RD}, 1.0, s[{sODD}:{sODD+1}]"] + [f"v_cndmask_b32 v{SEL+i}, 0, v{RD}, s[{sSEL+2*i}:{sSEL+2*i+1}]" for i in range(4)]
    z = [f"v_mov_b64 {vr(AQ+2*i,2)}, 0" for i in range(12)]
    P("e")
    E(lg.op("ow", f"ds_write_b64 v{OXW}, {vr(OP+2,2)} offset:8" if OPTS.get("ow2", 1) else f"ds_write_b128 v{OXW}, {vr(OP,4)}"))
    E(KP(2,0), KP(2,1))
    for il in range(1, 4): a(f"v_xor_b32 v{OF[il]}, {il*512}, v{OXW}")
    npre, nwo, nz = OPTS.get("npre", 6), OPTS.get("nwo", 1), OPTS.get("nz", 2)
    own = [WOm(3,0), WOm(2,0), WOm(1,0), WOm(0,0)]
    E(zw[:4], sel[:npre], own[:nwo])
    P("f")
    E(lg.need("ow"), "s_barrier")
    P("g")
    ord_ = lambda il: lg.op(("o", il), f"ds_read_b128 {vr(OF[il],4)}, v{OF[il]}")
    E(ord_(1), own[nwo:nwo+1], ord_(2), ord_(3))
    fill = sel[npre:] + z[4:6+nz]
    for k_, m in enumerate(own[nwo+1:]): E(m, KP(3,k_), fill.pop(0))
    E(fill, lg.need(("o",1)))
    P(6)
    def post(n):
        b = WA + 4*n
        return [cvt(b, b, b+1), cvt(b+1, b+2, b+3), f"v_and_or_b32 v{b}, v{b}, -2, s{sTAG}",
                f"buffer_store_dwordx2 {vr(b,2)}, v{H1ST}, {WSR}, s{sH1+n} offen {stf}"]
    p0, p1, p2, p3 = post(0), post(1), post(2), post(3)
    if not OPTS.get("prompt", 1):
        E(WOm(0,1), lg.need(("o",2)), z[0], WOm(0,2), lg.need(("o",3)), z[1], WOm(0,3), N1, z[2])
        E(WOm(1,1), N1, z[3], WOm(1,2), p0[0], WOm(1,3), N1, p0[1])
        E(WOm(2,1), N1, p0[2], WOm(2,2), p0[3], p1[0], WOm(2,3), N1, p1[1])
        E(WOm(3,1), N1, p1[2], WOm(3,2), p1[3], p2[0], WOm(3,3))
        P("h")
        E(N1, p2[1], p2[2], p2[3], "s_nop 2", p3)
    else:
        E(WOm(0,1), lg.need(("o",2)), z[0], WOm(0,2), lg.need(("o",3)), z[1], WOm(0,3), N1, z[2])
        E(WOm(1,1), N1, z[3], WOm(1,2), p0[:3], WOm(1,3), N1, p0[3])
        E(WOm(2,1), "s_nop 2", WOm(2,2), p1[:3], WOm(2,3), N1, p1[3])
        E(WOm(3,1), "s_nop 2", WOm(3,2), p2[:3], WOm(3,3))
        P("h")
        E(N1, p2[3], "s_nop 4", p3)
    P(7)
    d1, d1s, d2 = OPTS.get("d1", 250), OPTS.get("d1s", 48), OPTS.get("d2", 220)
    prev = 0
    for w in range(4):
        want = max(0, d1 - (3 - w) * d1s)
        if w > 0 and want > prev: a(f"s_cmp_lt_u32 s{S_WAVE}, {w}\ns_cbranch_scc1 L_poll1{sfx}"); prev += 8
        E(warm(max(0, want - prev))); prev = max(prev, want)
    g1, g2 = OPTS.get("g1", 120), OPTS.get("g2", 100)
    T1 = M + 24
    def ld1(b): E(f"buffer_load_dwordx4 {vr(b,4)}, v{H1LD}, {WSR}, s{sH1L} offen sc1", f"buffer_load_dwordx4 {vr(b+4,4)}, v{H1LD}, {WSR}, s{sH1L} offen offset:1024 sc1")
    def try1(b, n, re=None):
        E(f"s_waitcnt vmcnt({n+1})")
        if b == HD: P("b")
        E(d32(RD, b, SEL, True), f"v_bitop3_b32 v{T1}, v{b}, v{b+2}, s{sTAG} bitop3:0x7e", f"s_waitcnt vmcnt({n})")
        if b == HD: P("c")
        E(d32(RD, b+4, SEL, False), f"v_bitop3_b32 v{T1+1}, v{b+4}, v{b+6}, s{sTAG} bitop3:0x7e",
          f"v_or_b32 v{T1}, v{T1}, v{T1+1}", f"v_and_b32 v{T1}, 1, v{T1}", f"v_cmp_ne_u32 vcc, 0, v{T1}")
        if re is None: E("s_nop 2")
        else: ld1(re); E(N0)
    a(f"L_poll1{sfx}:")
    P("a")
    ld1(HD)
    tog = [f"v_xor_b32 v{WT}, 0x2000, v{WT}", f"v_xor_b32 v{A16}, 0x2000, v{A16}"]
    E(z[6:], tog)
    if g1:
        E(warm(g1 - 40))
        ld1(HD + 8)
    E(wv_prefetch(), warm(OPTS.get("w1", 0)))
    a(f"L_poll1b{sfx}:")
    try1(HD, 2 if g1 else 0)
    E(f"s_cbranch_vccnz L_retry1{sfx}")
    a(f"L_got1{sfx}:")
    def tail1():
        P("d")
        E(add(RD,RD,RD+1), add(RD+2,RD+2,RD+3), N1, f"v_permlane16_swap_b32 v{RD}, v{RD+2}", add(RD,RD,RD+2), cvt(RD, RD, ZERO),
          f"v_min_u32 v{RD}, s{sFFFE}, v{RD}", f"v_cndmask_b32 v{RD}, v{RD}, -1, s[{sSENT}:{sSENT+1}]")
        E(f"buffer_store_short v{RD}, v{H2ST}, {WSR}, s{sH2S} offen {stf}")
        P(8)
        E(warm(max(0, d2 - 20)), f"s_branch L_poll2{sfx}")
    tail1()
    a(f"L_retry2{sfx}:")
    if prof: a("s_add_u32 s37, s37, 1")
    if not g2:
        ld2(M, M + 4)
        spin_check(a)
        E("s_nop 3", z[:8], f"s_branch L_entry{sfx}")
    else:
        E("s_waitcnt vmcnt(0)", f"v_max3_u32 v{C0}, v{B0_}, v{B0_+1}, v{B0_+2}", f"v_max3_u32 v{C0+1}, v{B0_+3}, v{B1_}, v{B1_+1}",
          f"v_max3_u32 v{C0}, v{C0}, v{B1_+2}, v{B1_+3}", f"v_max_u32 v{C0}, v{C0}, v{C0+1}", f"v_cmp_eq_u32 vcc, -1, v{C0}",
          [f"v_mov_b64 {vr(M+2*i,2)}, {vr((B0_ if i < 2 else B1_ - 4)+2*i,2)}" for i in range(4)], z[:4 if early else 8])
        E(f"s_cbranch_vccz L_entry{sfx}")
        ld2(M, M + 4)
        spin_check(a)
        E(nops(g2 - 20))
        ld2(B0_, B1_)
        E(f"s_branch L_entry{sfx}")
    a(f"L_retry1{sfx}:")
    if g1 and OPTS.get("r1", 1) == 1:
        ld1(HD)
        try1(HD + 8, 2)
        E(f"s_cbranch_vccnz L_retry1b{sfx}")
        if prof: a(f"s_add_u32 s{sSPIN}, s{sSPIN}, 1")
        tail1()
        a(f"L_retry1b{sfx}:")
        ld1(HD + 8)
        spin_check(a)
        E(f"s_branch L_poll1b{sfx}")
    elif g1:
        try1(HD + 8, 0, HD)
        E(f"s_cbranch_vccnz L_retry1b{sfx}")
        if prof: a(f"s_add_u32 s{sSPIN}, s{sSPIN}, 1")
        tail1()
        a(f"L_retry1b{sfx}:")
        spin_check(a)
        E(nops(max(0, g1 - 60)))
        ld1(HD + 8)
        E(f"s_branch L_poll1b{sfx}")
    else:
        ld1(HD)
        spin_check(a)
        E(f"s_branch L_poll1b{sfx}")
    a(f"L_smslow{sfx}:")
    E(f"v_max3_f32 v{EX+2}, v{AQ}, v{AQ+1}, v{AQ+2}", f"v_max3_f32 v{EX+2}, v{EX+2}, v{AQ+3}, v{AQ+4}",
      f"v_max3_f32 v{EX+2}, v{EX+2}, v{AQ+5}, v{AQ+6}", f"v_max3_f32 v{EX+2}, v{EX+2}, v{AQ+7}, v{DM}", f"v_max_f32 v{EX+2}, v{EX+2}, v{DM+1}")
    for sw in ("v_permlane32_swap_b32", "v_permlane16_swap_b32"):
        E(f"v_mov_b32 v{EX}, v{EX+2}", N1, f"{sw} v{EX}, v{EX+2}", f"v_max_f32 v{EX+2}, v{EX+2}, v{EX}")
    for i in range(5):
        s0 = AQ + 2*i if i < 4 else DM
        E(f"v_sub_f32 v{EX}, v{s0}, v{EX+2}", f"v_sub_f32 v{EX+1}, v{s0+1}, v{EX+2}", ex(EX, EX), ex(EX+1, EX+1), N0)
        if i < 4: E(cvt(PX+i, EX, EX+1))
        else: E(cvt(PM0, EX, EX+1), cvt(PM1+1, EX, EX+1))
    E(N1, d32(LL, ONES, PX, True), d32(OA, VX, PX, True), d32(OA+4, VX+4, PX, True), "s_nop 3",
      d16(LL, ONES, PM0), d16(OA, KV+2, PM0), d16(OA+4, KV+2, PM1), "s_nop 7",
      f"v_rcp_f32 v{RI}, v{LL}", "s_mov_b64 vcc, 0", f"s_branch L_smback{sfx}")
    flag_spin(a, sfx, sFLG)
    a(f"s_branch L_fsback{sfx}")

def flag_spin(a, sfx, reg):
    a(f"""
    L_fs{sfx}:
    buffer_load_dword v{DUM}, v{ZERO}, {WSR}, s{reg} offen sc1
    """)
    spin_check(a)
    a(f"""
    s_waitcnt vmcnt(0)
    v_cmp_gt_u32 vcc, s{sNEED}, v{DUM}
    s_cbranch_vccnz L_fs{sfx}
    """)

def advance(a):
    a(f"""
    s_add_u32 s{sS}, s{sS}, 1
    s_xor_b32 s{sTAG}, s{sTAG}, 1
    s_add_u32 s{sVX}, s{sKX}, 0x1000000
    s_add_u32 s{sT0}, s{sS}, 1
    s_min_u32 s{sT0}, s{sT0}, 63
    s_lshl_b32 s{sT0}, s{sT0}, 13
    s_add_u32 s{sKX}, s{sKB0}, s{sT0}
    s_add_u32 s{sWARM}, s{sKX}, s{sWD}
    s_add_u32 s{sT0}, s{sS}, 3
    s_min_u32 s{sNEED}, s{sT0}, 64
    s_add_u32 s{sKVM}, s{sKVM}, 0x20000
    s_xor_b32 s{sMK}, s{sMK}, 0x2000
    """)

def gen_team(a):
    h, w = S_RANK, S_WAVE
    T = 20
    a("L_team:")
    a(f"""
    s_mov_b32 s{sSPIN}, 0
    v_lshrrev_b32 v{T}, 4, v0          ; g
    v_and_b32 v{T+1}, 15, v0           ; r
    s_lshl_b32 s{sT0}, s{w}, 11
    s_add_u32 s{sT0}, s{sT0}, {LB}
    v_lshl_add_u32 v{W16}, v0, 4, s{sT0}
    v_add_u32 v{WT}, {L_X + 0x2000}, v{W16}
    s_mov_b32 s{sWD}, s{sT0}
    s_lshl_b32 s{sT0}, s{w}, 12
    v_lshl_add_u32 v{WVB}, v0, 4, s{sT0}
    s_lshl_b32 s{sT0}, s{w}, 9
    s_add_u32 s{sT0}, s{sT0}, {LB}
    v_bfe_u32 v{T+2}, v0, 3, 1
    v_lshl_add_u32 v{XTW}, v{T+2}, 8, s{sT0}
    v_lshl_add_u32 v{XTW}, v{T}, 6, v{XTW}
    v_and_b32 v{T+2}, 7, v0
    v_lshl_add_u32 v{XTW}, v{T+2}, 3, v{XTW}
    v_lshrrev_b32 v{T+2}, 5, v0
    v_lshlrev_b32 v{XTR}, 8, v{T+2}
    v_and_b32 v{T+2}, 3, v0
    v_lshl_add_u32 v{XTR}, v{T+2}, 6, v{XTR}
    v_bfe_u32 v{T+2}, v0, 2, 3
    v_lshl_add_u32 v{XTR}, v{T+2}, 3, v{XTR}
    v_add_u32 v{XTR}, {LB}, v{XTR}
    s_lshl_b32 s{sT0}, s{w}, 9
    s_add_u32 s{sT0}, s{sT0}, {LB + L_QT}
    v_lshrrev_b32 v{T+2}, 1, v0
    v_lshl_add_u32 v{OXW}, v{T+2}, 4, s{sT0}
    ; H1ST = (8w + (l>>3))*2048 + h*64 + (l&7)*8
    s_lshl_b32 s{sT0}, s{w}, 14
    s_lshl_b32 s{sT1}, s{h}, 6
    s_add_u32 s{sT0}, s{sT0}, s{sT1}
    v_lshrrev_b32 v{T+2}, 3, v0
    v_lshl_add_u32 v{H1ST}, v{T+2}, 11, s{sT0}
    v_and_b32 v{T+2}, 7, v0
    v_lshl_add_u32 v{H1ST}, v{T+2}, 3, v{H1ST}
    v_lshlrev_b32 v{H1LD}, 8, v{T}
    v_bfe_u32 v{T+2}, v0, 2, 1
    v_lshl_add_u32 v{H1LD}, v{T+2}, 7, v{H1LD}
    v_and_b32 v{T+2}, 1, v0
    v_lshl_add_u32 v{H1LD}, v{T+2}, 6, v{H1LD}
    v_bfe_u32 v{T+2}, v0, 3, 1
    v_lshl_add_u32 v{H1LD}, v{T+2}, 5, v{H1LD}
    v_bfe_u32 v{T+2}, v0, 1, 1
    v_lshl_add_u32 v{H1LD}, v{T+2}, 4, v{H1LD}
    s_lshl_b32 s{sT0}, s{w}, 16
    s_lshl_b32 s{sT1}, s{h}, 11
    s_add_u32 s{sT0}, s{sT0}, s{sT1}
    s_add_u32 s{sH1L}, s{sT0}, {hex(WS_HOP1)}
    v_bfe_u32 v{T+2}, v0, 3, 1
    v_lshlrev_b32 v{H2ST}, 13, v{T+2}
    v_lshl_add_u32 v{H2ST}, v{T}, 3, v{H2ST}
    v_bfe_u32 v{T+2}, v0, 1, 1
    v_lshl_add_u32 v{H2ST}, v{T+2}, 5, v{H2ST}
    v_bfe_u32 v{T+2}, v0, 2, 1
    v_lshl_add_u32 v{H2ST}, v{T+2}, 2, v{H2ST}
    v_and_b32 v{T+2}, 1, v0
    v_lshl_add_u32 v{H2ST}, v{T+2}, 1, v{H2ST}
    s_lshl_b32 s{sH2S}, s{w}, 11
    s_lshr_b32 s{sT0}, s{h}, 3
    s_lshl_b32 s{sT0}, s{sT0}, 9
    s_add_u32 s{sH2S}, s{sH2S}, s{sT0}
    s_and_b32 s{sT0}, s{h}, 1
    s_lshl_b32 s{sT0}, s{sT0}, 8
    s_add_u32 s{sH2S}, s{sH2S}, s{sT0}
    s_bfe_u32 s{sT0}, s{h}, 0x20001
    s_lshl_b32 s{sT0}, s{sT0}, 6
    s_add_u32 s{sH2S}, s{sH2S}, s{sT0}
    s_add_u32 s{sH2S}, s{sH2S}, {hex(WS_HOP2)}
    s_mov_b32 s{sH2L}, {hex(WS_HOP2 - LB - L_X)}
    s_lshl_b32 s{sFLG}, s{h}, 7
    s_add_u32 s{sFLG}, s{sFLG}, {hex(FLAG_F)}
    s_lshl_b32 s{sKB0}, s{h}, 19
    s_add_u32 s{sKB0}, s{sKB0}, {hex(WS_PROJ + (4 << 24) - LB)}
    s_mov_b32 s{sODD}, 0xaaaaaaaa
    s_mov_b32 s{sODD+1}, 0xaaaaaaaa
    v_mov_b32 v{ZERO}, 0
    v_mov_b32 v{PM1}, 0
    v_mov_b32 v{PM0}, 0
    v_mov_b32 v{ONES+0}, 0x3f803f80
    v_mov_b32 v{ONES+1}, 0x3f803f80
    v_mov_b32 v{ONES+2}, 0x3f803f80
    v_mov_b32 v{ONES+3}, 0x3f803f80
    s_mov_b32 s{sSENT}, 0xff00ff00
    s_mov_b32 s{sSENT+1}, 0xff00ff00
    s_mov_b32 s{sC}, {fbits(SM_SCALE)}
    s_mov_b32 s{sLO}, {hex((127 - 60) << 23)}
    s_mov_b32 s{sRANGE}, {hex(OPTS.get('smrange', 120) << 23)}
    s_mov_b32 s{sFFFE}, 0xfffe
    s_lshl_b32 s{sT0}, s{w}, 11
    s_add_u32 s{sMK}, s{sT0}, {LB + L_X}
    s_add_u32 s{sMV}, s{sT0}, {LB + L_VX}
    s_lshl_b32 s{sT0}, s{h}, 7
    s_add_u32 s{sT0}, s{sT0}, {hex(FLAG_T)}
    s_cmp_eq_u32 s{w}, 0
    s_cselect_b32 s{sTF}, s{sT0}, {hex(OOB)}
    """)
    for i in range(4):
        a(f"s_mov_b32 s{sSEL+2*i}, {hex(0x03030303 << (2*i))}\ns_mov_b32 s{sSEL+2*i+1}, {hex(0x03030303 << (2*i))}\ns_mov_b32 s{sH1+i}, {hex(WS_HOP1 + i*65536)}")
    for n in range(4): a(f"buffer_store_dwordx2 {vr(PM0,2)}, v{H1ST}, {WSR}, s{sH1+n} offen sc1")
    a(f"""
    v_mov_b32 v{T+2}, 0xffff
    buffer_store_short v{T+2}, v{H2ST}, {WSR}, s{sH2S} offen sc1
    s_mul_i32 s{sT0}, s{w}, 4
    s_lshr_b32 s{sT0}, 0x7640, s{sT0}
    s_and_b32 s{sT0}, s{sT0}, 15
    s_lshl_b32 s{sT0}, s{sT0}, 12
    s_lshl_b32 s{sT1}, s{h}, 7
    s_add_u32 s{sT0}, s{sT0}, s{sT1}
    s_add_u32 s{sT0}, s{sT0}, {hex(WS_FLAG + OPTS.get('noclear', 0) * OOB)}
    v_and_b32 v{T+3}, 31, v0
    v_lshlrev_b32 v{T+3}, 2, v{T+3}
    v_lshrrev_b32 v{T+4}, 5, v0
    v_lshl_add_u32 v{T+3}, v{T+4}, 12, v{T+3}
    buffer_store_dword v{ZERO}, v{T+3}, {WSR}, s{sT0} offen sc1
    """)
    set_srd(a, S_SRD2, S_DBG, 256)
    a(f"""
    s_lshl_b32 s{sT0}, 1, s{S_XCC}
    v_mov_b32 v{T+2}, s{sT0}
    s_cmp_eq_u32 s{w}, 0
    s_cselect_b32 s{sT1}, 0, {hex(OOB)}
    s_mov_b64 exec, 1
    buffer_atomic_or v{T+2}, v{ZERO}, s[52:55], s{sT1} offen offset:128
    s_mov_b64 exec, -1
    """)
    D0, D1, R0 = T + 6, T + 7, T + 8
    a(f"""
    v_bfe_u32 v{T+2}, v0, 4, 1          ; lo
    v_lshrrev_b32 v{T+3}, 5, v0         ; a
    s_lshl_b32 s{sT0}, s{w}, 1
    v_or_b32 v{T+4}, s{sT0}, v{T+2}
    v_lshlrev_b32 v{T+4}, 1, v{T+4}
    v_xor_b32 v{T+4}, v{T+4}, v{T+1}
    v_lshlrev_b32 v{T+4}, 4, v{T+4}
    v_lshl_add_u32 v{T+5}, v{T+2}, 4, v{T+3}
    v_add_u32 v{T+5}, s{sT0}, v{T+5}
    v_lshl_add_u32 v{D0}, v{T+5}, 13, v{T+4}
    s_lshl_b32 s{sT1}, s{h}, 8
    v_add_u32 v{D0}, s{sT1}, v{D0}
    s_lshl_b32 s{sT0}, s{w}, 4
    v_add_u32 v{T+5}, s{sT0}, v{T}
    v_lshl_add_u32 v{D1}, v{T+5}, 10, v{T+4}
    s_lshl_b32 s{sT1}, s{h}, 17
    v_add_u32 v{D1}, s{sT1}, v{D1}
    v_lshrrev_b32 v{T+2}, 5, v0
    v_lshlrev_b32 v{R0}, 12, v{T+2}
    v_bfe_u32 v{T+2}, v0, 3, 1          ; hf
    v_lshl_add_u32 v{R0}, v{T+2}, 11, v{R0}
    v_lshlrev_b32 v{T+4}, 2, v{T+2}
    v_bfe_u32 v{T+2}, v0, 4, 1          ; gl
    v_lshl_add_u32 v{R0}, v{T+2}, 10, v{R0}
    v_lshl_add_u32 v{T+4}, v{T+2}, 1, v{T+4}
    v_bfe_u32 v{T+2}, v0, 2, 1          ; lo
    v_lshl_add_u32 v{R0}, v{T+2}, 8, v{R0}
    v_add_u32 v{T+4}, v{T+4}, v{T+2}
    s_lshl_b32 s{sT0}, s{w}, 1
    v_xor_b32 v{T+4}, s{sT0}, v{T+4}
    v_lshl_add_u32 v{R0}, v{T+4}, 5, v{R0}
    v_and_b32 v{T+2}, 3, v0
    v_lshl_add_u32 v{R0}, v{T+2}, 3, v{R0}
    v_xor_b32 v{R0+1}, 32, v{R0}
    v_bfe_u32 v{T+2}, v0, 3, 1
    v_mul_u32_u24 v{T+2}, {2048 + 128 + 32}, v{T+2}
    v_xor_b32 v{R0+4}, v{T+2}, v{R0}
    v_xor_b32 v{R0+5}, {2048 + 128}, v{R0+4}
    s_mov_b32 s50, 0x400000
    s_mov_b32 s51, 0x20000
    s_lshl_b32 s{sS}, s{w}, 10
    """)
    ptr = [S_WQB, S_WKB, S_WOB, S_WVB]
    MORD = [int(x) for x in str(OPTS.get("tord", "2013")).zfill(4)]
    def wdma(q):
        mt, j = MORD[q >> 3], q & 7
        if j == 0: a(f"s_mov_b32 s48, s{ptr[mt]}\ns_and_b32 s49, s{ptr[mt]+1}, 0xffff")
        for i in range(4):
            u, gh = i >> 1, i & 1
            if mt == 2: so = (64 * (j & 1) + 8 * u + 4 * gh) * 1024 + (j >> 1) * 256
            else: so = (64 * j + 32 * u + 8 * gh) * 8192
            a(f"s_add_u32 m0, s{sS}, {j*16384 + i*4096}\ns_mov_b32 s{sT0}, {so}\nbuffer_load_dwordx4 v{D1 if mt == 2 else D0}, s[48:51], s{sT0} offen {'nt' if OPTS.get('tnt') else ''} lds")
    stamp(a, 4, 40)
    for q in range(7): wdma(q)
    stamp(a, 5, 40)
    for q in range(32):
        mt, j = MORD[q >> 3], q & 7
        a(f"s_waitcnt vmcnt({4*min(6, 31-q)})\ns_barrier")
        if q in (0, 8, 16, 24): stamp(a, {0: 6, 8: 7, 16: 8, 24: 9}[q], 40)
        if q == 0:
            a(f"""
            v_mov_b32 v{T+2}, 1
            s_cmp_eq_u32 s{w}, 0
            s_cselect_b32 s{sT1}, 0, {hex(OOB)}
            s_mov_b64 exec, 1
            buffer_atomic_add v{T+2}, v{ZERO}, s[52:55], s{sT1} offen
            s_mov_b64 exec, -1
            """)
        if q + 7 < 32: wdma(q + 7)
        rb = R0 + 4 if mt == 2 else R0
        a(f"v_add_u32 v{R0+2}, {j*16384}, v{rb}\nv_add_u32 v{R0+3}, {j*16384}, v{rb+1}")
        def reads(wv):
            for tl in range(2):
                for u in range(2):
                    for x in range(2):
                        o = 4 * u + 2 * x
                        if mt == 0: d = ar((tl*8 + (j ^ 2*wv))*8 + o, 2)
                        elif mt == 1: d = ar(128 + (tl*8 + (j ^ 2*wv))*8 + o, 2)
                        elif mt == 2: d = vr(WO + ((j >> 1)*4 + ((2*(j & 1) + tl) ^ wv))*8 + o, 2)
                        else: d = vr(ST + 8*tl + o, 2)
                        a(f"ds_read_b64_tr_b16 {d}, v{R0+2+tl} offset:{u*8192 + x*512}")
        if mt == 3: reads(0)
        else:
            for wv in range(4):
                if wv < 3: a(f"s_cmp_lg_u32 s{w}, {wv}\ns_cbranch_scc1 L_wr_{q}_{wv+1}")
                reads(wv)
                if wv < 3: a(f"s_branch L_wr_{q}_e\nL_wr_{q}_{wv+1}:")
            a(f"L_wr_{q}_e:")
        a("s_waitcnt lgkmcnt(0)")
        if mt == 3:
            a(f"s_barrier\nv_add_u32 v{R0+2}, {j*16384}, v{WVB}")
            for tl in range(2):
                for u in range(2):
                    a(f"ds_write_b128 v{R0+2}, {vr(ST + 8*tl + 4*u, 4)} offset:{tl*2048 + u*1024}")
            a("s_waitcnt lgkmcnt(0)")
    a(f"s_lshl_b32 s{sT0}, s{w}, 15\nv_add_u32 v{WVB}, s{sT0}, v{WVB}")
    stamp(a, 1)
    a(f"""
    v_and_b32 v{T+2}, 1, v0
    v_cmp_eq_u32 vcc, 1, v{T+2}
    v_mov_b32 v{T+3}, 0x44444444
    v_mov_b32 v{T+4}, 0xeeeeeeee
    v_cndmask_b32 v{IDX}, v{T+3}, v{T+4}, vcc
    """)
    set_srd(a, S_SRD1, S_MEM0, 8192)
    a(f"""
    v_bfe_u32 v{T+2}, v0, 1, 3
    v_lshlrev_b32 v{T+3}, 10, v{T+2}
    v_lshrrev_b32 v{T+2}, 5, v0
    v_lshl_add_u32 v{T+3}, v{T+2}, 6, v{T+3}
    v_bfe_u32 v{T+2}, v0, 4, 1
    v_lshl_add_u32 v{T+3}, v{T+2}, 4, v{T+3}
    v_and_b32 v{T+2}, 1, v0
    v_lshl_add_u32 v{T+3}, v{T+2}, 3, v{T+3}
    s_lshl_b32 s{sT0}, s{w}, 8
    buffer_load_dwordx2 {vr(KW,2)}, v{T+3}, s[48:51], s{sT0} offen
    buffer_load_dwordx2 {vr(KW+2,2)}, v{T+3}, s[48:51], s{sT0} offen offset:32
    buffer_load_dwordx2 {vr(KW+4,2)}, v{T+3}, s[48:51], s{sT0} offen offset:128
    buffer_load_dwordx2 {vr(KW+6,2)}, v{T+3}, s[48:51], s{sT0} offen offset:160
    v_lshlrev_b32 v{A16}, 4, v0
    v_add_u32 v{A16}, {LB + L_X}, v{A16}
    s_mov_b32 s{sT0}, 0x05040100
    s_mov_b32 s{sT1}, 0x07060302
    s_waitcnt vmcnt(0)
    """)
    for jj in range(2):
        x, y, d = KW + 4*jj, KW + 4*jj + 2, M + 4*jj
        a(f"""
        v_perm_b32 v{d}, v{y}, v{x}, s{sT0}
        v_perm_b32 v{d+1}, v{y}, v{x}, s{sT1}
        v_perm_b32 v{d+2}, v{y+1}, v{x+1}, s{sT0}
        v_perm_b32 v{d+3}, v{y+1}, v{x+1}, s{sT1}
        v_min_u32 v{d}, -2, v{d}
        v_min_u32 v{d+1}, -2, v{d+1}
        v_min_u32 v{d+2}, -2, v{d+2}
        v_min_u32 v{d+3}, -2, v{d+3}
        """)
    a(f"""
    L_team_init:
    buffer_load_dword v{AQ}, v{ZERO}, s[52:55], 0 offen sc1
    """)
    spin_check(a)
    a(f"""
    s_waitcnt vmcnt(0)
    v_cmp_gt_u32 vcc, 32, v{AQ}
    s_cbranch_vccnz L_team_init
    buffer_load_dword v{AQ}, v{ZERO}, s[52:55], 0 offen offset:128 sc1
    s_mov_b32 s{sNEED}, 2
    """)
    flag_spin(a, "_pre", sFLG)
    a(f"""
    v_readfirstlane_b32 s{sT1}, v{AQ}
    s_mov_b32 m0, s{sMK}
    s_mov_b32 s{sKX}, s{sKB0}
    buffer_load_dwordx4 v{W16}, {WSR}, s{sKX} offen sc1 lds
    buffer_load_dwordx4 v{W16}, {WSR}, s{sKX} offen offset:1024 sc1 lds
    s_mov_b32 s{sS}, -1
    s_mov_b32 s{sTAG}, 0
    s_mov_b32 s{sUSEB}, 0
    s_lshl_b32 s{sKVM}, s{h}, 12
    s_lshl_b32 s{sT0}, s{w}, 10
    s_sub_u32 s{sKVM}, s{sKVM}, s{sT0}
    s_add_u32 s{sKVM}, s{sKVM}, {hex(WS_KVM - 2*0x20000 - LB)}
    """)
    advance(a)
    a.emit(wv_prefetch())
    for i in range(12): a(f"v_mov_b64 {vr(AQ+2*i,2)}, 0")
    a("s_waitcnt vmcnt(0) lgkmcnt(0)")
    stamp(a, 2)
    if OPTS.get("tprof"):
        for k in range(10): a(f"s_mov_b32 s{28+k}, 0")
        a("s_memtime s[26:27]\ns_waitcnt lgkmcnt(0)")
    a.emit(ms_addrs())
    a.emit(warm_addr())
    a(f"""
    s_bcnt1_i32_b32 s{sT1}, s{sT1}
    s_cmp_eq_u32 s{sT1}, {2 if OPTS.get('forceslow') else 1}
    s_cbranch_scc0 L_entry_x
    s_branch L_entry_f
    """)
    step_loop(a, "_f", "")
    step_loop(a, "_x", "sc1")
    a(f"""
    L_team_last:
    s_add_u32 s{sKVM}, s{sKVM}, 0x20000
    v_min_u32 v{KV}, -2, v{KV}
    buffer_store_dwordx4 {vr(KV,4)}, v{W16}, {WSR}, s{sKVM} offen sc1
    """)
    stamp(a, 3)
    if OPTS.get("tsteps"):
        a(f"""v_bfe_u32 v20, v{W16}, 4, 6
        v_lshlrev_b32 v21, 2, v20
        v_lshlrev_b32 v20, 3, v20
        v_add_u32 v20, {LB + L_KT + 4}, v20
        ds_read_b32 v22, v20
        s_lshl_b32 s10, s{h}, 8
        s_add_u32 s10, s10, {hex(WS_STAMP + 0x20000)}
        s_waitcnt lgkmcnt(0)
        buffer_store_dword v22, v21, {WSR}, s10 offen""")
    if OPTS.get("tprof"):
        a(f"s_lshl_b32 s4, s{h}, 2\ns_add_u32 s4, s4, s{w}\ns_lshl_b32 s4, s4, 6\ns_add_u32 s4, s4, {hex(WS_STAMP + 0x10000)}")
        for k in range(9): a(f"v_mov_b32 v20, s{28+k}\nbuffer_store_dword v20, v{ZERO}, {WSR}, s4 offen offset:{4*k}")
        a(f"v_mov_b32 v20, s{sSPIN}\nbuffer_store_dword v20, v{ZERO}, {WSR}, s4 offen offset:36")
        a(f"v_mov_b32 v20, s37\nbuffer_store_dword v20, v{ZERO}, {WSR}, s4 offen offset:40")
    a("s_waitcnt vmcnt(0)\ns_endpgm")
```

```python
from common import *

A16, W16, RA, ORA, T0, T1, EX, ONES, GT, T2, XM, WD = 2, 3, 4, 5, 6, 7, 8, 16, 20, 24, 25, 26
S, P, C, O = 32, (64, 80), 96, 128
AQ, AK, AV, AL = 0, 64, 96, 128
L_K01 = 131072
sH, sQB, sB, sNA, sKO, sVO, sKB, sKMAX, sSLOT, sM0, sT0, sT1, sQO, sPO, sBIT, sRET, sWO, sM1, sSPIN = range(56, 75)
sPQ = 76
TOFF_DEFAULT = 16.0
NINF = "0xff800000"

def mf(D, A, B, Cc): return f"v_mfma_f32_16x16x32_bf16 {D}, {A}, {B}, {Cc}"
def qk_list(q0):
    l = []
    for qt in range(q0, 4):
        for kt in range(2):
            d = vr(S + 8*qt + 4*kt, 4)
            for t in range(4):
                l.append(mf(d, ar(AK + 4*(2*t+kt), 4), ar(AQ + 16*qt + 4*t, 4), vr(C + 8*qt + 4*kt, 4) if t == 0 else d))
    return l
def pv_list(par, q0):
    l = [mf(ar(AL + 4*qt, 4), vr(ONES, 4), vr(P[par] + 4*qt, 4), ar(AL + 4*qt, 4)) for qt in range(q0, 4)]
    for f in range(8):
        for qt in range(q0, 4):
            d = vr(O + 32*qt + 4*f, 4)
            l.append(mf(d, ar(AV + 4*f, 4), vr(P[par] + 4*qt, 4), d))
    return l
vrd = lambda f: f"ds_read_b128 {ar(AV + 4*f, 4)}, v{RA} offset:{f*1024}"
krd = lambda f: f"ds_read_b128 {ar(AK + 4*f, 4)}, v{RA} offset:{8192 + f*1024}"

def dma_kv():
    return [([f"s_add_u32 m0, s{sSLOT}, s{sM0}"], f"buffer_load_dwordx4 v{W16}, {WSR}, s{sVO} offen sc1 lds"),
            ([f"s_min_u32 s{sT0}, s{sKB}, s{sKMAX}"], f"buffer_load_dwordx4 v{W16}, {WSR}, s{sVO} offen offset:1024 sc1 lds"),
            ([f"s_add_u32 m0, m0, 0x2000"], f"buffer_load_dwordx4 v{W16}, {WSR}, s{sT0} offen sc1 lds"),
            ([f"s_add_u32 s{sVO}, s{sVO}, 0x2000"], f"buffer_load_dwordx4 v{W16}, {WSR}, s{sT0} offen offset:1024 sc1 lds"),
            ([f"s_add_u32 s{sKB}, s{sKB}, 0x2000", f"s_add_u32 s{sSLOT}, s{sSLOT}, 0x4000", f"s_and_b32 s{sSLOT}, s{sSLOT}, 0x1ffff"], None)]
def dma_w(k):
    return [([f"s_add_u32 m0, s{sM1}, {k*16384 + i*1024}", f"s_add_u32 s{sT0}, s{sWO}, {i*8192 + k*128}"],
             f"buffer_load_dwordx4 v{WD}, s[48:51], s{sT0} offen lds") for i in range(4)] + [([], None)]
def emit_dma(a, d):
    for sc_, ld in d:
        a.emit(sc_)
        if ld: a(("s_nop 0\n" if len(sc_) < 2 else "") + ld)

def mask_ops(j):
    q0 = j >> 1; l = []
    for kt in range(2):
        for i in range(4):
            r = C + 8*q0 + 4*kt + i; m = 80 + 2*((4*kt + i) & 3)
            l.append((f"v_cmp_gt_i32 s[{m}:{m+1}], {16*(2*(j&1)+kt) + i}, v{XM}", f"v_cndmask_b32 v{r}, v{r}, v{T2}, s[{m}:{m+1}]"))
    out = []
    for h in range(2): out += [x[0] for x in l[4*h:4*h+4]] + [x[1] for x in l[4*h:4*h+4]]
    return out

SITES = []
def body(a, name, par, qa, qb_, dma, nextmask=None, kreads=True):
    a(name + ":")
    qk = qk_list(qa); pv = pv_list(par, qb_)
    nq, n = len(qk), len(qk) + len(pv)
    G = Gaps(qk + pv)
    a("s_waitcnt vmcnt(24) lgkmcnt(0)")
    mem = [(f, [], vrd(f)) for f in range(8)]
    gap = 3 if qa == 0 else 1
    mem += [(8 + (11 if qa == 0 else 0) + gap*k, dma[k][0], dma[k][1]) for k in range(4)]
    if kreads: mem += [(nq + (1 + 3*f if qb_ == 0 else f), [], krd(f)) for f in range(8)]
    items = []
    for qt in range(qa, 4):
        for kt in range(2):
            tl = 2*qt + kt; s = S + 4*tl; e = EX + 4*kt; p = P[1-par] + 2*tl; rdy = 4*(tl - 2*qa) + 3 + 3
            items += [("e", rdy, f"v_exp_f32 v{e+i}, v{s+i}") for i in range(4)]
            items += [("c", 0, f"v_cvt_pk_bf16_f32 v{p}, v{e}, v{e+1}"), ("c", 0, f"v_cvt_pk_bf16_f32 v{p+1}, v{e+2}, v{e+3}"),
                      ("c", 0, f"v_or_b32 v{ORA}, v{p}, v{p+1}" if tl == 2*qa else f"v_or3_b32 v{ORA}, v{ORA}, v{p}, v{p+1}")]
    items += [("c", 0, f"v_and_b32 v{ORA}, s{sBIT}, v{ORA}"), ("c", 0, f"v_cmp_ne_u32 vcc, 0, v{ORA}")]
    if nextmask is not None: items += [("c", nq, x) for x in mask_ops(nextmask)]
    items += [("r", 0, f"v_add_u32 v{RA}, 0x4000, v{RA}"), ("r", 0, f"v_and_b32 v{RA}, 0x1ffff, v{RA}")]
    late = list(dma[4][0]) + [f"s_add_u32 s{sB}, s{sB}, 1"]
    vwait = nq + (4 - qb_) - 1
    k = mi = 0; nds_after_v = 0
    for g in range(n):
        last = g == n - 1
        sc, me, va = [], [], []
        if g == 0: sc.append("s_barrier")
        cap = 2
        while mi < len(mem) and (last or (mem[mi][0] <= g and len(me) == 0)):
            pre = mem[mi][1]
            if pre: me += pre + (["s_nop 0"] if len(pre) < 2 and "m0" in pre[0] else [])
            me.append(mem[mi][2])
            if mi >= 8 and mem[mi][2].startswith("ds_") and g <= vwait: nds_after_v += 1
            mi += 1; cap -= 1
        while k < len(items):
            ty, rdy, ins = items[k]
            cost = 2 if ty == "e" else 1
            if not last:
                if g < rdy or cost > cap: break
                if ty == "r" and mi < len(mem): break
                if ty != "e" and va and va[-1].startswith("v_exp"): break
            elif ty != "e" and va and va[-1].startswith("v_exp"): va.append("s_nop 0")
            va.append(ins); cap -= cost; k += 1
        if not sc and not (me and me[0].startswith("s_")):
            if late and mi >= 12: sc.append(late.pop(0))
            elif g < nq + 4: sc.append("s_nop 0")
        if last: va += late
        if g == vwait:
            assert mi >= 8
            va.append(f"s_waitcnt lgkmcnt({nds_after_v})")
        G.add(g, *(sc + me + va))
    G.emit(a)
    SITES.append((name, 1 - par, qa))
    a(f"s_cbranch_vccnz {name}_t\n{name}_r:")

def rescale(a, par, init):
    for qt in range(4):
        s = S + 8*qt
        if not init: a(f"L_a_slow{par}_{qt}:")
        a(f"""
        v_max3_f32 v{T0}, v{s}, v{s+1}, v{s+2}
        v_max3_f32 v{T1}, v{s+3}, v{s+4}, v{s+5}
        v_max3_f32 v{T0}, v{T0}, v{s+6}, v{s+7}
        v_max_f32 v{T0}, v{T0}, v{T1}
        """)
        for sw in ("v_permlane32_swap_b32", "v_permlane16_swap_b32"):
            a(f"v_mov_b32 v{T1}, v{T0}\ns_nop 1\n{sw} v{T1}, v{T0}\nv_max_f32 v{T0}, v{T0}, v{T1}")
        a(f"v_add_f32 v{T0}, {fbits(float(OPTS.get('toff', TOFF_DEFAULT)))}, v{T0}")
        if not init:
            a(f"v_max_f32 v{T0}, 0, v{T0}\nv_exp_f32 v{T1}, -v{T0}")
        for i in range(8): a(f"v_sub_f32 v{C+8*qt+i}, v{C+8*qt+i}, v{T0}")
        if not init:
            for i in range(32): a(f"v_mul_f32 v{O+32*qt+i}, v{O+32*qt+i}, v{T1}")
            for i in range(4):
                a(f"v_accvgpr_read_b32 v{EX}, a{AL+4*qt+i}\nv_mul_f32 v{EX}, v{EX}, v{T1}\nv_accvgpr_write_b32 a{AL+4*qt+i}, v{EX}")
        for i in range(8): a(f"v_sub_f32 v{EX+i}, v{s+i}, v{T0}")
        for i in range(8): a(f"v_exp_f32 v{EX+i}, v{EX+i}")
        for i in range(4): a(f"v_cvt_pk_bf16_f32 v{P[par]+4*qt+i}, v{EX+2*i}, v{EX+2*i+1}")
        if init: emit_dma(a, dma_kv())

def out_proj(a):
    CF, RB, SQ = S, EX, C
    wf = lambda ct, t: AK + 16*ct + 4*t
    def rd(u, j):
        t, x = j >> 1, j & 1
        return f"ds_read_b64_tr_b16 {ar(wf(u & 3, t) + 2*x, 2)}, v{RB + 4*(u >> 4) + (u & 3)} offset:{((u >> 2) & 3)*16384 + t*4096 + x*2048}"
    acc = lambda u, qt: O + 32*((u >> 1) & 1) + 8*qt + 4*(u & 1)
    def epi(c):
        l = []
        for qt in range(4):
            b = acc(2*c, qt); q = SQ + 4*qt + 16*(c & 1)
            l += [f"v_cvt_pk_bf16_f32 v{q+i}, v{b+2*i}, v{b+2*i+1}" for i in range(4)]
            l.append(f"buffer_store_dwordx4 {vr(q,4)}, v{A16}, {WSR}, s{sPQ+qt} offen offset:{(c & 3)*1024} sc1")
        return l
    for u in range(2):
        for j in range(8): a(rd(u, j))
    a("s_waitcnt lgkmcnt(8)")
    ms = []
    for u in range(32):
        for qt in range(4):
            d = vr(acc(u, qt), 4)
            for t in range(4): ms.append(mf(d, ar(wf(u & 3, t), 4), vr(CF + 16*qt + 4*t, 4), "0" if t == 0 else d))
    G = Gaps(ms)
    for u in range(32):
        g0 = 16*u
        if u == 25: G.add(g0 + 14, "s_waitcnt vmcnt(32)", "s_barrier")
        if u + 2 < 32:
            for j in range(8): G.add(g0 + 2*j, rd(u + 2, j))
        if u < 31: G.add(g0 + 15, f"s_waitcnt lgkmcnt({8 if u + 2 < 32 else 0})")
        if u >= 2 and not u & 1:
            c = u//2 - 1; g = g0 + 3
            if c and not c & 3:
                for qt in range(4): G.add(g0 + 1, f"s_add_u32 s{sPQ+qt}, s{sPQ+qt}, 0x1000")
            else: G.add(g0 + 1, "s_nop 1")
            e = epi(c)
            for qt in range(4):
                G.add(g, *e[5*qt:5*qt+2]); G.add(g + 2, *e[5*qt+2:5*qt+4]); G.add(g + 4, e[5*qt+4]); g += 6
    G.emit(a)
    a("s_nop 7"); a.emit(epi(15))

def gen_att(a, next_label):
    w = S_WAVE
    SITES.clear()
    a("L_att:")
    a(f"""
    v_lshlrev_b32 v{A16}, 4, v0
    s_lshl_b32 s{sM0}, s{w}, 11
    v_add_u32 v{W16}, s{sM0}, v{A16}
    s_mov_b32 s{sSPIN}, 0
    v_and_b32 v{T0}, 7, v0
    s_lshl3_add_u32 s{sT1}, s{sQB}, 8
    v_lshlrev_b32 v{T1}, 4, v{T0}
    v_sub_u32 v{T1}, s{sT1}, v{T1}
    v_med3_i32 v{T1}, v{T1}, 0, 16
    s_lshl_b32 s{sT0}, s{sH}, 7
    s_add_u32 s{sT0}, s{sT0}, {hex(WS_FLAG)}
    v_lshl_add_u32 v{T0}, v{T0}, 2, s{sT0}
    s_bfe_u32 m0, s3, 0x30010
    s_bfe_u32 s{sT1}, s3, 0x60014
    s_nop 0
    v_writelane_b32 v{T1}, s{sT1}, m0
    s_lshl_b32 s{sT0}, s{sQB}, 7
    s_add_u32 s{sT0}, s{sT0}, {hex(CNT_GATE)}
    v_writelane_b32 v{T0}, s{sT0}, 63
    v_writelane_b32 v{T1}, 16, 63
    buffer_load_dword v{T2}, v{T0}, {WSR}, 0 offen sc1
    """)
    for i in range(64): a(f"v_mov_b64 {vr(O+2*i,2)}, 0")
    for i in range(16): a(f"v_mov_b64 {vr(C+2*i,2)}, 0\nv_accvgpr_write_b32 a{AL+i}, 0")
    for i in range(4): a(f"v_mov_b32 v{ONES+i}, 0x3f803f80")
    set_srd(a, S_SRD1, S_WOA, 0x400000)
    a(f"""
    s_lshl_b32 s{sT0}, s{sH}, 19
    s_add_u32 s{sKO}, s{sT0}, {hex(WS_PROJ + (1 << 24))}
    s_add_u32 s{sVO}, s{sT0}, {hex(WS_PROJ + (2 << 24))}
    s_lshl_b32 s{sNA}, s{sQB}, 3
    s_lshr_b32 s{sT1}, s{w}, 1
    s_add_u32 s{sT1}, s{sT1}, s{sNA}
    s_lshl_b32 s{sQO}, s{sT1}, 13
    s_add_u32 s{sQO}, s{sQO}, s{sT0}
    s_and_b32 s{sT1}, s{w}, 1
    s_lshl_b32 s{sT1}, s{sT1}, 10
    s_add_u32 s{sQO}, s{sQO}, s{sT1}
    s_lshl4_add_u32 s{sPO}, s{sQB}, s{w}
    s_add_u32 s{sKMAX}, s{sNA}, 7
    s_lshl_b32 s{sKMAX}, s{sKMAX}, 13
    s_add_u32 s{sKMAX}, s{sKMAX}, s{sKO}
    s_sub_u32 s{sNA}, s{sNA}, 1
    s_add_u32 s{sKB}, s{sKO}, 0x4000
    s_mov_b32 s{sSLOT}, 0
    s_mov_b32 s{sBIT}, 0x40004000
    s_lshl_b32 s{sM1}, s{w}, 12
    s_lshl_b32 s{sWO}, s{sH}, 17
    s_lshl_b32 s{sT1}, s{w}, 15
    s_add_u32 s{sWO}, s{sWO}, s{sT1}
    v_lshrrev_b32 v{EX}, 4, v0
    v_and_b32 v{EX+1}, 15, v0
    s_lshl_b32 s{sT1}, s{w}, 4
    v_add_u32 v{XM}, s{sT1}, v{EX+1}
    v_lshlrev_b32 v{EX+2}, 2, v{EX}
    v_sub_u32 v{XM}, v{XM}, v{EX+2}
    v_lshlrev_b32 v{EX}, 1, v{EX}
    v_and_b32 v{EX+2}, 7, v0
    v_xor_b32 v{EX}, v{EX}, v{EX+2}
    v_lshlrev_b32 v{EX}, 4, v{EX}
    v_lshrrev_b32 v{EX+2}, 3, v0
    v_lshl_add_u32 v{WD}, v{EX+2}, 10, v{EX}
    v_lshlrev_b32 v{EX+1}, 2, v{EX+1}
    v_add_u32 v{RA}, {L_K01 - 8192}, v{A16}
    L_a_wait:
    s_waitcnt vmcnt(0)
    v_cmp_gt_u32 vcc, v{T1}, v{T2}
    s_cbranch_vccz L_a_go
    s_sleep {OPTS.get('slp', 4)}
    buffer_load_dword v{T2}, v{T0}, {WSR}, 0 offen sc1
    s_add_u32 s{sSPIN}, s{sSPIN}, 1
    s_cmp_gt_u32 s{sSPIN}, {SPIN_MAX}
    s_cbranch_scc1 L_exit
    s_branch L_a_wait
    L_a_go:
    """)
    stamp(a, 8)
    a(f"""
    s_add_u32 m0, s{sM0}, {L_K01}
    s_add_u32 s{sT0}, s{sKO}, 0x2000
    buffer_load_dwordx4 v{W16}, {WSR}, s{sKO} offen sc1 lds
    buffer_load_dwordx4 v{W16}, {WSR}, s{sKO} offen offset:1024 sc1 lds
    s_add_u32 m0, s{sM0}, {L_K01 + 8192}
    s_lshl_b32 s{sT1}, s{sPO}, 6
    buffer_load_dwordx4 v{W16}, {WSR}, s{sT0} offen sc1 lds
    buffer_load_dwordx4 v{W16}, {WSR}, s{sT0} offen offset:1024 sc1 lds
    s_add_u32 s{sT1}, s{sT1}, {hex(WS_GATE)}
    """)
    for qt in range(4):
        a(f"s_add_u32 s{sB}, s{sQO}, 0x1000")
        for t in range(4):
            a(f"buffer_load_dwordx4 {ar(AQ+16*qt+4*t,4)}, v{A16}, {WSR}, s{sQO if t < 2 else sB} offen offset:{(t&1)*2048} sc1")
        a(f"s_add_u32 s{sQO}, s{sQO}, 0x4000")
    for qt in range(4): a(f"buffer_load_dword v{GT+qt}, v{EX+1}, {WSR}, s{sT1} offen offset:{256*qt} sc1")
    for st in range(2): emit_dma(a, dma_kv())
    a(f"""
    s_mul_i32 s{sPO}, s{sPO}, {PART_T}
    s_lshl_b32 s{sT1}, s{sH}, 14
    s_add_u32 s{sPO}, s{sPO}, s{sT1}
    """)
    for qt in range(4): a(f"s_add_u32 s{sPQ+qt}, s{sPO}, {hex(WS_PART + 4*qt*PART_T)}")
    a(f"v_mov_b32 v{T2}, {NINF}\ns_cmp_lg_u32 s{sQB}, 0\ns_cbranch_scc1 L_a_nomask0")
    a.emit(mask_ops(0))
    a("L_a_nomask0:\ns_waitcnt vmcnt(28)\ns_barrier")
    for f in range(8): a(krd(f))
    a(f"v_add_u32 v{RA}, 0x2000, v{RA}")
    qk = qk_list(0)
    for qt in range(4):
        a(f"s_waitcnt vmcnt({24 - 4*qt}) lgkmcnt(0)")
        for m in qk[8*qt:8*qt+8]: a(m)
    for f in range(8): a(krd(f))
    a(f"v_mov_b32 v{RA}, v{A16}")
    emit_dma(a, dma_kv())
    rescale(a, 0, True)
    stamp(a, 9)
    a(f"s_mov_b32 s{sB}, 0\ns_cmp_lg_u32 s{sQB}, 0\ns_cbranch_scc1 L_a_s0")
    a.emit(mask_ops(1))
    a("s_branch L_a_d1")
    body(a, "L_a_s1", 1, 0, 0, dma_kv())
    body(a, "L_a_s0", 0, 0, 0, dma_kv())
    a(f"s_cmp_eq_u32 s{sB}, s{sNA}\ns_cbranch_scc0 L_a_s1")
    a.emit(mask_ops(0))
    a("s_nop 0")
    for j in range(8):
        body(a, f"L_a_d{j}", (j - 1) & 1, j >> 1, max(j - 1, 0) >> 1, dma_kv() if j < 2 else dma_w(j - 2),
             nextmask=j + 1 if j < 7 else None, kreads=j < 7)
    stamp(a, 10)
    a("s_waitcnt vmcnt(24)\ns_barrier")
    for f in range(8): a(vrd(f))
    emit_dma(a, dma_w(6))
    pv = pv_list(1, 3)
    a(pv[0])
    for f in range(8): a(f"s_waitcnt lgkmcnt({7-f})\n" + pv[1+f])
    a("s_barrier")
    emit_dma(a, dma_w(7))
    for qt in range(4):
        a(f"v_accvgpr_read_b32 v{T0}, a{AL+4*qt}\nv_rcp_f32 v{T0}, v{T0}\ns_nop 0\nv_mul_f32 v{GT+qt}, v{GT+qt}, v{T0}")
    for qt in range(4):
        for t in range(4):
            b = O + 32*qt + 8*t; q = S + 16*qt + 4*t
            for i in range(8): a(f"v_mul_f32 v{b+i}, v{b+i}, v{GT+qt}")
            for i in range(4): a(f"v_cvt_pk_bf16_f32 v{q+i}, v{b+2*i}, v{b+2*i+1}")
    RB = EX
    a(f"""
    v_lshrrev_b32 v{T0}, 2, v0
    v_lshlrev_b32 v{RB}, 7, v{T0}
    v_bfe_u32 v{T0}, v0, 3, 2
    v_lshl_add_u32 v{RB}, v{T0}, 5, v{RB}
    v_and_b32 v{T0}, 3, v0
    v_lshl_add_u32 v{RB}, v{T0}, 3, v{RB}
    """)
    for c in range(1, 4): a(f"v_xor_b32 v{RB+c}, {32*c}, v{RB}")
    for c in range(4): a(f"v_add_u32 v{RB+4+c}, 0x10000, v{RB+c}")
    a("s_waitcnt vmcnt(4)\ns_barrier")
    stamp(a, 12)
    out_proj(a)
    a(f"""
    s_lshl_b32 s{sT0}, s{sQB}, 7
    s_add_u32 s{sT0}, s{sT0}, {hex(CNT_CTX)}
    s_cmp_eq_u32 s{w}, 0
    s_cselect_b32 s{sT0}, s{sT0}, {hex(OOB)}
    v_mov_b32 v{T0}, 1
    s_waitcnt vmcnt(0)
    s_barrier
    s_mov_b64 exec, 1
    buffer_atomic_add v{T0}, v{A16}, {WSR}, s{sT0} offen
    s_mov_b64 exec, -1
    s_branch {next_label}
    """)
    for k, (name, par, q0) in enumerate(SITES):
        a(f"{name}_t:\ns_mov_b32 s{sRET}, {k}\ns_nop 6\ns_branch L_a_slow{par}_{q0}")
    for par in range(2):
        rescale(a, par, False)
        mine = [(k, n) for k, (n, p, _) in enumerate(SITES) if p == par]
        for k, n in mine[:-1]: a(f"s_cmp_eq_u32 s{sRET}, {k}\ns_cbranch_scc1 {n}_r")
        a(f"s_branch {mine[-1][1]}_r")
```

```python
from common import *

NINF = "0xff800000"
def mf(D, A, B, Cc): return f"v_mfma_f32_16x16x32_bf16 {D}, {A}, {B}, {Cc}"
def mf16(D, A, B): return f"v_mfma_f32_16x16x16_bf16 {D}, {A}, {B}, {D}"

A16, T0, T1, T2, T3, ZERO, XTW, XTR, GT, GTN, QA, CW, CR, QB_ = range(2, 16)
ONES, CM, GA, PMZ, PX, S, LL, KVM, VM, Q, KM, K, PK, CF, ACC, SQ, FL, ONE = 16, 20, 31, 32, 36, 40, 52, 56, 72, 80, 96, 112, 144, 152, 216, 232, 240, 241
OA, V = Q, K
sHP, sSPIN, sT0, sT1, sT2, sHD, sSEG, sNXT, sPEND, sNX2, sM0, sSRC, sQO, sKV0, sPB, sP0, sCB, sFF, sGO = range(56, 75)
L_CTX, L_XT = 98304, 131072

class LG:
    def __init__(self): self.n = 0; self.t = {}; self.done = 0
    def op(self, tag, ins): self.n += 1; self.t[tag] = self.n; return ins
    def need(self, tag):
        m = self.t[tag]
        if m <= self.done: return None
        self.done = m
        return f"s_waitcnt lgkmcnt({min(15, self.n - m)})"

def spin(a): a(f"s_add_u32 s{sSPIN}, s{sSPIN}, 1\ns_cmp_gt_u32 s{sSPIN}, {SPIN_MAX}\ns_cbranch_scc1 L_exit")

OUTL = []
def dma_setup(a, seg):
    l = a.newlabel("b_ff")
    a(f"""
    s_lshr_b32 s{sT1}, s{seg}, 4
    s_lshl_b32 s{sQO}, s{seg}, 9
    s_add_u32 s{sQO}, s{sQO}, s{sSRC}
    s_lshl_b32 s{sGO}, s{seg}, 3
    s_bitcmp1_b32 s{seg}, 2
    s_cselect_b32 s{sQO}, {hex(OOB)}, s{sQO}
    s_cselect_b32 s{sGO}, {hex(OOB)}, s{sGO}
    s_cselect_b32 s{sT1}, -1, s{sT1}
    {l}c:
    v_cmp_lt_i32 vcc, s{sT1}, v{FL}
    s_cbranch_vccz {l}
    """)
    OUTL.append(f"{l}:\nbuffer_load_dword v{FL}, v{ZERO}, {WSR}, s{sFF} offen sc1\ns_add_u32 s{sSPIN}, s{sSPIN}, 1\ns_cmp_gt_u32 s{sSPIN}, {SPIN_MAX}\ns_cbranch_scc1 L_exit\ns_waitcnt vmcnt(0)\ns_branch {l}c")
def dma_ops():
    l = []
    for m in range(3):
        for i in range(4):
            l.append(([f"s_add_u32 m0, s{sM0}, {m*8192}", f"s_add_u32 s{sT1}, s{sQO}, {hex(m << 24)}"] if i == 0 else [],
                      f"buffer_load_dwordx4 v{A16}, {WSR}, s{sT1} offen offset:{1024*i} sc1 lds"))
    l.append(([], f"buffer_load_dword v{GTN}, v{GA}, {WSR}, s{sGO} offen sc1"))
    l.append(([], f"buffer_load_dword v{FL}, v{ZERO}, {WSR}, s{sFF} offen sc1"))
    return l
def flip():
    return [f"s_cmp_ge_u32 s{sM0}, 49152", f"s_mov_b32 s{sT2}, 49152", f"s_cmov_b32 s{sT2}, -49152", f"s_add_u32 s{sM0}, s{sM0}, s{sT2}"]

def kvm_loads(seg):
    return [f"s_lshl_b32 s{sT0}, s{seg}, 13", f"s_add_u32 s{sT0}, s{sT0}, s{sKV0}"] + \
           [f"buffer_load_dwordx4 {vr(KVM+4*t,4)}, v{A16}, {WSR}, s{sT0} offen offset:{1024*t} sc1" for t in range(4)]
def kvm_check():
    return [f"v_max3_u32 v{T0}, v{KVM}, v{KVM+4}, v{KVM+8}", f"v_max_u32 v{T0}, v{T0}, v{KVM+12}", f"v_cmp_eq_u32 vcc, -1, v{T0}"]

L_CNT = 147456
def signal(a, seg):
    l = a.newlabel("b_sig")
    a(f"""
    s_bitcmp1_b32 s{seg}, 2
    s_cbranch_scc1 {l}
    s_lshr_b32 s{sT0}, s{seg}, 2
    s_add_u32 s{sT0}, s{sT0}, {L_CNT}
    v_mov_b32 v{T0}, s{sT0}
    s_mov_b64 exec, 1
    ds_add_rtn_u32 v{T0}, v{T0}, v{ONE}
    s_lshl_b32 s{sT0}, s{seg}, 3
    s_add_u32 s{sT0}, s{sT0}, {hex(CNT_B)}
    s_waitcnt lgkmcnt(0)
    v_cmp_eq_u32 vcc, 3, v{T0}
    s_cbranch_vccz {l}x
    buffer_atomic_add v{ONE}, v{ZERO}, {WSR}, s{sT0} offen
    {l}x:
    s_mov_b64 exec, -1
    {l}:
    """)

def xb_items():
    it = []
    ds = lambda tag, ins: it.append(("ds", tag, ins))
    v = lambda *l: it.extend(("v", x) for x in l)
    m = lambda ins: it.append(("m", ins))
    need = lambda tag: it.append(("need", tag))
    dist = lambda n: it.append(("dist", n))
    DM = S + 8
    for t in range(4): ds(("kw", t), f"ds_write2st64_b32 v{XTW}, v{KVM+4*t}, v{KVM+4*t+1} offset0:{2*t} offset1:{2*t+8}")
    for t in range(4):
        ds(("q", t), f"ds_read_b128 {vr(Q+4*t,4)}, v{QB_} offset:{t*2048}")
        for kt in range(2): ds(("k", t, kt), f"ds_read_b128 {vr(K+4*(2*t+kt),4)}, v{QA} offset:{8192 + (2*t+kt)*1024}")
    v(*[f"v_mov_b64 {vr(VM+2*t,2)}, {vr(KVM+4*t+2,2)}" for t in range(4)])
    need(("kw", 3))
    kl = kvm_loads(sNX2)
    it.append(("vm", kl[:2], kl[2]))
    for x in kl[3:]: it.append(("vm", [], x))
    for t in range(4):
        need(("k", t, 1))
        for kt in range(2):
            d = vr(S + 4*kt, 4)
            m(mf(d, vr(K+4*(2*t+kt),4), vr(Q+4*t,4), vr(CM+4*kt,4) if t == 0 else d))
            ds(("km", t, kt), f"ds_read_b64_tr_b16 {vr(KM+4*t+2*kt,2)}, v{XTR} offset:{kt*2048 + t*512}")
    for f in range(4): ds(("v", f), f"ds_read_b128 {vr(V+4*f,4)}, v{QA} offset:{16384 + f*1024}")
    need(("km", 3, 1))
    for t in range(4):
        m(mf(vr(DM,4), vr(KM+4*t,4), vr(Q+4*t,4), "0" if t == 0 else vr(DM,4)))
        ds(("v", 4+t), f"ds_read_b128 {vr(V+4*(4+t),4)}, v{QA} offset:{16384 + (4+t)*1024}")
    v(f"v_subrev_u32 v{QA}, s{sT2}, v{QA}", f"v_subrev_u32 v{QB_}, s{sT2}, v{QB_}", f"v_max_f32 v{T0}, v{S}, v{S+1}")
    for i in range(2, 8, 2): v(f"v_max3_f32 v{T0}, v{T0}, v{S+i}, v{S+i+1}")
    dist(8)
    v(f"v_max3_f32 v{T0}, v{T0}, v{DM}, v{DM+1}")
    for sw in ("v_permlane32_swap_b32", "v_permlane16_swap_b32"):
        v(f"v_mov_b32 v{T1}, v{T0}"); it.append(("gap", 2)); v(f"{sw} v{T1}, v{T0}", f"v_max_f32 v{T0}, v{T0}, v{T1}")
    for i in range(10): v(f"v_sub_f32 v{S+i}, v{S+i}, v{T0}")
    for i in range(10): v(f"v_exp_f32 v{S+i}, v{S+i}")
    for i in range(4): v(f"v_cvt_pk_bf16_f32 v{PX+i}, v{S+2*i}, v{S+2*i+1}")
    v(f"v_cvt_pk_bf16_f32 v{PMZ}, v{DM}, v{DM+1}", f"v_cvt_pk_bf16_f32 v{PMZ+3}, v{DM}, v{DM+1}")
    need(("v", 7))
    m(mf(vr(LL,4), vr(ONES,4), vr(PX,4), "0"))
    for f in range(8):
        m(mf(vr(OA+4*f,4), vr(V+4*f,4), vr(PX,4), "0"))
        if f == 5: m(mf16(vr(LL,4), vr(ONES,2), vr(PMZ,2)))
    for f in range(8):
        m(mf16(vr(OA+4*f,4), vr(VM+2*(f>>1),2), vr(PMZ+2*(f&1),2)))
        if f == 5: v(f"v_rcp_f32 v{T0}, v{LL}")
        if f == 6: v(f"v_mul_f32 v{T0}, v{T0}, v{GT}")
    for t in range(4):
        b = OA + 8*t; q = PK + 4*(t & 1)
        v(*[f"v_mul_f32 v{b+i}, v{b+i}, v{T0}" for i in range(8)])
        if t >= 2: need(("cw", t - 2))
        v(*[f"v_cvt_pk_bf16_f32 v{q+i}, v{b+2*i}, v{b+2*i+1}" for i in range(4)])
        ds(("cw", t), f"ds_write_b128 v{CW}, {vr(q,4)} offset:{t*1024}")
    v(f"v_xor_b32 v{CW}, 0x4000, v{CW}")
    return it

def xb_alone(a):
    lg = LG(); since = 0
    for x in xb_items():
        if x[0] == "ds": a(lg.op(x[1], x[2]))
        elif x[0] == "vm": a.emit(x[1]); a(x[2])
        elif x[0] == "need":
            w_ = lg.need(x[1])
            if w_: a(w_)
        elif x[0] == "dist":
            if since < x[1]: a(f"s_nop {x[1] - since - 1}")
        elif x[0] == "gap": a(f"s_nop {x[1] - 1}")
        else: a(x[1])
        since = 0 if x[0] == "m" else since + (x[0] in ("ds", "v", "vm"))

def gemm(a, merged):
    lg = LG()
    acc = lambda u: ACC + 4*(u & 3)
    ms = []
    for u in range(16):
        tt, ct = u >> 3, u & 7
        d = vr(acc(u), 4)
        for k in range(8): ms.append(mf(d, ar((ct*8 + k)*4, 4), vr(CF + 32*tt + 4*k, 4), "0" if k == 0 else d))
    def epi(c):
        b = acc(2*c); q = SQ + 4*(c & 1)
        return [f"v_cvt_pk_bf16_f32 v{q+i}, v{b+2*i}, v{b+2*i+1}" for i in range(4)] + \
               [f"buffer_store_dwordx4 {vr(q,4)}, v{A16}, {WSR}, s{sP0} offen offset:{(c & 3)*1024} sc1"]
    own = {}
    add = lambda g, *x: own.setdefault(g, []).append(x)
    for k in range(7): add(k, "need", ("c", k + 1))
    for k in range(8): add(40 + 2*k, "ds", ("c", 8 + k), f"ds_read_b128 {vr(CF+32+4*k,4)}, v{CR} offset:{8192 + k*1024}")
    add(63, "need", ("c", 15)); add(66, "v", f"v_xor_b32 v{CR}, 0x4000, v{CR}")
    for c in range(7):
        e = epi(c); g = 16*(c+1) + 7
        if c == 4: add(g - 1, "s", f"s_add_u32 s{sP0}, s{sP0}, {PART_T}")
        add(g, "v", e[0]); add(g, "v", e[1]); add(g + 1, "v", e[2]); add(g + 1, "v", e[3]); add(g + 2, "vm", [], e[4])
    g = 27 if merged else 8
    for pre, ld in dma_ops():
        while g in own: g += 1
        add(g, "vm", pre, ld); g += 3 if merged else 2
    for k in range(8): a(lg.op(("c", k), f"ds_read_b128 {vr(CF+4*k,4)}, v{CR} offset:{k*1024}"))
    a(lg.need(("c", 0)))
    xb = xb_items() if merged else []
    out = []; xi = 0; n = 0
    issued = {}; hold = 0; xmf = -99; cnt = [0]
    def put(ins): out.append(ins); cnt[0] += 1
    def fill(cap, sc, me, va):
        nonlocal xi, hold, xmf
        while xi < len(xb):
            x = xb[xi]
            if x[0] == "m": return True
            if x[0] == "need":
                if lg.t[x[1]] > lg.done and n - issued[x[1]] < 5: return False
                if me or va:
                    if lg.t[x[1]] > lg.done: return False
                w_ = lg.need(x[1])
                if w_: sc.append(w_)
            elif x[0] == "dist":
                if n - xmf < 4: return False
            elif x[0] == "gap":
                if va: return False
                sc.append("s_nop 0")
            elif x[0] in ("ds", "vm"):
                if va or cap < 1 or (me and x[0] == 'vm'): return False
                if x[0] == "ds": me.append(lg.op(x[1], x[2])); issued[x[1]] = n
                else: me.extend(x[1] + [x[2]])
                cap -= 1
            else:
                cost = 2 if x[1].startswith(("v_exp", "v_permlane", "v_rcp")) else 1
                if cost > cap: return False
                if va and va[-1].startswith(("v_exp", "v_rcp")): return False
                va.append(x[1]); cap -= cost
            xi += 1
        return False
    for g, mm in enumerate(ms):
        put(mm); n += 1
        sc, me, va = [], [], []
        for x in own.get(g, []):
            if x[0] == "need":
                w_ = lg.need(x[1])
                if w_: sc.append(w_)
            elif x[0] == "ds": me.append(lg.op(x[1], x[2])); issued[x[1]] = n
            elif x[0] == "vm": me.extend(x[1] + [x[2]])
            elif x[0] == "s": sc.append(x[1])
            else: va.append(x[1])
        cap = 2 - len(va) - (1 if me else 0)
        nxt = fill(cap, sc, me, va) if g >= 3 else False
        had_v = bool(va)
        if not sc and not (me and me[0].startswith("s_")): sc.append("s_nop 0")
        for x in sc + me + va: put(x)
        while nxt and not had_v:
            put(xb[xi][1]); xi += 1; n += 1; xmf = n
            sc, me, va = [], [], []
            nxt = fill(2, sc, me, va)
            if not sc and not (me and me[0].startswith("s_")): sc.append("s_nop 0")
            for x in sc + me + va: put(x)
    assert xi == len(xb), (xi, len(xb))
    out += ["s_nop 6"] + epi(7)
    a.emit(out)
    vm = [x for x in out if x.startswith("buffer")]
    k = 0
    while "store" in vm[-1 - k]: k += 1
    return k

def gen_barr(a, next_label):
    w = S_WAVE
    a("L_barr:")
    set_srd(a, S_SRD1, S_WOB, 0x400000)
    D0, RB = Q, K
    OUTL.clear()
    a(f"""
    v_lshlrev_b32 v{A16}, 4, v0
    v_mov_b32 v{ZERO}, 0
    s_mov_b32 s{sSPIN}, 0
    v_lshrrev_b32 v{T0}, 4, v0
    v_and_b32 v{T1}, 15, v0
    v_lshlrev_b32 v{T2}, 1, v{T0}
    v_xor_b32 v{T2}, v{T2}, v{T1}
    v_lshlrev_b32 v{T2}, 4, v{T2}
    v_lshl_add_u32 v{D0}, v{T0}, 10, v{T2}
    v_xor_b32 v{D0+1}, 128, v{D0}
    s_lshl_b32 s{sM0}, s{w}, 15
    s_lshl_b32 s{sT2}, s{sHP}, 18
    s_lshl_b32 s{sT0}, s{w}, 8
    s_add_u32 s{sT2}, s{sT2}, s{sT0}
    """)
    def wdma(hh):
        for p in range(32):
            a(f"s_add_u32 m0, s{sM0}, {p*1024}\ns_add_u32 s{sT0}, s{sT2}, {hh*131072 + p*4096}\nbuffer_load_dwordx4 v{D0+(p&1)}, s[48:51], s{sT0} offen lds")
    def wread(hh):
        for t in range(4):
            a(f"s_waitcnt vmcnt({24 - 8*t})")
            for ct in range(8):
                for x in range(2):
                    a(f"ds_read_b64_tr_b16 {ar((ct*8 + hh*4 + t)*4 + 2*x, 2)}, v{RB+ct} offset:{t*8192 + x*4096}")
        a("s_waitcnt lgkmcnt(0)")
    wdma(0)
    a(f"""
    v_lshrrev_b32 v{T2}, 2, v0
    v_lshl_add_u32 v{RB}, v{T2}, 8, s{sM0}
    v_and_b32 v{T2}, 7, v{T2}
    v_lshl_add_u32 v{RB}, v{T2}, 5, v{RB}
    v_and_b32 v{T2}, 3, v0
    v_lshl_add_u32 v{RB}, v{T2}, 3, v{RB}
    """)
    for ct in range(1, 8): a(f"v_xor_b32 v{RB+ct}, {32*ct}, v{RB}")
    wread(0); wdma(1)
    a(f"""
    s_lshr_b32 s{sT0}, s{w}, 1
    s_lshl1_add_u32 s{sHD}, s{sHP}, s{sT0}
    s_and_b32 s{sT1}, s{w}, 1
    s_lshl_b32 s{sT2}, s{w}, 12
    s_add_u32 s{sT2}, s{sT2}, {L_XT}
    v_bfe_u32 v{T3}, v0, 3, 1
    v_lshl_add_u32 v{XTW}, v{T3}, 8, s{sT2}
    v_lshl_add_u32 v{XTW}, v{T0}, 6, v{XTW}
    v_and_b32 v{T3}, 7, v0
    v_lshl_add_u32 v{XTW}, v{T3}, 3, v{XTW}
    v_lshrrev_b32 v{T3}, 5, v0
    v_lshl_add_u32 v{XTR}, v{T3}, 8, s{sT2}
    v_and_b32 v{T3}, 3, v0
    v_lshl_add_u32 v{XTR}, v{T3}, 6, v{XTR}
    v_bfe_u32 v{T3}, v0, 2, 3
    v_lshl_add_u32 v{XTR}, v{T3}, 3, v{XTR}
    s_mul_i32 s{sT2}, s{sT0}, 24576
    v_add_u32 v{QA}, s{sT2}, v{A16}
    s_lshl_b32 s{sM0}, s{sT1}, 10
    v_add_u32 v{QB_}, s{sM0}, v{QA}
    s_lshl_b32 s{sM0}, s{sT1}, 12
    s_lshl_b32 s{sSRC}, s{sHD}, 19
    s_add_u32 s{sSRC}, s{sSRC}, s{sM0}
    s_add_u32 s{sSRC}, s{sSRC}, {hex(WS_PROJ + (3 << 24))}
    s_add_u32 s{sM0}, s{sM0}, s{sT2}
    s_lshl1_add_u32 s{sT2}, s{sT1}, s{sT0}
    s_lshl_b32 s{sT2}, s{sT2}, 12
    s_add_u32 s{sT2}, s{sT2}, {L_CTX}
    v_add_u32 v{CW}, s{sT2}, v{A16}
    v_add_u32 v{CR}, {L_CTX}, v{A16}
    s_lshl_b32 s{sT2}, s{sT1}, 4
    v_add_u32 v{T1}, s{sT2}, v{T1}
    v_lshlrev_b32 v{GA}, 2, v{T1}
    v_add_u32 v{GA}, {hex(WS_GATE)}, v{GA}
    v_lshlrev_b32 v{T0}, 2, v{T0}
    v_sub_u32 v{T1}, v{T1}, v{T0}
    v_mov_b32 v{T3}, {NINF}
    s_lshl_b32 s{sFF}, s{sHD}, 7
    s_add_u32 s{sFF}, s{sFF}, {hex(FLAG_F)}
    s_lshl_b32 s{sKV0}, s{sHD}, 12
    s_add_u32 s{sKV0}, s{sKV0}, {hex(WS_KVM)}
    s_lshl2_add_u32 s{sPB}, s{sHP}, s{w}
    s_lshl_b32 s{sPB}, s{sPB}, 12
    s_add_u32 s{sPB}, s{sPB}, {hex(WS_PART + 32*16384)}
    v_mov_b32 v{ONE}, 1
    v_lshlrev_b32 v{T2}, 2, v0
    v_add_u32 v{T2}, {L_CNT}, v{T2}
    ds_write_b32 v{T2}, v{ZERO}
    """)
    for i in range(8):
        a(f"v_cmp_gt_i32 vcc, {16*(i>>2) + (i&3)}, v{T1}\nv_mov_b32 v{ONES+(i&3)}, 0x3f803f80\ns_nop 0\nv_cndmask_b32 v{CM+i}, 0, v{T3}, vcc")
    a(f"v_mov_b32 v{PMZ+1}, 0\nv_mov_b32 v{PMZ+2}, 0")
    wread(1)
    a(f"""
    s_lshl_b32 s{sT0}, s{sHD}, 7
    s_add_u32 s{sT0}, s{sT0}, {hex(WS_FLAG + 16)}
    v_lshl_add_u32 v{T0}, v0, 2, s{sT0}
    v_and_b32 v{T1}, 7, v0
    v_lshlrev_b32 v{T1}, 7, v{T1}
    v_add_u32 v{T1}, {hex(CNT_GATE)}, v{T1}
    v_cmp_gt_u32 vcc, 2, v0
    v_mov_b32 v{FL}, 0
    s_nop 0
    v_cndmask_b32 v{T0}, v{T1}, v{T0}, vcc
    v_cndmask_b32 v{T1}, 16, 32, vcc
    L_b_w0:
    buffer_load_dword v{T2}, v{T0}, {WSR}, 0 offen sc1
    """)
    spin(a)
    a(f"""
    s_waitcnt vmcnt(0)
    v_cmp_ne_u32 vcc, v{T1}, v{T2}
    s_cbranch_vccnz L_b_w0
    v_readlane_b32 s{sNXT}, v{V_TAB}, s{S_TASK}
    s_add_u32 s{S_TASK}, s{S_TASK}, 1
    s_mov_b32 s{sPEND}, 4
    v_readlane_b32 s{sNX2}, v{V_TAB}, s{S_TASK}
    s_barrier
    """)
    stamp(a, 13)
    dma_setup(a, sNXT)
    for pre, ld in dma_ops(): a.emit(pre); a(ld)
    a.emit(kvm_loads(sNXT))
    a.emit(flip())
    a(f"s_waitcnt vmcnt(0)\ns_barrier\nv_sub_f32 v{GT}, 1.0, v{GTN}")
    dma_setup(a, sNX2)
    for pre, ld in dma_ops(): a.emit(pre); a(ld)
    a.emit(flip())
    a("L_b_chk:")
    a.emit(kvm_check())
    a("s_cbranch_vccnz L_b_late")
    xb_alone(a)
    a("s_waitcnt vmcnt(0)")
    a(f"""
    L_b_join:
    s_mov_b32 s{sSEG}, s{sNXT}
    s_mov_b32 s{sNXT}, s{sNX2}
    s_bitcmp1_b32 s{sNXT}, 2
    s_cselect_b32 s{sT0}, 0, 1
    s_add_u32 s{S_TASK}, s{S_TASK}, s{sT0}
    v_sub_f32 v{GT}, 1.0, v{GTN}
    v_readlane_b32 s{sNX2}, v{V_TAB}, s{S_TASK}
    s_mul_i32 s{sP0}, s{sSEG}, {PART_T // 8}
    s_add_u32 s{sP0}, s{sP0}, s{sPB}
    """)
    dma_setup(a, sNX2)
    a.emit(kvm_check())
    a(f"""
    s_bitcmp1_b32 s{sNXT}, 2
    s_waitcnt lgkmcnt(0)
    s_barrier
    s_cbranch_scc1 L_b_alone
    s_cbranch_vccnz L_b_alone
    """)
    if OPTS.get("nomerge"): a("s_branch L_b_alone")
    a(f"s_sub_u32 s{sT2}, 0, s{sT2}")
    k = gemm(a, True)
    a.emit(flip())
    a(f"s_waitcnt vmcnt({k})")
    signal(a, sPEND)
    a(f"s_mov_b32 s{sPEND}, s{sSEG}\ns_branch L_b_join\nL_b_alone:")
    gemm(a, False)
    a.emit(flip())
    a("s_waitcnt vmcnt(0)")
    signal(a, sSEG)
    signal(a, sPEND)
    a(f"s_mov_b32 s{sPEND}, 4\ns_bitcmp1_b32 s{sNXT}, 2\ns_cbranch_scc0 L_b_chk\ns_barrier")
    stamp(a, 14)
    a(f"s_branch {next_label}")
    a(f"L_b_late:\ns_sleep {OPTS.get('slpb', 2)}")
    a.emit(kvm_loads(sNXT))
    spin(a)
    a("s_waitcnt vmcnt(0)\ns_branch L_b_chk")
    a.emit(OUTL)

SEL, RD, RING, OA_ = 8, 16, 64, 24
sCUR, sSTG, sLO, sOO, sBC = 61, 62, 64, 65, 66
def gen_red(a, next_label):
    w = S_WAVE
    a("L_red:")
    set_srd(a, S_SRD1, S_OUT, 2048 * 512 * 2)
    a(f"""
    v_lshlrev_b32 v{A16}, 4, v0
    v_mov_b32 v{ZERO}, 0
    s_mov_b32 s{sSPIN}, 0
    v_and_b32 v{T0}, 4, v{V_TAB}
    v_cmp_ne_u32 vcc, 0, v{T0}
    v_bfe_u32 v{T0}, v{V_TAB}, 4, 6
    v_lshrrev_b32 v{T1}, 3, v{T0}
    s_lshr_b32 s{sT0}, vcc_lo, s{S_TASK}
    s_ff1_i32_b32 s{sT0}, s{sT0}
    s_bfm_b32 s{sT0}, s{sT0}, s{S_TASK}
    s_cmp_eq_u32 s{sSTG}, 0
    s_cselect_b32 s{sT1}, s{sT0}, 0
    v_lshlrev_b32 v{T1}, 7, v{T1}
    v_add_u32 v{T1}, {hex(CNT_CTX)}, v{T1}
    v_lshlrev_b32 v{T0}, 7, v{T0}
    v_add_u32 v{T0}, {hex(CNT_B)}, v{T0}
    v_cmp_gt_u32 vcc, 32, v0
    v_and_b32 v{T2}, 15, v0
    v_lshrrev_b32 v{T3}, 4, v0
    v_cndmask_b32 v{T0}, v{T0}, v{T1}, vcc
    v_cndmask_b32 v{T1}, 16, 32, vcc
    buffer_load_dword v{RD}, v{T0}, {WSR}, 0 offen sc1
    v_lshlrev_b32 v{OA_}, 10, v{T2}
    v_lshl_add_u32 v{OA_}, v{T3}, 4, v{OA_}
    """)
    a(f"""
    v_bfe_u32 v{RD+1}, v0, 2, 1
    v_lshlrev_b32 v{RD+1}, 1, v{RD+1}
    v_sub_u32 v{RD+1}, v{T3}, v{RD+1}
    v_bfe_u32 v{RD+2}, v0, 3, 1
    v_bfe_u32 v{RD+3}, v0, 1, 1
    v_lshl_add_u32 v{RD+2}, v{RD+2}, 1, v{RD+3}
    v_lshl_add_u32 v{RD+1}, v{RD+1}, 2, v{RD+2}
    v_and_b32 v{RD+2}, 1, v0
    v_lshlrev_b32 v{RD+2}, 4, v{RD+2}
    v_mov_b32 v{RD+3}, 0x3f80
    v_lshlrev_b32 v{RD+2}, v{RD+2}, v{RD+3}
    """)
    for i in range(8): a(f"v_cmp_eq_u32 vcc, {i}, v{RD+1}\ns_nop 1\nv_cndmask_b32 v{SEL+i}, 0, v{RD+2}, vcc")
    a(f"""
    v_readlane_b32 s{sNXT}, v{V_TAB}, s{S_TASK}
    L_r_wait:
    s_waitcnt vmcnt(0)
    v_cmp_gt_u32 vcc, v{T1}, v{RD}
    s_nop 0
    s_and_b64 vcc, vcc, s[{sT0}:{sT1}]
    s_cbranch_scc0 L_r_go
    s_sleep {OPTS.get('slp', 4)}
    buffer_load_dword v{RD}, v{T0}, {WSR}, 0 offen sc1
    """)
    spin(a)
    a("s_branch L_r_wait\nL_r_go:")
    stamp(a, 15)
    def decode():
        return [f"s_bfe_u32 s{sT0}, s{sNXT}, 0x60004", f"s_bfe_u32 s{sT1}, s{sNXT}, 0x1000e", f"s_lshl1_add_u32 s{sT0}, s{sT0}, s{sT1}",
                f"s_mul_i32 s{sLO}, s{sT0}, {PART_T}", f"s_bfe_u32 s{sT1}, s{sNXT}, 0x2000c", f"s_lshl2_add_u32 s{sT1}, s{sT1}, s{w}",
                f"s_lshl_b32 s{sT0}, s{sT0}, 14", f"s_lshl_b32 s{sP0}, s{sT1}, 6", f"s_add_u32 s{sP0}, s{sP0}, s{sT0}",
                f"s_lshl_b32 s{sT1}, s{sT1}, 10", f"s_add_u32 s{sLO}, s{sLO}, s{sT1}", f"s_add_u32 s{sLO}, s{sLO}, {hex(WS_PART)}",
                f"s_bitcmp1_b32 s{sNXT}, 2", f"s_cselect_b32 s{sLO}, {hex(OOB)}, s{sLO}"]
    ld = lambda p: [f"buffer_load_dwordx4 {vr(RING + 4*(p & 15), 4)}, v{A16}, {WSR}, s{sLO} offen sc1", f"s_add_u32 s{sLO}, s{sLO}, 0x4000"]
    a.emit(decode())
    LD = OPTS.get('rdepth', 15)
    for p in range(LD): a.emit(ld(p))
    a(f"""
    L_r_loop:
    s_mov_b32 s{sCUR}, s{sNXT}
    s_mov_b32 s{sOO}, s{sP0}
    s_add_u32 s{S_TASK}, s{S_TASK}, 1
    s_nop 0
    v_readlane_b32 s{sNXT}, v{V_TAB}, s{S_TASK}
    """)
    for p in range(48):
        if p == 32 - LD: a(f"s_cmp_lg_u32 s{sSTG}, 0\ns_cbranch_scc1 L_r_stage\nL_r_stageback:")
        if p == 48 - LD: a.emit(decode())
        a.emit(ld(p + LD))
        a(f"s_waitcnt vmcnt({LD})")
        for x in range(2):
            d = vr(RD + 4*x, 4)
            a(mf(d, vr(SEL + 4*x, 4), vr(RING + 4*(p & 15), 4), "0" if p == 0 else d))
    a("s_nop 6")
    for i in range(4): a(f"v_cvt_pk_bf16_f32 v{RD+16+i}, v{RD+2*i}, v{RD+2*i+1}")
    a(f"""
    buffer_store_dwordx4 {vr(RD+16,4)}, v{OA_}, s[48:51], s{sOO} offen
    s_bitcmp1_b32 s{sNXT}, 2
    s_cbranch_scc0 L_r_loop
    s_waitcnt vmcnt(1)
    """)
    stamp(a, 16)
    a(f"""
    s_branch {next_label}
    L_r_stage:
    s_bfe_u32 s{sBC}, s{sCUR}, 0x60004
    s_lshl_b32 s{sBC}, s{sBC}, 7
    s_add_u32 s{sBC}, s{sBC}, {hex(CNT_B)}
    L_r_st2:
    buffer_load_dword v{T0}, v{ZERO}, {WSR}, s{sBC} offen sc1
    """)
    spin(a)
    a(f"s_waitcnt vmcnt(0)\nv_cmp_gt_u32 vcc, 16, v{T0}\ns_cbranch_vccz L_r_stageback\ns_sleep {OPTS.get('slp', 4)}\ns_branch L_r_st2")
```

```python
from common import *

A16, T0, T1, T2, ZERO, FV = 2, 3, 4, 5, 6, 7
XD, RA, WD, RB = 8, 16, 20, 24
SENT = 36
XF, ACC, SQ = 64, 128, 192
sH, sJ, sT0, sT1, sM0, sXO, sOUT, sI, sFA, sOB, sSLOT, sN, sSPIN, sSC, sXI, sXB, sMAT, sORD, sVT, sWO, sGA, sGO, sROT, sKV, sEARLY = range(56, 81)

def mf(D, A, B, Cc): return f"v_mfma_f32_16x16x32_bf16 {D}, {A}, {B}, {Cc}"
def acc(par, vtype, tt, ct):
    piece, sub = (ct, tt) if vtype else (2*(ct >> 1) + tt, ct & 1)
    return ACC + 32*par + 8*piece + 4*sub
def xrd(g, j):
    s, tt = 4*g + (j >> 1), j & 1
    return f"ds_read_b128 {vr(XF + 32*(g & 1) + 4*j, 4)}, v{RA + (s & 3)} offset:{tt*16384 + (s >> 2)*256}"
def xdma(i):
    return [f"s_add_u32 m0, s{sSLOT}, {i*1024}", f"s_add_u32 s{sT0}, s{sXO}, {i*1024}", f"buffer_load_dwordx4 v{XD+i}, s[52:55], s{sT0} offen lds"]
def seg_of(dst, idx):
    return [f"s_lshr_b32 s{dst}, s{idx}, 3", f"s_lshl_b32 s{dst}, s{dst}, 2", f"s_lshr_b32 s{dst}, s{sORD}, s{dst}", f"s_and_b32 s{dst}, s{dst}, 7",
            f"s_and_b32 s{sT1}, s{idx}, 7", f"s_lshl3_add_u32 s{dst}, s{dst}, s{sT1}"]
def xadv():
    return [f"s_add_u32 s{sXI}, s{sXI}, 1"] + seg_of(sXO, sXI) + [f"s_lshl_b32 s{sXO}, s{sXO}, 15", f"s_add_u32 s{sXO}, s{sXO}, s{sXB}",
            f"s_add_u32 s{sSLOT}, s{sSLOT}, 0x8000", f"s_and_b32 s{sSLOT}, s{sSLOT}, 0x1ffff"]
def epi(par, scale):
    l = []
    for p in range(4):
        b = ACC + 32*par + 8*p; q = SQ + 4*p
        l.append(([f"v_mul_f32 v{b+i}, s{sSC}, v{b+i}" for i in range(8)] if scale else []) + [f"v_cvt_pk_bf16_f32 v{q+i}, v{b+2*i}, v{b+2*i+1}" for i in range(4)] +
                 [f"buffer_store_dwordx4 {vr(q,4)}, v{A16}, {WSR}, s{sOUT} offen offset:{p*1024} sc1"])
    return l

OUTL = []
def prewrite(lbl):
    return [f"s_cmp_lg_u32 s{sJ}, 6", f"s_cbranch_scc1 {lbl}", f"buffer_store_dwordx4 {vr(SENT,4)}, v{A16}, {WSR}, s{sKV} offen sc1",
            f"s_add_u32 s{sKV}, s{sKV}, 0x20000", f"{lbl}:"]
def body(a, par, vtype, first=False):
    a(f"L_f_{vtype}{par}{'f' if first else ''}:")
    ms = []
    for g in range(4):
        for ct in range(4):
            for tt in range(2):
                d = vr(acc(par, vtype, tt, ct), 4)
                for k in range(4):
                    x = vr(XF + 32*(g & 1) + 8*k + 4*tt, 4); wv = ar((ct*16 + 4*g + k)*4, 4)
                    A, B = (x, wv) if vtype else (wv, x)
                    ms.append(mf(d, A, B, "0" if g == 0 and k == 0 else d))
    G = Gaps(ms)
    if first: G.add(96, "s_waitcnt vmcnt(16)")
    else:
        l = a.newlabel("f_e")
        G.add(96, "s_waitcnt vmcnt(20)", f"s_cbranch_scc1 {l}", f"{l}b:")
        OUTL.append(f"{l}:\nv_mov_b32 v{FV}, s{sI}\ns_waitcnt vmcnt(8)\ns_branch {l}b")
    G.add(97, "s_barrier")
    for g in range(4):
        for j in range(8): G.add(32*g + 2 + 2*j, xrd((g + 1) & 3, j))
        G.add(32*g + 31, "s_waitcnt lgkmcnt(0)")
    G.add(3, *prewrite(a.newlabel('f_pw')))
    g = 9
    for e in ([] if first else epi(1 - par, not vtype)):
        k = 0
        while k < len(e):
            busy = any(x.startswith("ds_") for x in G.g[g])
            if e[k].startswith("buffer"):
                if not busy: G.add(g, e[k]); k += 1
            else:
                n = 1 if busy or e[k+1].startswith("buffer") else 2
                G.add(g, *e[k:k+n]); k += n
            g += 1
    assert g <= 50, g
    for k, x in enumerate(seg_of(sOUT, sI) + [f"s_lshl_b32 s{sOUT}, s{sOUT}, 13", f"s_add_u32 s{sOUT}, s{sOUT}, s{sOB}"]): G.g[100 + k].insert(0, x)
    if first:
        for t in range(2):
            for i in range(8): G.add(5 + 23*t + 2*i - (t and i >= 3), *xdma(i))
            for k, x in enumerate(xadv()): G.add(21 + 23*t + k//2, x)
    for i in range(8):
        d = xdma(i); g = 51 + 4*i
        G.add(g, *d[:2]); G.add(g + 2, d[2])
    for k, x in enumerate(xadv()): G.g[108 + k].insert(0, x)
    for j in range(4):
        G.add(84 + 2*j, f"v_add_u32 v{RA+j}, 0x8000, v{RA+j}"); G.add(85 + 2*j, f"v_and_b32 v{RA+j}, 0x1ffff, v{RA+j}")
    G.add(92, f"s_sub_u32 s{sT1}, s{sI}, 1", f"s_max_i32 s{sT1}, s{sT1}, 0"); G.add(93, f"v_mov_b32 v{FV}, s{sT1}")
    G.add(94, f"s_cmp_lt_u32 s{sI}, s{sEARLY}")
    G.add(99, f"buffer_store_dword v{FV}, v{ZERO}, {WSR}, s{sFA} offen sc1")
    if par and not vtype:
        G.add(121, "s_mov_b64 exec, 1", f"buffer_atomic_add v33, v{ZERO}, {WSR}, s{sGA} offen", "s_mov_b64 exec, -1")
        G.add(122, f"s_mov_b32 s{sGA}, {hex(OOB)}")
    G.add(120, f"s_add_u32 s{sI}, s{sI}, 1"); G.add(126, f"s_cmp_lt_u32 s{sI}, s{sN}")
    G.emit(a)
    if par: a(f"s_cbranch_scc1 L_f_{vtype}0\ns_branch L_f_done")
    if first: a(f"s_branch L_f_{vtype}1")

def gen_feed(a, next_label):
    w = S_WAVE
    a("L_feed:")
    stamp(a, 4)
    a(f"""
    s_cmp_lt_u32 s{sJ}, 4
    s_cselect_b64 s[52:53], s[{S_C}:{S_C+1}], s[{S_X}:{S_X+1}]
    s_cselect_b64 s[48:49], s[{S_WUK}:{S_WUK+1}], s[{S_WQA}:{S_WQA+1}]
    s_cselect_b64 s[4:5], s[{S_WUV}:{S_WUV+1}], s[{S_WQB}:{S_WQB+1}]
    s_cselect_b32 s{sMAT}, 0x21, 0x30
    s_cselect_b32 s{sN}, 16, 32
    s_cselect_b32 s{sSC}, 1.0, {fbits(SM_SCALE)}
    s_cselect_b32 s{sVT}, 2, 4
    s_cmp_eq_u32 s{sJ}, 6
    s_cselect_b64 s[48:49], s[{S_WKB}:{S_WKB+1}], s[48:49]
    s_cselect_b64 s[4:5], s[{S_WVB}:{S_WVB+1}], s[4:5]
    s_cselect_b32 s{sMAT}, 0x54, s{sMAT}
    s_cselect_b32 s{sN}, 64, s{sN}
    s_cselect_b32 s{sEARLY}, {OPTS.get('fearly', 4)}, 0
    s_cselect_b32 s{sSC}, 1.0, s{sSC}
    s_cselect_b32 s{sVT}, 2, s{sVT}
    v_readlane_b32 s{sORD}, v{V_TAB}, s{S_TASK}
    s_add_u32 s{S_TASK}, s{S_TASK}, 1
    s_and_b32 s53, s53, 0xffff
    s_mov_b32 s54, 0x200000
    s_mov_b32 s55, 0x20000
    s_cmp_lt_u32 s{w}, 2
    s_cselect_b64 s[48:49], s[48:49], s[4:5]
    s_cselect_b32 s{sT0}, 0, 4
    s_lshr_b32 s{sMAT}, s{sMAT}, s{sT0}
    s_and_b32 s{sMAT}, s{sMAT}, 15
    s_and_b32 s49, s49, 0xffff
    s_mov_b32 s50, 0x400000
    s_mov_b32 s51, 0x20000
    v_lshlrev_b32 v{A16}, 4, v0
    v_mov_b32 v{ZERO}, 0
    v_lshrrev_b32 v{T0}, 3, v0
    v_lshlrev_b32 v{WD}, 13, v{T0}
    v_and_b32 v{T0}, 2, v{T0}
    v_and_b32 v{T1}, 7, v0
    v_xor_b32 v{T0}, v{T0}, v{T1}
    v_lshl_add_u32 v{WD}, v{T0}, 4, v{WD}
    v_xor_b32 v{WD+1}, 64, v{WD}
    s_lshl_b32 s{sM0}, s{w}, 14
    s_add_u32 s{sM0}, s{sM0}, 0x18000
    s_and_b32 s{sT1}, s{w}, 1
    s_lshl1_add_u32 s{sWO}, s{sH}, s{sT1}
    s_lshl_b32 s{sWO}, s{sWO}, 7
    s_lshl_b32 s{sT0}, s{sJ}, 2
    s_lshr_b32 s{sROT}, {OPTS.get('rot', 0)}, s{sT0}
    s_and_b32 s{sROT}, s{sROT}, 15
    s_lshl_b32 s{sT0}, s{sROT}, 20
    s_or_b32 s{sWO}, s{sWO}, s{sT0}
    """)
    def wdma(c):
        l = a.newlabel("f_w")
        a(f"s_cmp_lt_u32 s{sMAT}, {OPTS.get('ntm', 3)}\ns_cbranch_scc1 {l}")
        for nt in ("", "nt"):
            for p in range(4):
                a(f"s_add_u32 m0, s{sM0}, {(c & 3)*4096 + p*1024}\ns_xor_b32 s{sT0}, s{sWO}, {(32*c + 8*p)*8192}\nbuffer_load_dwordx4 v{WD+(p&1)}, s[48:51], s{sT0} offen {nt} lds")
            a(f"s_branch {l}e\n{l}:" if not nt else f"{l}e:")
    for c in range(4): wdma(c)
    GR = 32
    a(f"""
    s_mov_b32 s{sGA}, {hex(OOB)}
    v_and_b32 v{GR}, 15, v0
    v_mov_b32 v{GR+1}, 1
    s_lshl2_add_u32 s{sT0}, s{w}, s{sJ}
    s_cmp_ge_u32 s{sT0}, 4
    s_cbranch_scc1 L_f_nogate
    s_mov_b64 s[4:5], s[{S_X}:{S_X+1}]
    s_mov_b64 s[6:7], s[{S_GATEW}:{S_GATEW+1}]
    v_lshrrev_b32 v{T1}, 4, v0
    v_lshlrev_b32 v{T1}, 4, v{T1}
    v_lshl_add_u32 v{T2}, v{GR}, 10, v{T1}
    s_lshl2_add_u32 s{sGO}, s{sH}, s{sJ}
    s_lshl_b32 s{sT0}, s{sGO}, 14
    v_add_u32 v{T2}, s{sT0}, v{T2}
    """)
    for s in range(16):
        a(f"global_load_dwordx4 {vr(64+4*s,4)}, v{T2}, s[4:5] offset:{64*s}")
        a(f"global_load_dwordx4 {vr(128+4*s,4)}, v{T1}, s[6:7] offset:{64*s}")
    a(f"""
    v_lshlrev_b32 v{GR}, 2, v{GR}
    s_lshl_b32 s{sGO}, s{sGO}, 6
    s_add_u32 s{sGO}, s{sGO}, {hex(WS_GATE)}
    s_lshr_b32 s{sGA}, s{sH}, 2
    s_lshl_b32 s{sGA}, s{sGA}, 7
    s_add_u32 s{sGA}, s{sGA}, {hex(CNT_GATE)}
    L_f_nogate:
    """)
    a(f"""
    v_lshrrev_b32 v{T0}, 4, v0
    v_lshl_add_u32 v{RB}, v{T0}, 10, s{sM0}
    v_bfe_u32 v{T1}, v0, 2, 2
    v_lshl_add_u32 v{RB}, v{T1}, 7, v{RB}
    v_bfe_u32 v{T1}, v0, 3, 2
    v_lshl_add_u32 v{RB}, v{T1}, 5, v{RB}
    v_and_b32 v{T1}, 3, v0
    v_lshl_add_u32 v{RB}, v{T1}, 3, v{RB}
    v_and_b32 v{T1}, 15, v0
    v_xor_b32 v{T0}, v{T0}, v{T1}
    v_lshlrev_b32 v{T0}, 4, v{T0}
    v_lshl_add_u32 v{RA}, v{T1}, 10, v{T0}
    s_lshl1_add_u32 s{sT0}, s{sROT}, s{sT1}
    s_lshl_b32 s{sT0}, s{sT0}, 7
    v_xor_b32 v{XD}, s{sT0}, v{A16}
    s_lshl_b32 s{sOUT}, s{sMAT}, 24
    s_lshl_b32 s{sT0}, s{sH}, 19
    s_add_u32 s{sOUT}, s{sOUT}, s{sT0}
    s_lshl_b32 s{sT0}, s{sT1}, 12
    s_add_u32 s{sOUT}, s{sOUT}, s{sT0}
    s_add_u32 s{sOB}, s{sOUT}, {hex(WS_PROJ)}
    s_mov_b32 s{sOUT}, {hex(OOB)}
    s_lshl_b32 s{sT0}, s{sJ}, 2
    s_cmp_eq_u32 s{sJ}, 6
    s_cselect_b32 s{sT0}, {hex(FLAG_F - WS_FLAG)}, s{sT0}
    s_lshl_b32 s{sFA}, s{sH}, 7
    s_add_u32 s{sFA}, s{sFA}, s{sT0}
    s_add_u32 s{sFA}, s{sFA}, {hex(WS_FLAG)}
    s_cmp_eq_u32 s{w}, 0
    s_cselect_b32 s{sFA}, s{sFA}, {hex(OOB)}
    """)
    for c in range(1, 4): a(f"v_xor_b32 v{RB+c}, {c*32}, v{RB}\nv_xor_b32 v{RA+c}, {c << 6}, v{RA}")
    for i in range(1, 8): a(f"v_xor_b32 v{XD+i}, {i*16}, v{XD}")
    a(f"""
    s_lshl_b32 s{sSLOT}, s{w}, 13
    s_mov_b32 s{sXB}, s{sSLOT}
    s_and_b32 s{sXO}, s{sORD}, 7
    s_lshl_b32 s{sXO}, s{sXO}, 18
    s_add_u32 s{sXO}, s{sXO}, s{sXB}
    s_mov_b32 s{sXI}, 0
    s_mov_b32 s{sI}, 0
    s_mov_b32 s{sSPIN}, 0
    s_lshl2_add_u32 s{sKV}, s{sH}, s{w}
    s_lshl_b32 s{sKV}, s{sKV}, 10
    s_add_u32 s{sKV}, s{sKV}, {hex(WS_KVM)}
    v_mov_b64 {vr(SENT,2)}, -1
    v_mov_b64 {vr(SENT+2,2)}, -1
    """)
    for c in range(16):
        if c == 0: stamp(a, 5)
        a(f"s_waitcnt vmcnt({12 if c < 13 else (17, 13, 9)[c - 13]})")
        if c in (0, 8, 15): stamp(a, {0: 6, 8: 7, 15: 17}[c])
        for ct in range(4):
            for x in range(2):
                a(f"ds_read_b64_tr_b16 {ar((ct*16 + c)*4 + 2*x, 2)}, v{RB+ct} offset:{(c & 3)*4096 + x*512}")
        if c + 4 < 16:
            a("s_waitcnt lgkmcnt(0)"); wdma(c + 4)
        if c == 5:
            a(f"s_cmp_eq_u32 s{sGA}, {hex(OOB)}\ns_cbranch_scc1 L_f_nogate2")
            for s in range(16): a(mf(vr(SQ,4), vr(128+4*s,4), vr(64+4*s,4), vr(SQ,4) if s else "0"))
            a(f"""
            s_nop 7
            v_mul_f32 v{SQ}, {fbits(-1.4426950408889634)}, v{SQ}
            v_exp_f32 v{SQ}, v{SQ}
            s_nop 0
            v_add_f32 v{SQ}, 1.0, v{SQ}
            v_rcp_f32 v{SQ}, v{SQ}
            s_nop 0
            buffer_store_dword v{SQ}, v{GR}, {WSR}, s{sGO} offen sc1
            L_f_nogate2:
            """)
        elif c == 12:
            if c == 12:
                set_srd(a, S_SRD1, S_DBG, 256)
                a(f"buffer_load_dwordx2 {vr(T1,2)}, v{ZERO}, s[48:51], 0 offen sc1")
            for i in range(8): a.emit(xdma(i))
            a.emit(xadv())
    a(f"""
    s_waitcnt vmcnt(0) lgkmcnt(0)
    L_f_init:
    v_sad_u8 v{T0}, v{T1}, 0, 0
    v_sad_u8 v{T0}, v{T2}, 0, v{T0}
    v_cmp_gt_u32 vcc, 32, v{T0}
    s_cbranch_vccz L_f_go
    buffer_load_dwordx2 {vr(T1,2)}, v{ZERO}, s[48:51], 0 offen sc1
    s_add_u32 s{sSPIN}, s{sSPIN}, 1
    s_cmp_gt_u32 s{sSPIN}, {SPIN_MAX}
    s_cbranch_scc1 L_exit
    s_waitcnt vmcnt(0)
    s_branch L_f_init
    L_f_go:
    s_barrier
    """)
    stamp(a, 1)
    for j in range(8): a(xrd(0, j))
    a(f"s_cmp_lt_u32 s{w}, s{sVT}\ns_waitcnt lgkmcnt(0)\ns_cbranch_scc0 L_f_10f")
    OUTL.clear()
    body(a, 0, 0, True); body(a, 0, 1, True)
    body(a, 0, 0); body(a, 1, 0); body(a, 0, 1); body(a, 1, 1)
    a.emit(OUTL)
    a("L_f_done:\ns_nop 7")
    for e in epi(1, True): a.emit(e)
    a(f"""
    v_mov_b32 v{FV}, s{sN}
    s_waitcnt vmcnt(0) lgkmcnt(0)
    s_barrier
    buffer_store_dword v{FV}, v{ZERO}, {WSR}, s{sFA} offen sc1
    """)
    stamp(a, 3)
    a(f"s_branch {next_label}")
```

```python
from common import OPTS

END = 4
def blocks(j):
    if j < 4: return [2 * j, 2 * j + 1]
    if j == 6: return list(range(8))
    if OPTS.get("sched", 0) == 0: return [6, 7, 2, 3] if j == 4 else [4, 5, 0, 1]
    return [0, 3, 7, 4] if j == 4 else [1, 2, 6, 5]
def ATT(h, qb):
    j = 4 if qb in blocks(4) else 5
    return [4 | 1 | (h << 4) | (qb << 12) | (j << 16) | ((8 * blocks(j).index(qb) + 8) << 20)]
def FEED(h, j): return [4 | 1 | 8 | (h << 4) | (j << 12), sum(b << (4 * i) for i, b in enumerate(blocks(j)))]
def BRUN(hp, segs): return [4 | 2 | (hp << 4)] + [s << 4 for s in segs]
def RRUN(ents, staged=0): return [4 | 2 | 8 | (staged << 4)] + [(s << 4) | (k << 12) for s, k in ents]

def tasks(cu):
    if OPTS.get("btest"):
        ar, k16, sl, k = cu >> 4, cu & 15, cu >> 3, cu & 7
        segs = list(range(sl, 64, 28))
        return BRUN(k16, list(range(ar, 64, 14))) + RRUN([(s, k) for s in segs[:-1]]) + RRUN([(segs[-1], k)], 1)
    h, j = cu // 7, cu % 7
    t = FEED(h, j)
    if OPTS.get("ponly"): return t
    hs, k = h >> 3, h & 7
    if OPTS.get("sched", 0) == 0:
        for qb in ((7,), (6,), (5, 0), (4, 1), (3,), (2,), ())[j]: t += ATT(h, qb)
        if j in (1, 4, 5):
            bi = {5: 0, 1: 2, 4: 4}[j] + (h >> 4)
            t += BRUN(h & 15, list(range(bi, 64, 6)))
        elif j == 6:
            t += RRUN([(s, k) for s in range(48 + hs, 64, 4)], 1)
        else:
            ri = 3 * hs + (j - 1 if j else 0)
            t += RRUN([(s, k) for s in (ri, ri + 12)]) + RRUN([(s, k) for s in (ri + 24, ri + 36)], 1)
        return t
    if j < 4:
        t += ATT(h, j) + ATT(h, 7 - j)
        ri = 4 * hs + j
        t += RRUN([(s, k) for s in range(32 + ri, 60, 16)], 1)
    elif j == 6:
        t += RRUN([(60 + hs, k)], 1)
    else:
        ar = 2 * (j - 4) + (h >> 4)
        if ar < 3: t += BRUN(h & 15, list(range(ar, 64, 3)))
        else:
            for b in range(4): t += RRUN([(s, k) for s in range(8 * b + (hs & 1), 8 * b + 8, 2)], 1)
    return t

def tables():
    rows = []
    for cu in range(224):
        row = tasks(cu)
        assert len(row) <= 31, len(row)
        rows.append(row + [END] * (32 - len(row)))
    return rows
```

```python
from common import *

LB = 131072
L_QT, L_KT, L_MS, L_VX, L_X = 0, 4096, 0, 8192, 16384
A16, IDX, W16, WVB, DUM, XTW, XTR, OXW, H1ST, H1LD, H2ST, WT = range(12)
ONES = 12
PM0, ZERO, PM1 = 16, 17, 18
M, AQ, AK, AV, QF, KW, ST, KV = 20, 52, 60, 68, 76, 92, 108, 124
WO = 128
sS, sKX, sVX, sWARM, sFLG, sKVM, sH1L, sH2L, sH2S, sTAG, sTF, sSPIN, sT0, sT1, sMK, sMV, sKB0 = range(56, 73)
sH1 = 74
sSENT = 78
sSEL = 80
sC = 88; sLO = 89; sFFFE = 90; sRANGE = 91; sNEED = 92; sTV = 93; sODD = 94; sWD = 73; sUSEB = 7

class LG:
    def __init__(self): self.n = 0; self.t = {}; self.done = 0
    def op(self, tag, ins):
        self.n += 1; self.t[tag] = self.n; return ins
    def need(self, *tags):
        m = max(self.t[t] for t in tags)
        if m <= self.done: return []
        self.done = m
        return [f"s_waitcnt lgkmcnt({min(15, self.n - m)})"]

def nops(cyc):
    r = []; n = cyc // 4
    while n > 0:
        k = min(n, 16); r.append(f"s_nop {k-1}"); n -= k
    return r

def sm(acc, A, B): return f"v_smfmac_f32_16x16x64_bf16 {vr(acc,4)}, {vr(A,4)}, {B}, v{IDX}"
def d32(D, A, B, first): return f"v_mfma_f32_16x16x32_bf16 {vr(D,4)}, {vr(A,4)}, {vr(B,4)}, {'0' if first else vr(D,4)}"
def d16(D, A, B): return f"v_mfma_f32_16x16x16_bf16 {vr(D,4)}, {vr(A,2)}, {vr(B,2)}, {vr(D,4)}"

VORD = [(k >> 1, k & 1) for k in range(12)] + [(6, 0), (7, 0), (6, 1), (7, 1)]
VBUF = [QF, QF + 8, KW, KW + 8, ST, M, QF, QF + 8, ST, M, QF, QF + 8, ST, M, ST, M]
VX = ST + 8
def wv_read(lg, k, u):
    j, tl = VORD[k]
    if OPTS.get("nowv") and k >= 6:
        lg.t[("wv", k, u)] = 0
        return "s_nop 0"
    return lg.op(("wv", k, u), f"ds_read_b128 {vr(VBUF[k] + 4*u, 4)}, v{WVB} offset:{(j&1)*16384 + tl*2048 + u*1024}")
def wv_next(cl):
    return f"v_xor_b32 v{WVB}, {hex(32768 * (1 if cl & 1 else 3))}, v{WVB}"
def wv_prefetch():
    lg = LG()
    return [wv_read(lg, k, u) for k in range(4) for u in range(2)] + [wv_next(1)] + [wv_read(lg, 4, u) for u in range(2)]
def vx_reads():
    return [f"ds_read_b128 {vr(VX+4*x,4)}, v{W16} offset:{L_VX+1024*x}" for x in range(2)]
def warm_addr():
    l = [f"v_min_u32 v{KV}, -2, v{KV}"]
    if OPTS.get("vpos", 8) >= 4:
        l += [f"v_bfe_u32 v{M+25}, v{W16}, 9, 1", f"v_and_b32 v{DUM}, 0x1ff, v{W16}", f"v_lshlrev_b32 v{DUM}, 2, v{DUM}",
              f"s_add_u32 s{sWARM}, s{sKX}, s{sWD}", f"v_lshl_add_u32 v{DUM}, v{M+25}, 24, v{DUM}", f"s_sub_u32 s{sT0}, s{sFLG}, s{sWARM}",
              f"v_writelane_b32 v{DUM}, s{sT0}, 1"]
    return l
def ms_addrs():
    return [f"v_xor_b32 v{M + 8*cl + 4}, {cl*2048}, v{W16}" for cl in range(1, 4)]

def spin_check(a):
    a(f"s_add_u32 s{sSPIN}, s{sSPIN}, 1\ns_cmp_gt_u32 s{sSPIN}, {SPIN_MAX}\ns_cbranch_scc1 L_exit")

def step_loop(a_, sfx, stf):
    lg = LG()
    drop = [f"s{r} offen" for k, r in (("nokvm", sKVM), ("nowarm", sWARM), ("noflg", sFLG), ("notf", sTF), ("nodma", sKX), ("nodma", sVX)) if OPTS.get(k)]
    if OPTS.get("nohop"): drop += [f"s{sH1L} offen", f"s{sH2L} offen", f"s{sH2S} offen", "L_retry2", "L_retry1", "L_smslow", "L_fs"]
    if OPTS.get("nochk"): drop += ["L_retry2", "L_retry1", "L_smslow"]
    if OPTS.get("nost"): drop += [f"s{sH1+n} offen" for n in range(4)]
    kill = []
    if OPTS.get("nobar"): kill += ["s_barrier"]
    if OPTS.get("nods"): kill += ["ds_read", "ds_write", "lgkmcnt"]
    if OPTS.get("nodsw"): kill += ["lgkmcnt"]
    if OPTS.get("novm"): kill += ["buffer_"]
    if OPTS.get("novalu"): kill += ["v_add", "v_mul", "v_cvt", "v_exp", "v_max", "v_mov", "v_xor", "v_cnd", "v_cmp", "v_rcp", "v_sub", "v_and", "v_lsh", "v_or", "v_bit", "v_min", "v_perm"]
    if OPTS.get("nonop"): kill += ["s_nop"]
    a0 = a_
    def a(x):
        for l in x.split("\n"):
            if not any(k in l for k in kill): a0(l)
    E = lambda *l: [a(x if not any(d in x for d in drop) else "s_nop 0") for y in l for x in (y if isinstance(y, list) else [y])]
    Q = lambda j, tl: sm(AQ + 4*tl, M + 4*j, ar((tl*8 + j)*8, 8))
    K = lambda j, tl: sm(AK + 4*tl, M + 4*j, ar(128 + (tl*8 + j)*8, 8))
    Vv = lambda k: sm(AV + 4*VORD[k][1], M + 4*VORD[k][0], vr(VBUF[k], 8))
    kxreg = lambda t, tt: (M + 8 if tt else KW) + 4*t
    kxr = lambda t, tt: lg.op(("kx", t, tt), f"ds_read_b128 {vr(kxreg(t,tt),4)}, v{A16} offset:{(2*t+tt)*1024}")
    qr = lambda t, x: lg.op(("q", t, x), f"ds_read_b64_tr_b16 {vr(QF + 4*t + 2*x, 2)}, v{XTR} offset:{L_QT + x*2048 + t*512}")
    kr = lambda t, x: lg.op(("k", t, x), f"ds_read_b64_tr_b16 {vr(KW + 4*t + 2*x, 2)}, v{XTR} offset:{L_KT + x*2048 + t*512}")
    mr = lambda j: lg.op(("m", j), f"ds_read_b128 {vr(M+4*j,4)}, v{M + 8*(j>>1) + 4} offset:{L_MS + (j&1)*1024}")
    wr = lambda k, u: wv_read(lg, k, u)
    nv = lambda k: lg.need(("wv", k, 0), ("wv", k, 1))
    add = lambda d, x, y: f"v_add_f32 v{d}, v{x}, v{y}"
    mulc = lambda d: f"v_mul_f32 v{d}, s{sC}, v{d}"
    cvt = lambda d, x, y: f"v_cvt_pk_bf16_f32 v{d}, v{x}, v{y}"
    ex = lambda d, s_: f"v_exp_f32 v{d}, v{s_}"
    N0, N1 = "s_nop 0", "s_nop 1"
    prof = OPTS.get("tprof") and sfx == "_f"
    PSET = {1: [0,1,2,3,4,5,6,7,8], 2: [0,1,6,7,"a","b","c","d",8], 3: [0,5,"e","f","g",6,"h",7,8], 4: [0,2,"i","j",3,"k",4,"l",8]}.get(OPTS.get("tprof"), [])
    def P(k):
        if prof and k in PSET: k = PSET.index(k); a(f"s_memtime s[{8+2*k}:{9+2*k}]")
    def warm(cyc):
        if not OPTS.get("warm"): return nops(cyc)
        r = []
        for i in range(cyc // 16): r += [f"v_mov_b32 v{M+26}, 0", "s_nop 2"]
        return r + nops(cyc % 16)
    g2 = OPTS.get("g2", 100)
    B0_, B1_ = M + 8, M + 16
    def ld2(x, y): E(f"buffer_load_dwordx4 {vr(x,4)}, v{W16}, {WSR}, s{sH2L} offen sc1", f"buffer_load_dwordx4 {vr(y,4)}, v{W16}, {WSR}, s{sH2L} offen offset:1024 sc1")
    a(f"L_poll2{sfx}:")
    ld2(M, M + 4)
    n2 = 2 if g2 else 0
    bg = OPTS.get('bg', 0)
    if g2:
        E(warm(g2 - 8))
        ld2(B0_, B1_)
    E(vx_reads(), f"v_readlane_b32 s{sT1}, v{DUM}, 1", f"v_xor_b32 v{H2ST}, 0x2000, v{H2ST}", f"s_waitcnt vmcnt({n2+3})", ms_addrs(), f"s_cmp_lt_u32 s{sT1}, s{sNEED}", f"s_cbranch_scc1 L_fs{sfx}" if not OPTS.get("noflaglane") else N0)
    a(f"L_fsback{sfx}:")
    if OPTS.get("tsteps") and sfx == "_f":
        a(f"""s_mov_b32 m0, s{sS}
        s_nop 0
        v_writelane_b32 v{WT}, s8, m0
        {'s_memrealtime' if OPTS.get('tsteps') == 1 else 's_memtime'} s[8:9]""")
    advance(a)
    E(warm_addr())
    if prof and OPTS.get("traw"):
        a(f"""s_lshl2_add_u32 s4, s{S_RANK}, s{S_WAVE}
        s_lshl_b32 s4, s4, 6
        s_add_u32 s4, s4, s{sS}
        s_lshl_b32 s4, s4, 6
        s_add_u32 s4, s4, {hex(WS_STAMP + 0x40000)}
        s_waitcnt lgkmcnt(0)""")
        for k in range(9): a(f"v_writelane_b32 v{M+26}, s{8+2*k}, {k}")
        a(f"v_writelane_b32 v{M+26}, s{sSPIN}, 9\nv_writelane_b32 v{M+26}, s37, 10\nv_bfe_u32 v{M+27}, v{W16}, 2, 8\ns_mov_b64 exec, 0x7ff\nbuffer_store_dword v{M+26}, v{M+27}, {WSR}, s4 offen\ns_mov_b64 exec, -1")
    elif prof:
        a("s_waitcnt lgkmcnt(0)\ns_sub_u32 s4, s8, s26\ns_add_u32 s36, s36, s4\ns_mov_b32 s26, s24")
        for k in range(8): a(f"s_sub_u32 s4, s{10+2*k}, s{8+2*k}\ns_add_u32 s{28+k}, s{28+k}, s4")
    stK = f"buffer_store_dwordx4 {vr(KV,4)}, v{W16}, {WSR}, s{sKVM} offen sc1"
    stF = f"buffer_store_dword v{PM0}, v{ZERO}, {WSR}, s{sTF} offen sc1"
    vpos = OPTS.get("vpos", 8)
    ldW = f"buffer_load_dword v{DUM}, v{ZERO}, {WSR}, s{sFLG} offen sc1" if vpos < 4 else f"buffer_load_dword v{DUM}, v{DUM}, {WSR}, s{sWARM} offen sc1"
    E(warm(OPTS.get("w2", 0)))
    a(f"L_entry{sfx}:")
    C0 = M + 24
    dmaV = lambda x: f"buffer_load_dwordx4 v{W16}, {WSR}, s{sVX} offen offset:{1024*x} sc1 lds"
    dmaK = lambda x: f"buffer_load_dwordx4 v{W16}, {WSR}, s{sKX} offen offset:{1024*x} sc1 lds"
    E(f"s_waitcnt vmcnt({n2+1})", f"ds_write_b128 v{W16}, {vr(M,4)} offset:{L_MS}")
    P(0)
    early = OPTS.get("early", 1)
    chk = [f"v_max3_u32 v{C0}, v{M}, v{M+1}, v{M+2}", f"v_max3_u32 v{C0}, v{C0}, v{M+3}, v{M+4}", f"v_max3_u32 v{C0}, v{C0}, v{M+5}, v{M+6}",
           f"v_max_u32 v{C0}, v{C0}, v{M+7}", f"v_cmp_eq_u32 vcc, -1, v{C0}"]
    E(Q(0,0), f"s_waitcnt vmcnt({n2})", f"ds_write_b128 v{W16}, {vr(M+4,4)} offset:{L_MS+1024}")
    if early:
        if vpos >= 8:
            E(chk, Q(0,1), f"s_mov_b32 m0, s{sMK}", Q(1,0), f"s_cbranch_vccnz L_retry2{sfx}", dmaK(0), Q(1,1), dmaK(1), f"s_mov_b32 m0, s{sMV}", K(0,0),
              "s_waitcnt lgkmcnt(2)", dmaV(0), K(0,1), dmaV(1), K(1,0))
        elif vpos < 4 or vpos == 7:
            E(chk, Q(0,1), f"s_mov_b32 m0, s{sMK}", Q(1,0), f"s_cbranch_vccnz L_retry2{sfx}", Q(1,1), K(0,0), K(0,1), K(1,0))
        else:
            E(chk, Q(0,1), f"s_mov_b32 m0, s{sMV}", Q(1,0), f"s_cbranch_vccnz L_retry2{sfx}", Q(1,1), "s_waitcnt lgkmcnt(2)", dmaV(0), K(0,0),
              K(0,1), dmaV(1), f"s_mov_b32 m0, s{sMK}", K(1,0))
    else:
        E(chk[0], Q(0,1), chk[1], Q(1,0), chk[2], Q(1,1), f"s_mov_b32 m0, s{sMK}", chk[3], K(0,0), chk[4], K(0,1), K(1,0),
          f"s_cbranch_vccnz L_retry2{sfx}")
    E(f"s_waitcnt vmcnt({4 if vpos >= 8 else 2 if 4 <= vpos < 7 else 0}) lgkmcnt(0)", "s_barrier")
    P(1)
    mV = f"s_mov_b32 m0, s{sMV}"
    plan = {0: {7: [dmaK(0)], 9: [dmaK(1), mV], 10: [dmaV(0)], 12: [dmaV(1)], 15: [stK], 18: [ldW]},
            1: {7: [dmaK(0)], 10: [dmaK(1), mV], 13: [dmaV(0)], 16: [dmaV(1)], 18: [ldW], 24: [stK]},
            2: {7: [stK], 9: [dmaK(0)], 10: [dmaK(1), mV], 13: [dmaV(0)], 16: [dmaV(1)], 18: [ldW]},
            3: {9: [dmaK(0)], 10: [dmaK(1), mV], 12: [dmaV(0)], 15: [dmaV(1)], 18: [stK], 24: [ldW]},
            4: {7: [dmaK(0)], 9: [dmaK(1)], 12: [ldW], 16: [stK]},
            5: {7: [dmaK(0)], 10: [dmaK(1)], 13: [ldW], 18: [stK]},
            6: {9: [dmaK(0)], 10: [dmaK(1)], 13: [ldW], 24: [stK]},
            7: {7: [dmaK(0)], 9: [dmaK(1), mV], 11: [dmaV(0)], 13: [dmaV(1)], 16: [ldW], 24: [stK]},
            8: {7: [ldW], 10: [stK]}, 9: {7: [ldW], 15: [stK]}, 10: {7: [stK], 10: [ldW]}, 11: {9: [ldW], 13: [stK]}, 12: {7: [ldW], 24: [stK]}}[vpos]
    B = lambda k: plan.get(k, [])
    bpos = OPTS.get("bpos", 24)
    BR = lambda k: "s_barrier" if bpos == k else N0
    if 7 in plan: E(mr(2), mr(3), K(1,1), mr(4), B(7))
    else: E(mr(2), K(1,1), mr(3), mr(4))
    E(Vv(0), mr(5), mr(6), Vv(1), mr(7), B(9), Vv(2), B(10))
    E(Vv(3), lg.need(("m",2)), wr(6,0), B(11), Q(2,0), lg.need(("m",3)), wr(5,0), B(12))
    E(Q(3,0), lg.need(("m",4)), wr(5,1), B(13), Q(4,0), lg.need(("m",5)), wr(6,1), Q(5,0), lg.need(("m",7)), wr(7,0), B(15))
    E(Q(6,0), wr(7,1), B(16), Q(7,0), BR(17), kxr(0,0), wv_next(2))
    E(Vv(4), BR(18), kxr(1,0), B(18), Q(2,1), BR(19), wr(8,0), add(AQ,AQ,AQ+1))
    E(Q(3,1), nv(5), wr(8,1), add(AQ+2,AQ+2,AQ+3), Vv(5), kxr(2,0), mulc(AQ), Q(4,1), wr(9,0), mulc(AQ+2))
    E(Q(5,1), wr(9,1), cvt(AQ,AQ,AQ), Q(6,1), BR(24), B(24), cvt(AQ+1,AQ+2,AQ+2))
    E(Q(7,1), nv(7), lg.op("qw0", f"ds_write_b64 v{XTW}, {vr(AQ,2)} offset:{L_QT}"))
    P(2)
    E(Vv(6), N0, kxr(3,0), Vv(7), N0, wr(10,0), add(AQ+4,AQ+4,AQ+5))
    E(K(2,0), wr(10,1), add(AQ+6,AQ+6,AQ+7), K(3,0), nv(9), wr(11,0), mulc(AQ+4))
    E(Vv(8), wr(11,1), mulc(AQ+6), K(4,0), cvt(AQ+4,AQ+4,AQ+4), Vv(9), cvt(AQ+5,AQ+6,AQ+6))
    E(K(5,0), lg.op("qw", f"ds_write_b64 v{XTW}, {vr(AQ+4,2)} offset:{L_QT+2048}"), wv_next(3))
    P("i")
    E(K(6,0), wr(12,0), K(7,0), nv(11), wr(12,1), Vv(10), N0, wr(13,0), Vv(11), N0, wr(13,1), add(AK,AK,AK+1))
    E(K(2,1), lg.need("qw"), "s_barrier", add(AK+2,AK+2,AK+3))
    P("j")
    E(K(3,1), qr(0,0), qr(0,1), K(4,1), qr(1,0), qr(1,1), K(5,1), qr(2,0), qr(2,1), K(6,1), qr(3,0), qr(3,1))
    E(K(7,1), nv(13), kxr(0,1), cvt(KV,AK,AK+2), Vv(12), N0, kxr(1,1), Vv(13), lg.need(("q",3,1)), kxr(2,1), add(AK+4,AK+4,AK+5))
    P(3)
    SX = lambda t, tt: d32(AQ + 4*tt, kxreg(t,tt), QF + 4*t, t == 0)
    EX, PX, E2 = M + 8, M + 12, M + 16
    DM, LL = AK, AK + 4
    E(SX(0,0), add(AK+6,AK+6,AK+7), cvt(KV+1,AK+4,AK+6))
    E(SX(1,0), lg.op("kw", f"ds_write2st64_b32 v{XTW}, v{KV}, v{KV+1} offset0:{L_KT//256} offset1:{L_KT//256+8}"), kxr(3,1))
    E(SX(2,0), wr(14,0), add(AV,AV,AV+1), SX(3,0), lg.need(("kx",2,1)), wr(14,1), add(AV+2,AV+2,AV+3))
    E(SX(0,1), wr(15,0), cvt(KV+2,AV,AV+2), SX(1,1), wr(15,1), SX(2,1), lg.need(("kx",3,1)), "s_barrier")
    P("k")
    E(kr(0,0), kr(0,1), SX(3,1), nv(14), kr(1,0), kr(1,1), Vv(14), nv(15), kr(2,0), kr(2,1), Vv(15), kr(3,0), kr(3,1))
    E(ex(EX,AQ), ex(EX+1,AQ+1), ex(EX+2,AQ+2))
    P(4)
    SM = lambda t: d32(DM, KW + 4*t, QF + 4*t, t == 0)
    OA, OP = QF + 4, QF + 12
    E(lg.need(("k",1,1)), SM(0), ex(EX+3,AQ+3), SM(1), lg.need(("k",3,1)), ex(E2,AQ+4))
    E(SM(2), ex(E2+1,AQ+5), SM(3), f"s_cmp_eq_u32 s{sS}, 63", ex(E2+2,AQ+6), ex(E2+3,AQ+7))
    P("l")
    E(cvt(PX,EX,EX+1), cvt(PX+1,EX+2,EX+3), cvt(PX+2,E2,E2+1), cvt(PX+3,E2+2,E2+3), add(AV+4,AV+4,AV+5), ex(EX,DM))
    E(d32(LL, ONES, PX, True), ex(EX+1,DM+1))
    E(d32(OA, VX, PX, True), add(AV+6,AV+6,AV+7), cvt(PM0,EX,EX+1))
    E(d32(OA+4, VX+4, PX, True), cvt(KV+3,AV+4,AV+6), cvt(PM1+1,EX,EX+1))
    RI = LL + 1
    WA = M + 16
    zw = [f"v_mov_b64 {vr(WA+2*i,2)}, 0" for i in range(8)]
    E(d16(LL, ONES, PM0), "s_cbranch_scc1 L_team_last", wv_next(0), zw[4])
    P(5)
    E(d16(OA, KV+2, PM0), N0, zw[5], zw[6])
    E(d16(OA+4, KV+2, PM1), f"v_rcp_f32 v{RI}, v{LL}", f"v_subrev_u32 v{LL+2}, s{sLO}, v{LL}", f"v_cmp_le_u32 vcc, s{sRANGE}, v{LL+2}", zw[7])
    a(f"L_smback{sfx}:")
    for i in range(4): a(f"v_mul_f32 v{OA+i}, v{OA+i}, v{RI}")
    E(cvt(OP, OA, OA+1), cvt(OP+1, OA+2, OA+3))
    if OPTS.get("ow2", 1): E(lg.op("ow0", f"ds_write_b64 v{OXW}, {vr(OP,2)}"))
    for i in range(4, 8): a(f"v_mul_f32 v{OA+i}, v{OA+i}, v{RI}")
    E(cvt(OP+2, OA+4, OA+5), cvt(OP+3, OA+6, OA+7), f"s_cbranch_vccnz L_smslow{sfx}")
    OF = [OP, KW + 4, KW + 8, KW + 12]
    WOm = lambda n, il: sm(WA + 4*n, OF[il], vr(WO + (n*4 + il)*8, 8))
    SEL, RD, HD = M, M + 4, M + 8
    sel = [f"v_lshrrev_b32 v{RD}, 16, v{ONES}", f"v_cndmask_b32 v{RD}, v{RD}, 1.0, s[{sODD}:{sODD+1}]"] + [f"v_cndmask_b32 v{SEL+i}, 0, v{RD}, s[{sSEL+2*i}:{sSEL+2*i+1}]" for i in range(4)]
    z = [f"v_mov_b64 {vr(AQ+2*i,2)}, 0" for i in range(12)]
    P("e")
    E(lg.op("ow", f"ds_write_b64 v{OXW}, {vr(OP+2,2)} offset:8" if OPTS.get("ow2", 1) else f"ds_write_b128 v{OXW}, {vr(OP,4)}"))
    for il in range(1, 4): a(f"v_xor_b32 v{OF[il]}, {il*512}, v{OXW}")
    npre, nwo, nz = OPTS.get("npre", 6), OPTS.get("nwo", 1), OPTS.get("nz", 2)
    own = [WOm(3,0), WOm(2,0), WOm(1,0), WOm(0,0)]
    E(zw[:4], sel[:npre], own[:nwo])
    P("f")
    E(lg.need("ow"), "s_barrier")
    P("g")
    ord_ = lambda il: lg.op(("o", il), f"ds_read_b128 {vr(OF[il],4)}, v{OF[il]}")
    E(ord_(1), own[nwo:nwo+1], ord_(2), ord_(3))
    fill = sel[npre:] + z[4:6+nz]
    for k_, m in enumerate(own[nwo+1:]): E(m, fill.pop(0))
    E(fill, lg.need(("o",1)))
    P(6)
    def post(n):
        b = WA + 4*n
        return [cvt(b, b, b+1), cvt(b+1, b+2, b+3), f"v_and_or_b32 v{b}, v{b}, -2, s{sTAG}",
                f"buffer_store_dwordx2 {vr(b,2)}, v{H1ST}, {WSR}, s{sH1+n} offen {stf}"]
    p0, p1, p2, p3 = post(0), post(1), post(2), post(3)
    if not OPTS.get("prompt", 1):
        E(WOm(0,1), lg.need(("o",2)), z[0], WOm(0,2), lg.need(("o",3)), z[1], WOm(0,3), N1, z[2])
        E(WOm(1,1), N1, z[3], WOm(1,2), p0[0], WOm(1,3), N1, p0[1])
        E(WOm(2,1), N1, p0[2], WOm(2,2), p0[3], p1[0], WOm(2,3), N1, p1[1])
        E(WOm(3,1), N1, p1[2], WOm(3,2), p1[3], p2[0], WOm(3,3))
        P("h")
        E(N1, p2[1], p2[2], p2[3], "s_nop 2", p3)
    else:
        E(WOm(0,1), lg.need(("o",2)), z[0], WOm(0,2), lg.need(("o",3)), z[1], WOm(0,3), N1, z[2])
        E(WOm(1,1), N1, z[3], WOm(1,2), p0[:3], WOm(1,3), N1, p0[3])
        E(WOm(2,1), "s_nop 2", WOm(2,2), p1[:3], WOm(2,3), N1, p1[3])
        E(WOm(3,1), "s_nop 2", WOm(3,2), p2[:3], WOm(3,3))
        P("h")
        E(N1, p2[3], "s_nop 4", p3)
    if vpos >= 8: E('s_barrier')
    P(7)
    d1, d1s, d2 = OPTS.get("d1", 250), OPTS.get("d1s", 48), OPTS.get("d2", 220)
    prev = 0
    for w in range(4):
        want = max(0, d1 - (3 - w) * d1s)
        if w > 0 and want > prev: a(f"s_cmp_lt_u32 s{S_WAVE}, {w}\ns_cbranch_scc1 L_poll1{sfx}"); prev += 8
        E(warm(max(0, want - prev))); prev = max(prev, want)
    g1, g2 = OPTS.get("g1", 120), OPTS.get("g2", 100)
    T1 = M + 24
    def ld1(b): E(f"buffer_load_dwordx4 {vr(b,4)}, v{H1LD}, {WSR}, s{sH1L} offen sc1", f"buffer_load_dwordx4 {vr(b+4,4)}, v{H1LD}, {WSR}, s{sH1L} offen offset:1024 sc1")
    def try1(b, n, re=None):
        E(f"s_waitcnt vmcnt({n+1})")
        if b == HD: P("b")
        E(d32(RD, b, SEL, True), f"v_bitop3_b32 v{T1}, v{b}, v{b+2}, s{sTAG} bitop3:0x7e", f"s_waitcnt vmcnt({n})")
        if b == HD: P("c")
        E(d32(RD, b+4, SEL, False), f"v_bitop3_b32 v{T1+1}, v{b+4}, v{b+6}, s{sTAG} bitop3:0x7e",
          f"v_or_b32 v{T1}, v{T1}, v{T1+1}", f"v_and_b32 v{T1}, 1, v{T1}", f"v_cmp_ne_u32 vcc, 0, v{T1}")
        if re is None: E("s_nop 2")
        else: ld1(re); E(N0)
    a(f"L_poll1{sfx}:")
    P("a")
    ld1(HD)
    tog = [f"s_xor_b32 s{sH2L}, s{sH2L}, 0x2000", f"v_xor_b32 v{A16}, 0x2000, v{A16}", f"v_xor_b32 v{OXW}, 0x2000, v{OXW}"]
    E(z[6:], tog)
    if g1:
        E(warm(g1 - 40))
        ld1(HD + 8)
    E(wv_prefetch(), warm(OPTS.get("w1", 0)))
    a(f"L_poll1b{sfx}:")
    try1(HD, 2 if g1 else 0)
    E(f"s_cbranch_vccnz L_retry1{sfx}")
    a(f"L_got1{sfx}:")
    def tail1():
        P("d")
        E(add(RD,RD,RD+1), add(RD+2,RD+2,RD+3), N1, f"v_permlane16_swap_b32 v{RD}, v{RD+2}", add(RD,RD,RD+2), cvt(RD, RD, ZERO),
          f"v_min_u32 v{RD}, s{sFFFE}, v{RD}", f"v_cndmask_b32 v{RD}, v{RD}, -1, s[{sSENT}:{sSENT+1}]")
        E(f"buffer_store_short v{RD}, v{H2ST}, {WSR}, s{sH2S} offen {stf}")
        P(8)
        E(warm(max(0, d2 - 20)), f"s_branch L_poll2{sfx}")
    tail1()
    a(f"L_retry2{sfx}:")
    if prof: a("s_add_u32 s37, s37, 1")
    if not g2:
        ld2(M, M + 4)
        spin_check(a)
        E("s_nop 3", z[:8], f"s_branch L_entry{sfx}")
    else:
        E("s_waitcnt vmcnt(0)", f"v_max3_u32 v{C0}, v{B0_}, v{B0_+1}, v{B0_+2}", f"v_max3_u32 v{C0+1}, v{B0_+3}, v{B1_}, v{B1_+1}",
          f"v_max3_u32 v{C0}, v{C0}, v{B1_+2}, v{B1_+3}", f"v_max_u32 v{C0}, v{C0}, v{C0+1}", f"v_cmp_eq_u32 vcc, -1, v{C0}",
          [f"v_mov_b64 {vr(M+2*i,2)}, {vr((B0_ if i < 2 else B1_ - 4)+2*i,2)}" for i in range(4)], z[:4 if early else 8])
        E(f"s_cbranch_vccz L_entry{sfx}")
        ld2(M, M + 4)
        spin_check(a)
        E(nops(g2 - 20))
        ld2(B0_, B1_)
        E(f"s_branch L_entry{sfx}")
    a(f"L_retry1{sfx}:")
    if g1 and OPTS.get("r1", 1) == 1:
        ld1(HD)
        try1(HD + 8, 2)
        E(f"s_cbranch_vccnz L_retry1b{sfx}")
        if prof: a(f"s_add_u32 s{sSPIN}, s{sSPIN}, 1")
        tail1()
        a(f"L_retry1b{sfx}:")
        ld1(HD + 8)
        spin_check(a)
        E(f"s_branch L_poll1b{sfx}")
    elif g1:
        try1(HD + 8, 0, HD)
        E(f"s_cbranch_vccnz L_retry1b{sfx}")
        if prof: a(f"s_add_u32 s{sSPIN}, s{sSPIN}, 1")
        tail1()
        a(f"L_retry1b{sfx}:")
        spin_check(a)
        E(nops(max(0, g1 - 60)))
        ld1(HD + 8)
        E(f"s_branch L_poll1b{sfx}")
    else:
        ld1(HD)
        spin_check(a)
        E(f"s_branch L_poll1b{sfx}")
    a(f"L_smslow{sfx}:")
    E(f"v_max3_f32 v{EX+2}, v{AQ}, v{AQ+1}, v{AQ+2}", f"v_max3_f32 v{EX+2}, v{EX+2}, v{AQ+3}, v{AQ+4}",
      f"v_max3_f32 v{EX+2}, v{EX+2}, v{AQ+5}, v{AQ+6}", f"v_max3_f32 v{EX+2}, v{EX+2}, v{AQ+7}, v{DM}", f"v_max_f32 v{EX+2}, v{EX+2}, v{DM+1}")
    for sw in ("v_permlane32_swap_b32", "v_permlane16_swap_b32"):
        E(f"v_mov_b32 v{EX}, v{EX+2}", N1, f"{sw} v{EX}, v{EX+2}", f"v_max_f32 v{EX+2}, v{EX+2}, v{EX}")
    for i in range(5):
        s0 = AQ + 2*i if i < 4 else DM
        E(f"v_sub_f32 v{EX}, v{s0}, v{EX+2}", f"v_sub_f32 v{EX+1}, v{s0+1}, v{EX+2}", ex(EX, EX), ex(EX+1, EX+1), N0)
        if i < 4: E(cvt(PX+i, EX, EX+1))
        else: E(cvt(PM0, EX, EX+1), cvt(PM1+1, EX, EX+1))
    E(N1, d32(LL, ONES, PX, True), d32(OA, VX, PX, True), d32(OA+4, VX+4, PX, True), "s_nop 3",
      d16(LL, ONES, PM0), d16(OA, KV+2, PM0), d16(OA+4, KV+2, PM1), "s_nop 7",
      f"v_rcp_f32 v{RI}, v{LL}", "s_mov_b64 vcc, 0", f"s_branch L_smback{sfx}")
    flag_spin(a, sfx, sFLG)
    a(f"s_branch L_fsback{sfx}")

def flag_spin(a, sfx, reg):
    a(f"""
    L_fs{sfx}:
    buffer_load_dword v{DUM}, v{ZERO}, {WSR}, s{reg} offen sc1
    """)
    spin_check(a)
    a(f"""
    s_waitcnt vmcnt(0)
    v_cmp_gt_u32 vcc, s{sNEED}, v{DUM}
    s_cbranch_vccnz L_fs{sfx}
    """)

def advance(a):
    a(f"""
    s_add_u32 s{sS}, s{sS}, 1
    s_xor_b32 s{sTAG}, s{sTAG}, 1
    s_add_u32 s{sT0}, s{sS}, 1
    s_min_u32 s{sT0}, s{sT0}, 63
    s_lshl_b32 s{sT0}, s{sT0}, 13
    s_add_u32 s{sKX}, s{sKB0}, s{sT0}
    s_add_u32 s{sVX}, s{sKX}, 0x1000000
    s_add_u32 s{sT0}, s{sS}, 3
    s_min_u32 s{sNEED}, s{sT0}, 64
    s_add_u32 s{sKVM}, s{sKVM}, 0x20000
    s_xor_b32 s{sMK}, s{sMK}, 0x2000
    """)

def gen_team(a):
    h, w = S_RANK, S_WAVE
    T = 20
    D0, D1, R0 = 44, 45, 46
    LEAD = OPTS.get("tlead", 3)
    a("L_team:")
    a(f"""
    s_mov_b32 s{sSPIN}, 0
    v_lshrrev_b32 v{T}, 4, v0          ; g
    v_and_b32 v{T+1}, 15, v0           ; r
    v_bfe_u32 v{T+2}, v0, 4, 1          ; lo
    v_lshrrev_b32 v{T+3}, 5, v0         ; a
    s_lshl_b32 s{sT0}, s{w}, 1
    v_or_b32 v{T+4}, s{sT0}, v{T+2}
    v_lshlrev_b32 v{T+4}, 1, v{T+4}
    v_xor_b32 v{T+4}, v{T+4}, v{T+1}
    v_lshlrev_b32 v{T+4}, 4, v{T+4}
    v_lshl_add_u32 v{T+5}, v{T+2}, 4, v{T+3}
    v_add_u32 v{T+5}, s{sT0}, v{T+5}
    v_lshl_add_u32 v{D0}, v{T+5}, 13, v{T+4}
    s_lshl_b32 s{sT1}, s{h}, 8
    v_add_u32 v{D0}, s{sT1}, v{D0}
    s_lshl_b32 s{sT0}, s{w}, 4
    v_add_u32 v{T+5}, s{sT0}, v{T}
    v_lshl_add_u32 v{D1}, v{T+5}, 10, v{T+4}
    s_lshl_b32 s{sT1}, s{h}, 17
    v_add_u32 v{D1}, s{sT1}, v{D1}
    s_mov_b32 s50, 0x400000
    s_mov_b32 s51, 0x20000
    s_lshl_b32 s{sS}, s{w}, 10
    """)
    ptr = [S_WQB, S_WKB, S_WOB, S_WVB]
    MORD = [int(x) for x in str(OPTS.get("tord", "2013")).zfill(4)]
    def wdma(q):
        mt, j = MORD[q >> 3], q & 7
        if j == 0: a(f"s_mov_b32 s48, s{ptr[mt]}\ns_and_b32 s49, s{ptr[mt]+1}, 0xffff")
        for i in range(4):
            u, gh = i >> 1, i & 1
            if mt == 2: so = (64 * (j & 1) + 8 * u + 4 * gh) * 1024 + (j >> 1) * 256
            else: so = (64 * j + 32 * u + 8 * gh) * 8192
            a(f"s_add_u32 m0, s{sS}, {j*16384 + i*4096}\ns_mov_b32 s{sT0}, {so}\nbuffer_load_dwordx4 v{D1 if mt == 2 else D0}, s[48:51], s{sT0} offen {'nt' if (OPTS.get('tnt', 0) >> (q >> 3)) & 1 else ''} lds")
    stamp(a, 4, 40)
    for q in range(2): wdma(q)
    a(f"""
    s_lshl_b32 s{sT0}, s{w}, 11
    s_add_u32 s{sT0}, s{sT0}, {LB}
    v_lshl_add_u32 v{W16}, v0, 4, s{sT0}
    s_add_u32 s{sWD}, s{sT0}, {0x2000 * OPTS.get('kahead', 1)}
    s_lshl_b32 s{sT0}, s{w}, 12
    v_lshl_add_u32 v{WVB}, v0, 4, s{sT0}
    s_lshl_b32 s{sT0}, s{w}, 9
    s_add_u32 s{sT0}, s{sT0}, {LB}
    v_bfe_u32 v{T+2}, v0, 3, 1
    v_lshl_add_u32 v{XTW}, v{T+2}, 8, s{sT0}
    v_lshl_add_u32 v{XTW}, v{T}, 6, v{XTW}
    v_and_b32 v{T+2}, 7, v0
    v_lshl_add_u32 v{XTW}, v{T+2}, 3, v{XTW}
    v_lshrrev_b32 v{T+2}, 5, v0
    v_lshlrev_b32 v{XTR}, 8, v{T+2}
    v_and_b32 v{T+2}, 3, v0
    v_lshl_add_u32 v{XTR}, v{T+2}, 6, v{XTR}
    v_bfe_u32 v{T+2}, v0, 2, 3
    v_lshl_add_u32 v{XTR}, v{T+2}, 3, v{XTR}
    v_add_u32 v{XTR}, {LB}, v{XTR}
    s_lshl_b32 s{sT0}, s{w}, 9
    s_add_u32 s{sT0}, s{sT0}, {LB + L_X}
    v_lshrrev_b32 v{T+2}, 1, v0
    v_lshl_add_u32 v{OXW}, v{T+2}, 4, s{sT0}
    ; H1ST = (8w + (l>>3))*2048 + h*64 + (l&7)*8
    s_lshl_b32 s{sT0}, s{w}, 14
    s_lshl_b32 s{sT1}, s{h}, 6
    s_add_u32 s{sT0}, s{sT0}, s{sT1}
    v_lshrrev_b32 v{T+2}, 3, v0
    v_lshl_add_u32 v{H1ST}, v{T+2}, 11, s{sT0}
    v_and_b32 v{T+2}, 7, v0
    v_lshl_add_u32 v{H1ST}, v{T+2}, 3, v{H1ST}
    v_lshlrev_b32 v{H1LD}, 8, v{T}
    v_bfe_u32 v{T+2}, v0, 2, 1
    v_lshl_add_u32 v{H1LD}, v{T+2}, 7, v{H1LD}
    v_and_b32 v{T+2}, 1, v0
    v_lshl_add_u32 v{H1LD}, v{T+2}, 6, v{H1LD}
    v_bfe_u32 v{T+2}, v0, 3, 1
    v_lshl_add_u32 v{H1LD}, v{T+2}, 5, v{H1LD}
    v_bfe_u32 v{T+2}, v0, 1, 1
    v_lshl_add_u32 v{H1LD}, v{T+2}, 4, v{H1LD}
    s_lshl_b32 s{sT0}, s{w}, 16
    s_lshl_b32 s{sT1}, s{h}, 11
    s_add_u32 s{sT0}, s{sT0}, s{sT1}
    s_add_u32 s{sH1L}, s{sT0}, {hex(WS_HOP1)}
    v_bfe_u32 v{T+2}, v0, 3, 1
    v_lshlrev_b32 v{H2ST}, 13, v{T+2}
    v_lshl_add_u32 v{H2ST}, v{T}, 3, v{H2ST}
    v_bfe_u32 v{T+2}, v0, 1, 1
    v_lshl_add_u32 v{H2ST}, v{T+2}, 5, v{H2ST}
    v_bfe_u32 v{T+2}, v0, 2, 1
    v_lshl_add_u32 v{H2ST}, v{T+2}, 2, v{H2ST}
    v_and_b32 v{T+2}, 1, v0
    v_lshl_add_u32 v{H2ST}, v{T+2}, 1, v{H2ST}
    s_lshl_b32 s{sH2S}, s{w}, 11
    s_lshr_b32 s{sT0}, s{h}, 3
    s_lshl_b32 s{sT0}, s{sT0}, 9
    s_add_u32 s{sH2S}, s{sH2S}, s{sT0}
    s_and_b32 s{sT0}, s{h}, 1
    s_lshl_b32 s{sT0}, s{sT0}, 8
    s_add_u32 s{sH2S}, s{sH2S}, s{sT0}
    s_bfe_u32 s{sT0}, s{h}, 0x20001
    s_lshl_b32 s{sT0}, s{sT0}, 6
    s_add_u32 s{sH2S}, s{sH2S}, s{sT0}
    s_add_u32 s{sH2S}, s{sH2S}, {hex(WS_HOP2)}
    s_mov_b32 s{sH2L}, {hex((WS_HOP2 - LB) ^ 0x2000)}
    s_lshl_b32 s{sFLG}, s{h}, 7
    s_add_u32 s{sFLG}, s{sFLG}, {hex(FLAG_F)}
    s_lshl_b32 s{sKB0}, s{h}, 19
    s_add_u32 s{sKB0}, s{sKB0}, {hex(WS_PROJ + (4 << 24) - LB)}
    s_mov_b32 s{sODD}, 0xaaaaaaaa
    s_mov_b32 s{sODD+1}, 0xaaaaaaaa
    v_mov_b32 v{ZERO}, 0
    v_mov_b32 v{PM1}, 0
    v_mov_b32 v{PM0}, 0
    v_mov_b32 v{ONES+0}, 0x3f803f80
    v_mov_b32 v{ONES+1}, 0x3f803f80
    v_mov_b32 v{ONES+2}, 0x3f803f80
    v_mov_b32 v{ONES+3}, 0x3f803f80
    s_mov_b32 s{sSENT}, 0xff00ff00
    s_mov_b32 s{sSENT+1}, 0xff00ff00
    s_mov_b32 s{sC}, {fbits(SM_SCALE)}
    s_mov_b32 s{sLO}, {hex((127 - 60) << 23)}
    s_mov_b32 s{sRANGE}, {hex(OPTS.get('smrange', 120) << 23)}
    s_mov_b32 s{sFFFE}, 0xfffe
    s_lshl_b32 s{sT0}, s{w}, 11
    s_add_u32 s{sMK}, s{sT0}, {LB + L_X}
    s_add_u32 s{sMV}, s{sT0}, {LB + L_VX}
    s_lshl_b32 s{sT0}, s{h}, 7
    s_add_u32 s{sT0}, s{sT0}, {hex(FLAG_T)}
    s_cmp_eq_u32 s{w}, 0
    s_cselect_b32 s{sTF}, s{sT0}, {hex(OOB)}
    """)
    for i in range(4):
        a(f"s_mov_b32 s{sSEL+2*i}, {hex(0x03030303 << (2*i))}\ns_mov_b32 s{sSEL+2*i+1}, {hex(0x03030303 << (2*i))}\ns_mov_b32 s{sH1+i}, {hex(WS_HOP1 + i*65536)}")
    for n in range(4): a(f"buffer_store_dwordx2 {vr(PM0,2)}, v{H1ST}, {WSR}, s{sH1+n} offen sc1")
    a(f"""
    v_mov_b32 v{T+2}, 0xffff
    buffer_store_short v{T+2}, v{H2ST}, {WSR}, s{sH2S} offen sc1
    s_mul_i32 s{sT0}, s{w}, 4
    s_lshr_b32 s{sT0}, 0x7640, s{sT0}
    s_and_b32 s{sT0}, s{sT0}, 15
    s_lshl_b32 s{sT0}, s{sT0}, 12
    s_lshl_b32 s{sT1}, s{h}, 7
    s_add_u32 s{sT0}, s{sT0}, s{sT1}
    s_add_u32 s{sT0}, s{sT0}, {hex(WS_FLAG + OPTS.get('noclear', 0) * OOB)}
    v_and_b32 v{T+3}, 31, v0
    v_lshlrev_b32 v{T+3}, 2, v{T+3}
    v_lshrrev_b32 v{T+4}, 5, v0
    v_lshl_add_u32 v{T+3}, v{T+4}, 12, v{T+3}
    buffer_store_dword v{ZERO}, v{T+3}, {WSR}, s{sT0} offen sc1
    """)
    set_srd(a, S_SRD2, S_MEM0, 8192)
    a(f"""
    v_bfe_u32 v{T+2}, v0, 1, 3
    v_lshlrev_b32 v{T+3}, 10, v{T+2}
    v_lshrrev_b32 v{T+2}, 5, v0
    v_lshl_add_u32 v{T+3}, v{T+2}, 6, v{T+3}
    v_bfe_u32 v{T+2}, v0, 4, 1
    v_lshl_add_u32 v{T+3}, v{T+2}, 4, v{T+3}
    v_and_b32 v{T+2}, 1, v0
    v_lshl_add_u32 v{T+3}, v{T+2}, 3, v{T+3}
    s_lshl_b32 s{sT0}, s{w}, 8
    buffer_load_dwordx2 {vr(KW,2)}, v{T+3}, s[52:55], s{sT0} offen
    buffer_load_dwordx2 {vr(KW+2,2)}, v{T+3}, s[52:55], s{sT0} offen offset:32
    buffer_load_dwordx2 {vr(KW+4,2)}, v{T+3}, s[52:55], s{sT0} offen offset:128
    buffer_load_dwordx2 {vr(KW+6,2)}, v{T+3}, s[52:55], s{sT0} offen offset:160
    v_lshrrev_b32 v{T+2}, 5, v0
    v_lshlrev_b32 v{R0}, 12, v{T+2}
    v_bfe_u32 v{T+2}, v0, 3, 1          ; hf
    v_lshl_add_u32 v{R0}, v{T+2}, 11, v{R0}
    v_lshlrev_b32 v{T+4}, 2, v{T+2}
    v_bfe_u32 v{T+2}, v0, 4, 1          ; gl
    v_lshl_add_u32 v{R0}, v{T+2}, 10, v{R0}
    v_lshl_add_u32 v{T+4}, v{T+2}, 1, v{T+4}
    v_bfe_u32 v{T+2}, v0, 2, 1          ; lo
    v_lshl_add_u32 v{R0}, v{T+2}, 8, v{R0}
    v_add_u32 v{T+4}, v{T+4}, v{T+2}
    s_lshl_b32 s{sT0}, s{w}, 1
    v_xor_b32 v{T+4}, s{sT0}, v{T+4}
    v_lshl_add_u32 v{R0}, v{T+4}, 5, v{R0}
    v_and_b32 v{T+2}, 3, v0
    v_lshl_add_u32 v{R0}, v{T+2}, 3, v{R0}
    v_xor_b32 v{R0+1}, 32, v{R0}
    v_bfe_u32 v{T+2}, v0, 3, 1
    v_mul_u32_u24 v{T+2}, {2048 + 128 + 32}, v{T+2}
    v_xor_b32 v{R0+4}, v{T+2}, v{R0}
    v_xor_b32 v{R0+5}, {2048 + 128}, v{R0+4}
    """)
    set_srd(a, S_SRD2, S_DBG, 256)
    for q in range(2, LEAD): wdma(q)
    stamp(a, 5, 40)
    IN = AQ
    ldinit = f"buffer_load_dwordx2 {vr(IN,2)}, v{ZERO}, s[52:55], 0 offen sc1\nbuffer_load_dword v{DUM}, v{ZERO}, {WSR}, s{sFLG} offen sc1"
    for q in range(32):
        mt, j = MORD[q >> 3], q & 7
        a(f"s_waitcnt vmcnt({4*min(LEAD-1, 31-q) if q < 31 else 4})\ns_barrier")
        if q in (0, 8, 16, 24): stamp(a, {0: 6, 8: 7, 16: 8, 24: 9}[q], 40)
        if q == 2:
            a(f"""
            s_lshl_b32 s{sT0}, s{S_XCC}, 3
            s_lshl_b64 s[4:5], 1, s{sT0}
            v_mov_b64 {vr(T+2,2)}, s[4:5]
            s_cmp_eq_u32 s{w}, 0
            s_cselect_b32 s{sT1}, 0, {hex(OOB)}
            s_mov_b64 exec, 1
            buffer_atomic_add_x2 {vr(T+2,2)}, v{ZERO}, s[52:55], s{sT1} offen
            s_mov_b64 exec, -1
            """)
        if q == 3:
            a(f"""
    v_and_b32 v{T+2}, 1, v0
    v_cmp_eq_u32 vcc, 1, v{T+2}
    v_mov_b32 v{T+3}, 0x44444444
    v_mov_b32 v{T+4}, 0xeeeeeeee
    v_cndmask_b32 v{IDX}, v{T+3}, v{T+4}, vcc
    v_lshlrev_b32 v{A16}, 4, v0
    v_add_u32 v{A16}, {LB + L_X}, v{A16}
    s_mov_b32 s{sT0}, 0x05040100
    s_mov_b32 s{sT1}, 0x07060302
            """)
            for jj in range(2):
                x, y, d = KW + 4*jj, KW + 4*jj + 2, M + 4*jj
                a(f"""
                v_perm_b32 v{d}, v{y}, v{x}, s{sT0}
                v_perm_b32 v{d+1}, v{y}, v{x}, s{sT1}
                v_perm_b32 v{d+2}, v{y+1}, v{x+1}, s{sT0}
                v_perm_b32 v{d+3}, v{y+1}, v{x+1}, s{sT1}
                v_min_u32 v{d}, -2, v{d}
                v_min_u32 v{d+1}, -2, v{d+1}
                v_min_u32 v{d+2}, -2, v{d+2}
                v_min_u32 v{d+3}, -2, v{d+3}
                """)
        if q == 30 - LEAD: a(ldinit)
        if q == 30:
            a(f"""
            L_team_init:
            v_sad_u8 v{IN+2}, v{IN}, 0, 0
            v_sad_u8 v{IN+2}, v{IN+1}, 0, v{IN+2}
            v_cmp_gt_u32 vcc, 32, v{IN+2}
            v_cmp_gt_u32 s[4:5], 2, v{DUM}
            s_nop 0
            s_or_b64 vcc, vcc, s[4:5]
            s_cbranch_scc0 L_team_ready
            """)
            a(ldinit); spin_check(a)
            a(f"""
            s_waitcnt vmcnt(0)
            s_branch L_team_init
            L_team_ready:
            s_mov_b32 m0, s{sMK}
            s_mov_b32 s{sKX}, s{sKB0}
            buffer_load_dwordx4 v{W16}, {WSR}, s{sKX} offen sc1 lds
            buffer_load_dwordx4 v{W16}, {WSR}, s{sKX} offen offset:1024 sc1 lds
            s_mov_b32 m0, s{sMV}
            s_add_u32 s{sVX}, s{sKX}, 0x1000000
            buffer_load_dwordx4 v{W16}, {WSR}, s{sVX} offen sc1 lds
            buffer_load_dwordx4 v{W16}, {WSR}, s{sVX} offen offset:1024 sc1 lds
            v_lshrrev_b64 {vr(IN,2)}, s6, {vr(IN,2)}
            v_and_b32 v{IN}, 0xff, v{IN}
            v_cmp_eq_u32 s[4:5], v{IN}, v{IN+2}
            """.replace("s6,", f"s{sT1},").replace("L_team_ready:", f"L_team_ready:\ns_lshl_b32 s{sT1}, s{S_XCC}, 3"))
        if q + LEAD < 32: wdma(q + LEAD)
        rb = R0 + 4 if mt == 2 else R0
        a(f"v_add_u32 v{R0+2}, {j*16384}, v{rb}\nv_add_u32 v{R0+3}, {j*16384}, v{rb+1}")
        def reads(wv):
            for tl in range(2):
                for u in range(2):
                    for x in range(2):
                        o = 4 * u + 2 * x
                        if mt == 0: d = ar((tl*8 + (j ^ 2*wv))*8 + o, 2)
                        elif mt == 1: d = ar(128 + (tl*8 + (j ^ 2*wv))*8 + o, 2)
                        elif mt == 2: d = vr(WO + ((j >> 1)*4 + ((2*(j & 1) + tl) ^ wv))*8 + o, 2)
                        else: d = vr(ST + 8*tl + o, 2)
                        a(f"ds_read_b64_tr_b16 {d}, v{R0+2+tl} offset:{u*8192 + x*512}")
        if mt == 3: reads(0)
        else:
            for wv in range(4):
                if wv < 3: a(f"s_cmp_lg_u32 s{w}, {wv}\ns_cbranch_scc1 L_wr_{q}_{wv+1}")
                reads(wv)
                if wv < 3: a(f"s_branch L_wr_{q}_e\nL_wr_{q}_{wv+1}:")
            a(f"L_wr_{q}_e:")
        a("s_waitcnt lgkmcnt(0)")
        if mt == 3:
            a(f"s_barrier\nv_add_u32 v{R0+2}, {j*16384}, v{WVB}")
            for tl in range(2):
                for u in range(2):
                    a(f"ds_write_b128 v{R0+2}, {vr(ST + 8*tl + 4*u, 4)} offset:{tl*2048 + u*1024}")
            a("s_waitcnt lgkmcnt(0)")
    a(f"s_lshl_b32 s{sT0}, s{w}, 15\nv_add_u32 v{WVB}, s{sT0}, v{WVB}")
    stamp(a, 1, 40)
    a(f"""
    s_mov_b32 s{sS}, -1
    s_mov_b32 s{sTAG}, 0
    s_lshl_b32 s{sKVM}, s{h}, 12
    s_lshl_b32 s{sT0}, s{w}, 10
    s_sub_u32 s{sKVM}, s{sKVM}, s{sT0}
    s_add_u32 s{sKVM}, s{sKVM}, {hex(WS_KVM - 2*0x20000 - LB)}
    """)
    a.emit(wv_prefetch())
    advance(a)
    for i in range(12): a(f"v_mov_b64 {vr(AQ+2*i,2)}, 0")
    stamp(a, 2, 40)
    if OPTS.get("tprof"):
        for k in range(10): a(f"s_mov_b32 s{28+k}, 0")
        a("s_memtime s[26:27]\ns_waitcnt lgkmcnt(0)")
    a.emit(ms_addrs())
    a.emit(warm_addr())
    a("s_waitcnt vmcnt(0)")
    a.emit(vx_reads())
    a(f"""
    s_cmp_eq_u32 s4, {-1 if OPTS.get('forceslow') else 0}
    s_cbranch_scc1 L_entry_x
    s_branch L_entry_f
    """)
    step_loop(a, "_f", "")
    step_loop(a, "_x", "sc1")
    a(f"""
    L_team_last:
    s_add_u32 s{sKVM}, s{sKVM}, 0x20000
    v_min_u32 v{KV}, -2, v{KV}
    buffer_store_dwordx4 {vr(KV,4)}, v{W16}, {WSR}, s{sKVM} offen sc1
    """)
    stamp(a, 3)
    if OPTS.get("tsteps"):
        a(f"""v_bfe_u32 v20, v{W16}, 4, 6
        v_lshlrev_b32 v21, 2, v20
        s_lshl_b32 s10, s{h}, 8
        s_add_u32 s10, s10, {hex(WS_STAMP + 0x20000)}
        s_waitcnt lgkmcnt(0)
        buffer_store_dword v{WT}, v21, {WSR}, s10 offen""")
    if OPTS.get("tprof"):
        a(f"s_lshl_b32 s4, s{h}, 2\ns_add_u32 s4, s4, s{w}\ns_lshl_b32 s4, s4, 6\ns_add_u32 s4, s4, {hex(WS_STAMP + 0x10000)}")
        for k in range(9): a(f"v_mov_b32 v20, s{28+k}\nbuffer_store_dword v20, v{ZERO}, {WSR}, s4 offen offset:{4*k}")
        a(f"v_mov_b32 v20, s{sSPIN}\nbuffer_store_dword v20, v{ZERO}, {WSR}, s4 offen offset:36")
        a(f"v_mov_b32 v20, s37\nbuffer_store_dword v20, v{ZERO}, {WSR}, s4 offen offset:40")
    a("s_waitcnt vmcnt(0)\ns_endpgm")
```

```python
from common import *

A16, W16, RA, ORA, T0, T1, EX, ONES, GT, T2, XM, WD = 2, 3, 4, 5, 6, 7, 8, 16, 20, 24, 25, 26
S, P, C, O = 32, (64, 80), 96, 128
AQ, AK, AV, AL = 0, 64, 96, 128
L_K01 = 131072
sH, sQB, sB, sNA, sKO, sVO, sKB, sKMAX, sSLOT, sM0, sT0, sT1, sQO, sPO, sBIT, sRET, sWO, sM1, sSPIN, sCX = range(56, 76)
sPQ = 76
TOFF_DEFAULT = 16.0
NINF = "0xff800000"

def mf(D, A, B, Cc): return f"v_mfma_f32_16x16x32_bf16 {D}, {A}, {B}, {Cc}"
def qk_list(q0):
    l = []
    for qt in range(q0, 4):
        for kt in range(2):
            d = vr(S + 8*qt + 4*kt, 4)
            for t in range(4):
                l.append(mf(d, ar(AK + 4*(2*t+kt), 4), ar(AQ + 16*qt + 4*t, 4), vr(C + 8*qt + 4*kt, 4) if t == 0 else d))
    return l
def pv_list(par, q0):
    l = [mf(ar(AL + 4*qt, 4), vr(ONES, 4), vr(P[par] + 4*qt, 4), ar(AL + 4*qt, 4)) for qt in range(q0, 4)]
    for f in range(8):
        for qt in range(q0, 4):
            d = vr(O + 32*qt + 4*f, 4)
            l.append(mf(d, ar(AV + 4*f, 4), vr(P[par] + 4*qt, 4), d))
    return l
vrd = lambda f: f"ds_read_b128 {ar(AV + 4*f, 4)}, v{RA} offset:{f*1024}"
krd = lambda f: f"ds_read_b128 {ar(AK + 4*f, 4)}, v{RA} offset:{8192 + f*1024}"

def dma_kv():
    return [([f"s_add_u32 m0, s{sSLOT}, s{sM0}"], f"buffer_load_dwordx4 v{W16}, {WSR}, s{sVO} offen sc1 lds"),
            ([f"s_min_u32 s{sT0}, s{sKB}, s{sKMAX}"], f"buffer_load_dwordx4 v{W16}, {WSR}, s{sVO} offen offset:1024 sc1 lds"),
            ([f"s_add_u32 m0, m0, 0x2000"], f"buffer_load_dwordx4 v{W16}, {WSR}, s{sT0} offen sc1 lds"),
            ([f"s_add_u32 s{sVO}, s{sVO}, 0x2000"], f"buffer_load_dwordx4 v{W16}, {WSR}, s{sT0} offen offset:1024 sc1 lds"),
            ([f"s_add_u32 s{sKB}, s{sKB}, 0x2000", f"s_add_u32 s{sSLOT}, s{sSLOT}, 0x4000", f"s_and_b32 s{sSLOT}, s{sSLOT}, 0x1ffff"], None)]
def dma_w(k):
    return [([f"s_add_u32 m0, s{sM1}, {k*16384 + i*1024}", f"s_xor_b32 s{sT0}, s{sWO}, {hex(((k >> 1) << 17) + i*8192 + (k & 1)*128)}"],
             f"buffer_load_dwordx4 v{WD}, s[48:51], s{sT0} offen lds") for i in range(4)] + [([], None)]
def emit_dma(a, d):
    for sc_, ld in d:
        a.emit(sc_)
        if ld: a(("s_nop 0\n" if len(sc_) < 2 else "") + ld)

def mask_ops(j):
    q0 = j >> 1; l = []
    for kt in range(2):
        for i in range(4):
            r = C + 8*q0 + 4*kt + i; m = 80 + 2*((4*kt + i) & 3)
            l.append((f"v_cmp_gt_i32 s[{m}:{m+1}], {16*(2*(j&1)+kt) + i}, v{XM}", f"v_cndmask_b32 v{r}, v{r}, v{T2}, s[{m}:{m+1}]"))
    out = []
    for h in range(2): out += [x[0] for x in l[4*h:4*h+4]] + [x[1] for x in l[4*h:4*h+4]]
    return out

SITES = []
def body(a, name, par, qa, qb_, dma, nextmask=None, kreads=True):
    a(name + ":")
    qk = qk_list(qa); pv = pv_list(par, qb_)
    nq, n = len(qk), len(qk) + len(pv)
    G = Gaps(qk + pv)
    a("s_waitcnt vmcnt(24) lgkmcnt(0)")
    mem = [(f, [], vrd(f)) for f in range(8)]
    gap = 3 if qa == 0 else 1
    mem += [(8 + (11 if qa == 0 else 0) + gap*k, dma[k][0], dma[k][1]) for k in range(4)]
    if kreads: mem += [(nq + (1 + 3*f if qb_ == 0 else f), [], krd(f)) for f in range(8)]
    items = []
    for qt in range(qa, 4):
        for kt in range(2):
            tl = 2*qt + kt; s = S + 4*tl; e = EX + 4*kt; p = P[1-par] + 2*tl; rdy = 4*(tl - 2*qa) + 3 + 3
            items += [("e", rdy, f"v_exp_f32 v{e+i}, v{s+i}") for i in range(4)]
            items += [("c", 0, f"v_cvt_pk_bf16_f32 v{p}, v{e}, v{e+1}"), ("c", 0, f"v_cvt_pk_bf16_f32 v{p+1}, v{e+2}, v{e+3}"),
                      ("c", 0, f"v_or_b32 v{ORA}, v{p}, v{p+1}" if tl == 2*qa else f"v_or3_b32 v{ORA}, v{ORA}, v{p}, v{p+1}")]
    items += [("c", 0, f"v_and_b32 v{ORA}, s{sBIT}, v{ORA}"), ("c", 0, f"v_cmp_ne_u32 vcc, 0, v{ORA}")]
    if nextmask is not None: items += [("c", nq, x) for x in mask_ops(nextmask)]
    items += [("r", 0, f"v_add_u32 v{RA}, 0x4000, v{RA}"), ("r", 0, f"v_and_b32 v{RA}, 0x1ffff, v{RA}")]
    late = list(dma[4][0]) + [f"s_add_u32 s{sB}, s{sB}, 1"]
    vwait = nq + (4 - qb_) - 1
    k = mi = 0; nds_after_v = 0
    for g in range(n):
        last = g == n - 1
        sc, me, va = [], [], []
        if g == 0: sc.append("s_barrier")
        cap = 2
        while mi < len(mem) and (last or (mem[mi][0] <= g and len(me) == 0)):
            pre = mem[mi][1]
            if pre: me += pre + (["s_nop 0"] if len(pre) < 2 and "m0" in pre[0] else [])
            me.append(mem[mi][2])
            if mi >= 8 and mem[mi][2].startswith("ds_") and g <= vwait: nds_after_v += 1
            mi += 1; cap -= 1
        while k < len(items):
            ty, rdy, ins = items[k]
            cost = 2 if ty == "e" else 1
            if not last:
                if g < rdy or cost > cap: break
                if ty == "r" and mi < len(mem): break
                if ty != "e" and va and va[-1].startswith("v_exp"): break
            elif ty != "e" and va and va[-1].startswith("v_exp"): va.append("s_nop 0")
            va.append(ins); cap -= cost; k += 1
        if not sc and not (me and me[0].startswith("s_")):
            if late and mi >= 12: sc.append(late.pop(0))
            elif g < nq + 4: sc.append("s_nop 0")
        if last: va += late
        if g == vwait:
            assert mi >= 8
            va.append(f"s_waitcnt lgkmcnt({nds_after_v})")
        G.add(g, *(sc + me + va))
    G.emit(a)
    SITES.append((name, 1 - par, qa))
    a(f"s_cbranch_vccnz {name}_t\n{name}_r:")

def rescale(a, par, init):
    for qt in range(4):
        s = S + 8*qt
        if not init: a(f"L_a_slow{par}_{qt}:")
        a(f"""
        v_max3_f32 v{T0}, v{s}, v{s+1}, v{s+2}
        v_max3_f32 v{T1}, v{s+3}, v{s+4}, v{s+5}
        v_max3_f32 v{T0}, v{T0}, v{s+6}, v{s+7}
        v_max_f32 v{T0}, v{T0}, v{T1}
        """)
        for sw in ("v_permlane32_swap_b32", "v_permlane16_swap_b32"):
            a(f"v_mov_b32 v{T1}, v{T0}\ns_nop 1\n{sw} v{T1}, v{T0}\nv_max_f32 v{T0}, v{T0}, v{T1}")
        a(f"v_add_f32 v{T0}, {fbits(float(OPTS.get('toff', TOFF_DEFAULT)))}, v{T0}")
        if not init:
            a(f"v_max_f32 v{T0}, 0, v{T0}\nv_exp_f32 v{T1}, -v{T0}")
        for i in range(8): a(f"v_sub_f32 v{C+8*qt+i}, v{C+8*qt+i}, v{T0}")
        if not init:
            for i in range(32): a(f"v_mul_f32 v{O+32*qt+i}, v{O+32*qt+i}, v{T1}")
            for i in range(4):
                a(f"v_accvgpr_read_b32 v{EX}, a{AL+4*qt+i}\nv_mul_f32 v{EX}, v{EX}, v{T1}\nv_accvgpr_write_b32 a{AL+4*qt+i}, v{EX}")
        for i in range(8): a(f"v_sub_f32 v{EX+i}, v{s+i}, v{T0}")
        for i in range(8): a(f"v_exp_f32 v{EX+i}, v{EX+i}")
        for i in range(4): a(f"v_cvt_pk_bf16_f32 v{P[par]+4*qt+i}, v{EX+2*i}, v{EX+2*i+1}")
        if init: emit_dma(a, dma_kv())

def out_proj(a):
    CF, RB, SQ, FA = S, EX, C, T2
    OTH = (0, 128, 192)
    wf = lambda ct, t: AK + 16*ct + 4*t
    def rd(u, j):
        t, x = j >> 1, j & 1
        return f"ds_read_b64_tr_b16 {ar(wf(u & 3, t) + 2*x, 2)}, v{RB + 4*(u >> 4) + (u & 3)} offset:{((u >> 2) & 3)*16384 + t*4096 + x*2048}"
    acc = lambda u, qt: O + 32*((u >> 1) & 3) + 8*qt + 4*(u & 1)
    ctx = lambda i, qt, t: vr(CF + 16*qt + 4*t, 4) if i == 0 else ar(OTH[i-1] + 16*qt + 4*t, 4)
    def epi(c):
        l = []
        for qt in range(4):
            b = acc(2*c, qt); q = SQ + 4*qt + 16*(c & 1)
            l += [f"v_cvt_pk_bf16_f32 v{q+i}, v{b+2*i}, v{b+2*i+1}" for i in range(4)]
            l.append(f"buffer_store_dwordx4 {vr(q,4)}, v{A16}, {WSR}, s{sPQ+qt} offen offset:{c*1024} sc1")
        return l
    for u in range(2):
        for j in range(8): a(rd(u, j))
    a("s_waitcnt lgkmcnt(8)")
    ms = []
    for u in range(32):
        for qt in range(4):
            d = vr(acc(u, qt), 4)
            for t in range(4): ms.append(mf(d, ar(wf(u & 3, t), 4), ctx(u >> 3, qt, t), "0" if t == 0 and u < 8 else d))
    G = Gaps(ms)
    for u in range(32):
        g0 = 16*u
        if u == 25: G.add(g0 + 14, "s_barrier")
        if u + 2 < 32:
            for j in range(8): G.add(g0 + 2*j, rd(u + 2, j))
        if u < 31: G.add(g0 + 15, f"s_waitcnt lgkmcnt({8 if u + 2 < 32 else 0})")
        if u >= 26 and not u & 1:
            e = epi(u//2 - 13); g = g0 + 3
            G.add(g0 + 1, "s_nop 1")
            for qt in range(4):
                G.add(g, *e[5*qt:5*qt+2]); G.add(g + 2, *e[5*qt+2:5*qt+4]); G.add(g + 4, e[5*qt+4]); g += 6
    pf = OPTS.get("pubgap", 31)
    G.add(pf, "s_waitcnt vmcnt(0)", "s_mov_b64 exec, 1", f"buffer_store_dword v{ONES}, v{FA}, {WSR}, 0 offen sc1", "s_mov_b64 exec, -1")
    G.add(pf + 50, f"buffer_load_dword v{T0}, v{FA}, {WSR}, 0 offen sc1")
    lds = []
    for i in range(1, 4):
        for qt in range(4):
            lds.append([f"s_xor_b32 s{sT0}, s{sCX}, {hex((i << 16) + qt*4096)}"] +
                       [f"buffer_load_dwordx4 {ctx(i, qt, t)}, v{A16}, {WSR}, s{sT0} offen offset:{t*1024} sc1" for t in range(4)])
    G.add(127, "L_a_fw:", "s_waitcnt vmcnt(0)", f"v_cmp_eq_u32 vcc, 0, v{T0}", "s_cbranch_vccnz L_a_fspin", *sum(lds[:4], []))
    G.add(127, "s_waitcnt vmcnt(12)")
    for qt in range(1, 4): G.add(127 + 4*qt, f"s_waitcnt vmcnt({12 - 4*qt})")
    sp = OPTS.get("ldsp", 6)
    for hd in range(2):
        g = 145 if hd == 0 else 257 - OPTS.get("ldearly", 0)
        for grp in lds[4+4*hd:8+4*hd]:
            G.add(g, *grp[:2])
            for x in grp[2:]:
                g += sp; G.add(g, x)
            g += sp
        assert g - sp < 255 + 128*hd
    for hd in range(2):
        for qt in range(4):
            gw = 255 + 128*hd + 4*qt
            mine = lds[4+4*hd+qt][-1]
            seq = [x for k in range(gw + 1) for x in G.g[k] if x.startswith("buffer_load")]
            G.g[gw].append(f"s_waitcnt vmcnt({len(seq) - 1 - seq.index(mine)})")
    if OPTS.get("aprof"):
        for k, g in enumerate((pf - 1, pf, 126, 127, 254, 382)): G.add(g, f"s_memtime s[{80+2*k}:{81+2*k}]")
    G.emit(a)
    a("s_nop 7"); a.emit(epi(3))

def gen_att(a, next_label):
    w = S_WAVE
    SITES.clear()
    a("L_att:")
    a(f"""
    v_lshlrev_b32 v{A16}, 4, v0
    s_lshl_b32 s{sM0}, s{w}, 11
    v_add_u32 v{W16}, s{sM0}, v{A16}
    s_mov_b32 s{sSPIN}, 0
    v_and_b32 v{T0}, 7, v0
    s_lshl3_add_u32 s{sT1}, s{sQB}, 8
    v_lshlrev_b32 v{T1}, 4, v{T0}
    v_sub_u32 v{T1}, s{sT1}, v{T1}
    v_med3_i32 v{T1}, v{T1}, 0, 16
    s_lshl_b32 s{sT0}, s{sH}, 7
    s_add_u32 s{sT0}, s{sT0}, {hex(WS_FLAG)}
    v_lshl_add_u32 v{T0}, v{T0}, 2, s{sT0}
    s_bfe_u32 m0, s3, 0x30010
    s_bfe_u32 s{sT1}, s3, 0x60014
    s_nop 0
    v_writelane_b32 v{T1}, s{sT1}, m0
    s_lshl_b32 s{sT0}, s{sQB}, 7
    s_add_u32 s{sT0}, s{sT0}, {hex(CNT_GATE)}
    v_writelane_b32 v{T0}, s{sT0}, 63
    v_writelane_b32 v{T1}, 16, 63
    buffer_load_dword v{T2}, v{T0}, {WSR}, 0 offen sc1
    """)
    for i in range(64): a(f"v_mov_b64 {vr(O+2*i,2)}, 0")
    for i in range(16): a(f"v_mov_b64 {vr(C+2*i,2)}, 0\nv_accvgpr_write_b32 a{AL+i}, 0")
    for i in range(4): a(f"v_mov_b32 v{ONES+i}, 0x3f803f80")
    set_srd(a, S_SRD1, S_WOA, 0x400000)
    a(f"""
    s_lshl_b32 s{sT0}, s{sH}, 19
    s_add_u32 s{sKO}, s{sT0}, {hex(WS_PROJ + (1 << 24))}
    s_add_u32 s{sVO}, s{sT0}, {hex(WS_PROJ + (2 << 24))}
    s_lshl_b32 s{sNA}, s{sQB}, 3
    s_lshr_b32 s{sT1}, s{w}, 1
    s_add_u32 s{sT1}, s{sT1}, s{sNA}
    s_lshl_b32 s{sQO}, s{sT1}, 13
    s_add_u32 s{sQO}, s{sQO}, s{sT0}
    s_and_b32 s{sT1}, s{w}, 1
    s_lshl_b32 s{sT1}, s{sT1}, 10
    s_add_u32 s{sQO}, s{sQO}, s{sT1}
    s_lshl4_add_u32 s{sPO}, s{sQB}, s{w}
    s_add_u32 s{sKMAX}, s{sNA}, 7
    s_lshl_b32 s{sKMAX}, s{sKMAX}, 13
    s_add_u32 s{sKMAX}, s{sKMAX}, s{sKO}
    s_sub_u32 s{sNA}, s{sNA}, 1
    s_add_u32 s{sKB}, s{sKO}, 0x4000
    s_mov_b32 s{sSLOT}, 0
    s_mov_b32 s{sBIT}, 0x40004000
    s_lshl_b32 s{sM1}, s{w}, 12
    s_lshl_b32 s{sWO}, s{sH}, 17
    s_lshl_b32 s{sT1}, s{w}, 15
    s_add_u32 s{sWO}, s{sWO}, s{sT1}
    s_and_b32 s{sT1}, s{sH}, 3
    s_lshl_b32 s{sT1}, s{sT1}, 8
    s_add_u32 s{sWO}, s{sWO}, s{sT1}
    s_lshl_b32 s{sCX}, s{sQB}, 5
    s_add_u32 s{sCX}, s{sCX}, s{sH}
    s_lshl2_add_u32 s{sCX}, s{sCX}, s{w}
    s_lshl_b32 s{sCX}, s{sCX}, 14
    s_add_u32 s{sCX}, s{sCX}, {hex(WS_CTX)}
    v_lshrrev_b32 v{EX}, 4, v0
    v_and_b32 v{EX+1}, 15, v0
    s_lshl_b32 s{sT1}, s{w}, 4
    v_add_u32 v{XM}, s{sT1}, v{EX+1}
    v_lshlrev_b32 v{EX+2}, 2, v{EX}
    v_sub_u32 v{XM}, v{XM}, v{EX+2}
    v_lshlrev_b32 v{EX}, 1, v{EX}
    v_and_b32 v{EX+2}, 7, v0
    v_xor_b32 v{EX}, v{EX}, v{EX+2}
    v_lshlrev_b32 v{EX}, 4, v{EX}
    v_lshrrev_b32 v{EX+2}, 3, v0
    v_lshl_add_u32 v{WD}, v{EX+2}, 10, v{EX}
    v_lshlrev_b32 v{EX+1}, 2, v{EX+1}
    v_add_u32 v{RA}, {L_K01 - 8192}, v{A16}
    L_a_wait:
    s_waitcnt vmcnt(0)
    v_cmp_gt_u32 vcc, v{T1}, v{T2}
    s_cbranch_vccz L_a_go
    s_sleep {OPTS.get('slp', 4)}
    buffer_load_dword v{T2}, v{T0}, {WSR}, 0 offen sc1
    s_add_u32 s{sSPIN}, s{sSPIN}, 1
    s_cmp_gt_u32 s{sSPIN}, {SPIN_MAX}
    s_cbranch_scc1 L_exit
    s_branch L_a_wait
    L_a_go:
    """)
    stamp(a, 8)
    a(f"""
    s_add_u32 m0, s{sM0}, {L_K01}
    s_add_u32 s{sT0}, s{sKO}, 0x2000
    buffer_load_dwordx4 v{W16}, {WSR}, s{sKO} offen sc1 lds
    buffer_load_dwordx4 v{W16}, {WSR}, s{sKO} offen offset:1024 sc1 lds
    s_add_u32 m0, s{sM0}, {L_K01 + 8192}
    s_lshl_b32 s{sT1}, s{sPO}, 6
    buffer_load_dwordx4 v{W16}, {WSR}, s{sT0} offen sc1 lds
    buffer_load_dwordx4 v{W16}, {WSR}, s{sT0} offen offset:1024 sc1 lds
    s_add_u32 s{sT1}, s{sT1}, {hex(WS_GATE)}
    """)
    for qt in range(4):
        a(f"s_add_u32 s{sB}, s{sQO}, 0x1000")
        for t in range(4):
            a(f"buffer_load_dwordx4 {ar(AQ+16*qt+4*t,4)}, v{A16}, {WSR}, s{sQO if t < 2 else sB} offen offset:{(t&1)*2048} sc1")
        a(f"s_add_u32 s{sQO}, s{sQO}, 0x4000")
    for qt in range(4): a(f"buffer_load_dword v{GT+qt}, v{EX+1}, {WSR}, s{sT1} offen offset:{256*qt} sc1")
    for st in range(2): emit_dma(a, dma_kv())
    a(f"""
    s_mul_i32 s{sPO}, s{sPO}, {PART_T}
    s_lshl_b32 s{sT1}, s{sH}, 12
    s_add_u32 s{sPO}, s{sPO}, s{sT1}
    """)
    for qt in range(4): a(f"s_add_u32 s{sPQ+qt}, s{sPO}, {hex(WS_PART + 4*qt*PART_T)}")
    a(f"v_mov_b32 v{T2}, {NINF}\ns_cmp_lg_u32 s{sQB}, 0\ns_cbranch_scc1 L_a_nomask0")
    a.emit(mask_ops(0))
    a("L_a_nomask0:\ns_waitcnt vmcnt(28)\ns_barrier")
    for f in range(8): a(krd(f))
    a(f"v_add_u32 v{RA}, 0x2000, v{RA}")
    qk = qk_list(0)
    for qt in range(4):
        a(f"s_waitcnt vmcnt({24 - 4*qt}) lgkmcnt(0)")
        for m in qk[8*qt:8*qt+8]: a(m)
    for f in range(8): a(krd(f))
    a(f"v_mov_b32 v{RA}, v{A16}")
    emit_dma(a, dma_kv())
    rescale(a, 0, True)
    if OPTS.get("wopf", 0):
        a(f"""
        v_lshrrev_b32 v{T0}, 1, v0
        v_and_b32 v{T1}, 1, v0
        v_lshlrev_b32 v{T1}, 7, v{T1}
        v_lshl_add_u32 v{T0}, v{T0}, 10, v{T1}
        """)
        for k in range(4): a(f"s_xor_b32 s{sT0}, s{sWO}, {hex(k << 17)}\nbuffer_load_dword v27, v{T0}, s[48:51], s{sT0} offen")
    stamp(a, 9)
    a(f"s_mov_b32 s{sB}, 0\ns_cmp_lg_u32 s{sQB}, 0\ns_cbranch_scc1 L_a_s0")
    a.emit(mask_ops(1))
    a("s_branch L_a_d1")
    body(a, "L_a_s1", 1, 0, 0, dma_kv())
    body(a, "L_a_s0", 0, 0, 0, dma_kv())
    a(f"s_cmp_eq_u32 s{sB}, s{sNA}\ns_cbranch_scc0 L_a_s1")
    a.emit(mask_ops(0))
    a("s_nop 0")
    for j in range(8):
        body(a, f"L_a_d{j}", (j - 1) & 1, j >> 1, max(j - 1, 0) >> 1, dma_kv() if j < 2 else dma_w(j - 2),
             nextmask=j + 1 if j < 7 else None, kreads=j < 7)
    stamp(a, 10)
    a("s_waitcnt vmcnt(24)\ns_barrier")
    for f in range(8): a(vrd(f))
    emit_dma(a, dma_w(6))
    pv = pv_list(1, 3)
    a(pv[0])
    for f in range(8): a(f"s_waitcnt lgkmcnt({7-f})\n" + pv[1+f])
    a("s_barrier")
    emit_dma(a, dma_w(7))
    for qt in range(4):
        a(f"v_accvgpr_read_b32 v{T0}, a{AL+4*qt}\nv_rcp_f32 v{T0}, v{T0}\ns_nop 0\nv_mul_f32 v{GT+qt}, v{GT+qt}, v{T0}")
    for qt in range(4):
        for t in range(4):
            b = O + 32*qt + 8*t; q = S + 16*qt + 4*t
            for i in range(8): a(f"v_mul_f32 v{b+i}, v{b+i}, v{GT+qt}")
            for i in range(4): a(f"v_cvt_pk_bf16_f32 v{q+i}, v{b+2*i}, v{b+2*i+1}")
            if t == 0: a(f"s_add_u32 s{sT0}, s{sCX}, {qt*4096}")
            a(f"buffer_store_dwordx4 {vr(q,4)}, v{A16}, {WSR}, s{sT0} offen offset:{t*1024} sc1")
    RB = EX
    a(f"""
    v_and_b32 v{T0}, 3, v0
    v_xor_b32 v{T0}, s{sH}, v{T0}
    s_lshl2_add_u32 s{sT0}, s{sQB}, s{w}
    s_lshl2_add_u32 s{sT0}, s{sT0}, {hex(FLAG_T)}
    v_lshl_add_u32 v{T2}, v{T0}, 7, s{sT0}
    """)
    a(f"""
    v_lshrrev_b32 v{T0}, 2, v0
    v_lshlrev_b32 v{RB}, 7, v{T0}
    v_bfe_u32 v{T0}, v0, 3, 2
    v_lshl_add_u32 v{RB}, v{T0}, 5, v{RB}
    v_and_b32 v{T0}, 3, v0
    v_lshl_add_u32 v{RB}, v{T0}, 3, v{RB}
    """)
    for c in range(1, 4): a(f"v_xor_b32 v{RB+c}, {32*c}, v{RB}")
    for c in range(4): a(f"v_add_u32 v{RB+4+c}, 0x10000, v{RB+c}")
    a("s_waitcnt vmcnt(20)\ns_barrier")
    stamp(a, 12)
    out_proj(a)
    if OPTS.get("aprof"):
        a(f"s_lshl_b32 s92, s{S_CU}, 5\ns_add_u32 s92, s92, {hex(WS_STAMP + 0x30000)}\ns_memtime s[4:5]\ns_waitcnt lgkmcnt(0)")
        for k in range(7): a(f"v_mov_b32 v{T0}, s{80+2*k if k < 6 else 4}\ns_mov_b64 exec, 1\nbuffer_store_dword v{T0}, v{A16}, {WSR}, s92 offen offset:{4*k}\ns_mov_b64 exec, -1")
    a(f"""
    s_lshl_b32 s{sT0}, s{sQB}, 7
    s_add_u32 s{sT0}, s{sT0}, {hex(CNT_CTX)}
    s_cmp_eq_u32 s{w}, 0
    s_cselect_b32 s{sT0}, s{sT0}, {hex(OOB)}
    v_mov_b32 v{T0}, 1
    s_waitcnt vmcnt(0)
    s_barrier
    s_mov_b64 exec, 1
    buffer_atomic_add v{T0}, v{A16}, {WSR}, s{sT0} offen
    s_mov_b64 exec, -1
    s_branch {next_label}
    """)
    a(f"""
    L_a_fspin:
    s_sleep 1
    buffer_load_dword v{T0}, v{T2}, {WSR}, 0 offen sc1
    s_add_u32 s{sSPIN}, s{sSPIN}, 1
    s_cmp_gt_u32 s{sSPIN}, {SPIN_MAX}
    s_cbranch_scc1 L_exit
    s_branch L_a_fw
    """)
    for k, (name, par, q0) in enumerate(SITES):
        a(f"{name}_t:\ns_mov_b32 s{sRET}, {k}\ns_nop 6\ns_branch L_a_slow{par}_{q0}")
    for par in range(2):
        rescale(a, par, False)
        mine = [(k, n) for k, (n, p, _) in enumerate(SITES) if p == par]
        for k, n in mine[:-1]: a(f"s_cmp_eq_u32 s{sRET}, {k}\ns_cbranch_scc1 {n}_r")
        a(f"s_branch {mine[-1][1]}_r")
```

```python
from common import *

NINF = "0xff800000"
def mf(D, A, B, Cc): return f"v_mfma_f32_16x16x32_bf16 {D}, {A}, {B}, {Cc}"
def mf16(D, A, B): return f"v_mfma_f32_16x16x16_bf16 {D}, {A}, {B}, {D}"

A16, T0, T1, T2, T3, ZERO, XTW, XTR, GT, GTN, QA, CW, CR, QB_ = range(2, 16)
ONES, CM, GA, PMZ, PX, S, LL, KVM, VM, Q, KM, K, PK, CF, ACC, SQ, FL, ONE = 16, 20, 31, 32, 36, 40, 52, 56, 72, 80, 96, 112, 144, 152, 216, 232, 240, 241
OA, V = Q, K
sHP, sSPIN, sT0, sT1, sT2, sHD, sSEG, sNXT, sPEND, sNX2, sM0, sSRC, sQO, sKV0, sPB, sP0, sCB, sFF, sGO = range(56, 75)
L_CTX, L_XT = 98304, 131072

class LG:
    def __init__(self): self.n = 0; self.t = {}; self.done = 0
    def op(self, tag, ins): self.n += 1; self.t[tag] = self.n; return ins
    def need(self, tag):
        m = self.t[tag]
        if m <= self.done: return None
        self.done = m
        return f"s_waitcnt lgkmcnt({min(15, self.n - m)})"

def spin(a): a(f"s_add_u32 s{sSPIN}, s{sSPIN}, 1\ns_cmp_gt_u32 s{sSPIN}, {SPIN_MAX}\ns_cbranch_scc1 L_exit")

OUTL = []
def dma_setup(a, seg):
    l = a.newlabel("b_ff")
    a(f"""
    s_lshr_b32 s{sT1}, s{seg}, 4
    s_lshl_b32 s{sQO}, s{seg}, 9
    s_add_u32 s{sQO}, s{sQO}, s{sSRC}
    s_lshl_b32 s{sGO}, s{seg}, 3
    s_bitcmp1_b32 s{seg}, 2
    s_cselect_b32 s{sQO}, {hex(OOB)}, s{sQO}
    s_cselect_b32 s{sGO}, {hex(OOB)}, s{sGO}
    s_cselect_b32 s{sT1}, -1, s{sT1}
    {l}c:
    v_cmp_lt_i32 vcc, s{sT1}, v{FL}
    s_cbranch_vccz {l}
    """)
    OUTL.append(f"{l}:\nbuffer_load_dword v{FL}, v{ZERO}, {WSR}, s{sFF} offen sc1\ns_add_u32 s{sSPIN}, s{sSPIN}, 1\ns_cmp_gt_u32 s{sSPIN}, {SPIN_MAX}\ns_cbranch_scc1 L_exit\ns_waitcnt vmcnt(0)\ns_branch {l}c")
def dma_ops():
    l = []
    for m in range(3):
        for i in range(4):
            l.append(([f"s_add_u32 m0, s{sM0}, {m*8192}", f"s_add_u32 s{sT1}, s{sQO}, {hex(m << 24)}"] if i == 0 else [],
                      f"buffer_load_dwordx4 v{A16}, {WSR}, s{sT1} offen offset:{1024*i} sc1 lds"))
    l.append(([], f"buffer_load_dword v{GTN}, v{GA}, {WSR}, s{sGO} offen sc1"))
    l.append(([], f"buffer_load_dword v{FL}, v{ZERO}, {WSR}, s{sFF} offen sc1"))
    return l
def flip():
    return [f"s_cmp_ge_u32 s{sM0}, 49152", f"s_mov_b32 s{sT2}, 49152", f"s_cmov_b32 s{sT2}, -49152", f"s_add_u32 s{sM0}, s{sM0}, s{sT2}"]

def kvm_loads(seg):
    return [f"s_lshl_b32 s{sT0}, s{seg}, 13", f"s_add_u32 s{sT0}, s{sT0}, s{sKV0}"] + \
           [f"buffer_load_dwordx4 {vr(KVM+4*t,4)}, v{A16}, {WSR}, s{sT0} offen offset:{1024*t} sc1" for t in range(4)]
def kvm_check():
    return [f"v_max3_u32 v{T0}, v{KVM}, v{KVM+4}, v{KVM+8}", f"v_max_u32 v{T0}, v{T0}, v{KVM+12}", f"v_cmp_eq_u32 vcc, -1, v{T0}"]

L_CNT = 147456
def signal(a, seg):
    l = a.newlabel("b_sig")
    a(f"""
    s_bitcmp1_b32 s{seg}, 2
    s_cbranch_scc1 {l}
    s_lshr_b32 s{sT0}, s{seg}, 2
    s_add_u32 s{sT0}, s{sT0}, {L_CNT}
    v_mov_b32 v{T0}, s{sT0}
    s_mov_b64 exec, 1
    ds_add_rtn_u32 v{T0}, v{T0}, v{ONE}
    s_lshl_b32 s{sT0}, s{seg}, 3
    s_add_u32 s{sT0}, s{sT0}, {hex(CNT_B)}
    s_waitcnt lgkmcnt(0)
    v_cmp_eq_u32 vcc, 3, v{T0}
    s_cbranch_vccz {l}x
    buffer_atomic_add v{ONE}, v{ZERO}, {WSR}, s{sT0} offen
    {l}x:
    s_mov_b64 exec, -1
    {l}:
    """)

def xb_items():
    it = []
    ds = lambda tag, ins: it.append(("ds", tag, ins))
    v = lambda *l: it.extend(("v", x) for x in l)
    m = lambda ins: it.append(("m", ins))
    need = lambda tag: it.append(("need", tag))
    dist = lambda n: it.append(("dist", n))
    DM = S + 8
    for t in range(4): ds(("kw", t), f"ds_write2st64_b32 v{XTW}, v{KVM+4*t}, v{KVM+4*t+1} offset0:{2*t} offset1:{2*t+8}")
    for t in range(4):
        ds(("q", t), f"ds_read_b128 {vr(Q+4*t,4)}, v{QB_} offset:{t*2048}")
        for kt in range(2): ds(("k", t, kt), f"ds_read_b128 {vr(K+4*(2*t+kt),4)}, v{QA} offset:{8192 + (2*t+kt)*1024}")
    v(*[f"v_mov_b64 {vr(VM+2*t,2)}, {vr(KVM+4*t+2,2)}" for t in range(4)])
    need(("kw", 3))
    kl = kvm_loads(sNX2)
    it.append(("vm", kl[:2], kl[2]))
    for x in kl[3:]: it.append(("vm", [], x))
    for t in range(4):
        need(("k", t, 1))
        for kt in range(2):
            d = vr(S + 4*kt, 4)
            m(mf(d, vr(K+4*(2*t+kt),4), vr(Q+4*t,4), vr(CM+4*kt,4) if t == 0 else d))
            ds(("km", t, kt), f"ds_read_b64_tr_b16 {vr(KM+4*t+2*kt,2)}, v{XTR} offset:{kt*2048 + t*512}")
    for f in range(4): ds(("v", f), f"ds_read_b128 {vr(V+4*f,4)}, v{QA} offset:{16384 + f*1024}")
    need(("km", 3, 1))
    for t in range(4):
        m(mf(vr(DM,4), vr(KM+4*t,4), vr(Q+4*t,4), "0" if t == 0 else vr(DM,4)))
        ds(("v", 4+t), f"ds_read_b128 {vr(V+4*(4+t),4)}, v{QA} offset:{16384 + (4+t)*1024}")
    v(f"v_subrev_u32 v{QA}, s{sT2}, v{QA}", f"v_subrev_u32 v{QB_}, s{sT2}, v{QB_}", f"v_max_f32 v{T0}, v{S}, v{S+1}")
    for i in range(2, 8, 2): v(f"v_max3_f32 v{T0}, v{T0}, v{S+i}, v{S+i+1}")
    dist(8)
    v(f"v_max3_f32 v{T0}, v{T0}, v{DM}, v{DM+1}")
    for sw in ("v_permlane32_swap_b32", "v_permlane16_swap_b32"):
        v(f"v_mov_b32 v{T1}, v{T0}"); it.append(("gap", 2)); v(f"{sw} v{T1}, v{T0}", f"v_max_f32 v{T0}, v{T0}, v{T1}")
    for i in range(10): v(f"v_sub_f32 v{S+i}, v{S+i}, v{T0}")
    for i in range(10): v(f"v_exp_f32 v{S+i}, v{S+i}")
    for i in range(4): v(f"v_cvt_pk_bf16_f32 v{PX+i}, v{S+2*i}, v{S+2*i+1}")
    v(f"v_cvt_pk_bf16_f32 v{PMZ}, v{DM}, v{DM+1}", f"v_cvt_pk_bf16_f32 v{PMZ+3}, v{DM}, v{DM+1}")
    need(("v", 7))
    m(mf(vr(LL,4), vr(ONES,4), vr(PX,4), "0"))
    for f in range(8):
        m(mf(vr(OA+4*f,4), vr(V+4*f,4), vr(PX,4), "0"))
        if f == 5: m(mf16(vr(LL,4), vr(ONES,2), vr(PMZ,2)))
    for f in range(8):
        m(mf16(vr(OA+4*f,4), vr(VM+2*(f>>1),2), vr(PMZ+2*(f&1),2)))
        if f == 5: v(f"v_rcp_f32 v{T0}, v{LL}")
        if f == 6: v(f"v_mul_f32 v{T0}, v{T0}, v{GT}")
    for t in range(4):
        b = OA + 8*t; q = PK + 4*(t & 1)
        v(*[f"v_mul_f32 v{b+i}, v{b+i}, v{T0}" for i in range(8)])
        if t >= 2: need(("cw", t - 2))
        v(*[f"v_cvt_pk_bf16_f32 v{q+i}, v{b+2*i}, v{b+2*i+1}" for i in range(4)])
        ds(("cw", t), f"ds_write_b128 v{CW}, {vr(q,4)} offset:{t*1024}")
    v(f"v_xor_b32 v{CW}, 0x4000, v{CW}")
    return it

def xb_alone(a):
    lg = LG(); since = 0
    for x in xb_items():
        if x[0] == "ds": a(lg.op(x[1], x[2]))
        elif x[0] == "vm": a.emit(x[1]); a(x[2])
        elif x[0] == "need":
            w_ = lg.need(x[1])
            if w_: a(w_)
        elif x[0] == "dist":
            if since < x[1]: a(f"s_nop {x[1] - since - 1}")
        elif x[0] == "gap": a(f"s_nop {x[1] - 1}")
        else: a(x[1])
        since = 0 if x[0] == "m" else since + (x[0] in ("ds", "v", "vm"))

def gemm(a, merged):
    lg = LG()
    acc = lambda u: ACC + 4*(u & 3)
    ms = []
    for u in range(16):
        tt, ct = u >> 3, u & 7
        d = vr(acc(u), 4)
        for k in range(8): ms.append(mf(d, ar((ct*8 + k)*4, 4), vr(CF + 32*tt + 4*k, 4), "0" if k == 0 else d))
    def epi(c):
        b = acc(2*c); q = SQ + 4*(c & 1)
        return [f"v_cvt_pk_bf16_f32 v{q+i}, v{b+2*i}, v{b+2*i+1}" for i in range(4)] + \
               [f"buffer_store_dwordx4 {vr(q,4)}, v{A16}, {WSR}, s{sP0} offen offset:{(c & 3)*1024} sc1"]
    own = {}
    add = lambda g, *x: own.setdefault(g, []).append(x)
    for k in range(7): add(k, "need", ("c", k + 1))
    for k in range(8): add(40 + 2*k, "ds", ("c", 8 + k), f"ds_read_b128 {vr(CF+32+4*k,4)}, v{CR} offset:{8192 + k*1024}")
    add(63, "need", ("c", 15)); add(66, "v", f"v_xor_b32 v{CR}, 0x4000, v{CR}")
    for c in range(7):
        e = epi(c); g = 16*(c+1) + 7
        if c == 4: add(g - 1, "s", f"s_add_u32 s{sP0}, s{sP0}, {PART_T}")
        add(g, "v", e[0]); add(g, "v", e[1]); add(g + 1, "v", e[2]); add(g + 1, "v", e[3]); add(g + 2, "vm", [], e[4])
    g = 27 if merged else 8
    for pre, ld in dma_ops():
        while g in own: g += 1
        add(g, "vm", pre, ld); g += 3 if merged else 2
    for k in range(8): a(lg.op(("c", k), f"ds_read_b128 {vr(CF+4*k,4)}, v{CR} offset:{k*1024}"))
    a(lg.need(("c", 0)))
    xb = xb_items() if merged else []
    out = []; xi = 0; n = 0
    issued = {}; hold = 0; xmf = -99; cnt = [0]
    def put(ins): out.append(ins); cnt[0] += 1
    def fill(cap, sc, me, va):
        nonlocal xi, hold, xmf
        while xi < len(xb):
            x = xb[xi]
            if x[0] == "m": return True
            if x[0] == "need":
                if lg.t[x[1]] > lg.done and n - issued[x[1]] < 5: return False
                if me or va:
                    if lg.t[x[1]] > lg.done: return False
                w_ = lg.need(x[1])
                if w_: sc.append(w_)
            elif x[0] == "dist":
                if n - xmf < 4: return False
            elif x[0] == "gap":
                if va: return False
                sc.append("s_nop 0")
            elif x[0] in ("ds", "vm"):
                if va or cap < 1 or (me and x[0] == 'vm'): return False
                if x[0] == "ds": me.append(lg.op(x[1], x[2])); issued[x[1]] = n
                else: me.extend(x[1] + [x[2]])
                cap -= 1
            else:
                cost = 2 if x[1].startswith(("v_exp", "v_permlane", "v_rcp")) else 1
                if cost > cap: return False
                if va and va[-1].startswith(("v_exp", "v_rcp")): return False
                va.append(x[1]); cap -= cost
            xi += 1
        return False
    for g, mm in enumerate(ms):
        put(mm); n += 1
        sc, me, va = [], [], []
        for x in own.get(g, []):
            if x[0] == "need":
                w_ = lg.need(x[1])
                if w_: sc.append(w_)
            elif x[0] == "ds": me.append(lg.op(x[1], x[2])); issued[x[1]] = n
            elif x[0] == "vm": me.extend(x[1] + [x[2]])
            elif x[0] == "s": sc.append(x[1])
            else: va.append(x[1])
        cap = 2 - len(va) - (1 if me else 0)
        nxt = fill(cap, sc, me, va) if g >= 3 else False
        had_v = bool(va)
        if not sc and not (me and me[0].startswith("s_")): sc.append("s_nop 0")
        for x in sc + me + va: put(x)
        while nxt and not had_v:
            put(xb[xi][1]); xi += 1; n += 1; xmf = n
            sc, me, va = [], [], []
            nxt = fill(2, sc, me, va)
            if not sc and not (me and me[0].startswith("s_")): sc.append("s_nop 0")
            for x in sc + me + va: put(x)
    assert xi == len(xb), (xi, len(xb))
    out += ["s_nop 6"] + epi(7)
    a.emit(out)
    vm = [x for x in out if x.startswith("buffer")]
    k = 0
    while "store" in vm[-1 - k]: k += 1
    return k

def gen_barr(a, next_label):
    w = S_WAVE
    a("L_barr:")
    set_srd(a, S_SRD1, S_WOB, 0x400000)
    D0, RB = Q, K
    OUTL.clear()
    a(f"""
    v_lshlrev_b32 v{A16}, 4, v0
    v_mov_b32 v{ZERO}, 0
    s_mov_b32 s{sSPIN}, 0
    v_lshrrev_b32 v{T0}, 4, v0
    v_and_b32 v{T1}, 15, v0
    v_lshlrev_b32 v{T2}, 1, v{T0}
    v_xor_b32 v{T2}, v{T2}, v{T1}
    v_lshlrev_b32 v{T2}, 4, v{T2}
    v_lshl_add_u32 v{D0}, v{T0}, 10, v{T2}
    v_xor_b32 v{D0+1}, 128, v{D0}
    s_lshl_b32 s{sM0}, s{w}, 15
    s_lshl_b32 s{sT2}, s{sHP}, 18
    s_lshl_b32 s{sT0}, s{w}, 8
    s_add_u32 s{sT2}, s{sT2}, s{sT0}
    """)
    def wdma(hh):
        for p in range(32):
            a(f"s_add_u32 m0, s{sM0}, {p*1024}\ns_add_u32 s{sT0}, s{sT2}, {hh*131072 + p*4096}\nbuffer_load_dwordx4 v{D0+(p&1)}, s[48:51], s{sT0} offen lds")
    def wread(hh):
        for t in range(4):
            a(f"s_waitcnt vmcnt({24 - 8*t})")
            for ct in range(8):
                for x in range(2):
                    a(f"ds_read_b64_tr_b16 {ar((ct*8 + hh*4 + t)*4 + 2*x, 2)}, v{RB+ct} offset:{t*8192 + x*4096}")
        a("s_waitcnt lgkmcnt(0)")
    wdma(0)
    a(f"""
    v_lshrrev_b32 v{T2}, 2, v0
    v_lshl_add_u32 v{RB}, v{T2}, 8, s{sM0}
    v_and_b32 v{T2}, 7, v{T2}
    v_lshl_add_u32 v{RB}, v{T2}, 5, v{RB}
    v_and_b32 v{T2}, 3, v0
    v_lshl_add_u32 v{RB}, v{T2}, 3, v{RB}
    """)
    for ct in range(1, 8): a(f"v_xor_b32 v{RB+ct}, {32*ct}, v{RB}")
    wread(0); wdma(1)
    a(f"""
    s_lshr_b32 s{sT0}, s{w}, 1
    s_lshl1_add_u32 s{sHD}, s{sHP}, s{sT0}
    s_and_b32 s{sT1}, s{w}, 1
    s_lshl_b32 s{sT2}, s{w}, 12
    s_add_u32 s{sT2}, s{sT2}, {L_XT}
    v_bfe_u32 v{T3}, v0, 3, 1
    v_lshl_add_u32 v{XTW}, v{T3}, 8, s{sT2}
    v_lshl_add_u32 v{XTW}, v{T0}, 6, v{XTW}
    v_and_b32 v{T3}, 7, v0
    v_lshl_add_u32 v{XTW}, v{T3}, 3, v{XTW}
    v_lshrrev_b32 v{T3}, 5, v0
    v_lshl_add_u32 v{XTR}, v{T3}, 8, s{sT2}
    v_and_b32 v{T3}, 3, v0
    v_lshl_add_u32 v{XTR}, v{T3}, 6, v{XTR}
    v_bfe_u32 v{T3}, v0, 2, 3
    v_lshl_add_u32 v{XTR}, v{T3}, 3, v{XTR}
    s_mul_i32 s{sT2}, s{sT0}, 24576
    v_add_u32 v{QA}, s{sT2}, v{A16}
    s_lshl_b32 s{sM0}, s{sT1}, 10
    v_add_u32 v{QB_}, s{sM0}, v{QA}
    s_lshl_b32 s{sM0}, s{sT1}, 12
    s_lshl_b32 s{sSRC}, s{sHD}, 19
    s_add_u32 s{sSRC}, s{sSRC}, s{sM0}
    s_add_u32 s{sSRC}, s{sSRC}, {hex(WS_PROJ + (3 << 24))}
    s_add_u32 s{sM0}, s{sM0}, s{sT2}
    s_lshl1_add_u32 s{sT2}, s{sT1}, s{sT0}
    s_lshl_b32 s{sT2}, s{sT2}, 12
    s_add_u32 s{sT2}, s{sT2}, {L_CTX}
    v_add_u32 v{CW}, s{sT2}, v{A16}
    v_add_u32 v{CR}, {L_CTX}, v{A16}
    s_lshl_b32 s{sT2}, s{sT1}, 4
    v_add_u32 v{T1}, s{sT2}, v{T1}
    v_lshlrev_b32 v{GA}, 2, v{T1}
    v_add_u32 v{GA}, {hex(WS_GATE)}, v{GA}
    v_lshlrev_b32 v{T0}, 2, v{T0}
    v_sub_u32 v{T1}, v{T1}, v{T0}
    v_mov_b32 v{T3}, {NINF}
    s_lshl_b32 s{sFF}, s{sHD}, 7
    s_add_u32 s{sFF}, s{sFF}, {hex(FLAG_F)}
    s_lshl_b32 s{sKV0}, s{sHD}, 12
    s_add_u32 s{sKV0}, s{sKV0}, {hex(WS_KVM)}
    s_lshl2_add_u32 s{sPB}, s{sHP}, s{w}
    s_lshl_b32 s{sPB}, s{sPB}, 12
    s_add_u32 s{sPB}, s{sPB}, {hex(WS_PART + NPA*16384)}
    v_mov_b32 v{ONE}, 1
    v_lshlrev_b32 v{T2}, 2, v0
    v_add_u32 v{T2}, {L_CNT}, v{T2}
    ds_write_b32 v{T2}, v{ZERO}
    """)
    for i in range(8):
        a(f"v_cmp_gt_i32 vcc, {16*(i>>2) + (i&3)}, v{T1}\nv_mov_b32 v{ONES+(i&3)}, 0x3f803f80\ns_nop 0\nv_cndmask_b32 v{CM+i}, 0, v{T3}, vcc")
    a(f"v_mov_b32 v{PMZ+1}, 0\nv_mov_b32 v{PMZ+2}, 0")
    wread(1)
    a(f"""
    s_lshl_b32 s{sT0}, s{sHD}, 7
    s_add_u32 s{sT0}, s{sT0}, {hex(WS_FLAG + 16)}
    v_lshl_add_u32 v{T0}, v0, 2, s{sT0}
    v_and_b32 v{T1}, 7, v0
    v_lshlrev_b32 v{T1}, 7, v{T1}
    v_add_u32 v{T1}, {hex(CNT_GATE)}, v{T1}
    v_cmp_gt_u32 vcc, 2, v0
    v_mov_b32 v{FL}, 0
    s_nop 0
    v_cndmask_b32 v{T0}, v{T1}, v{T0}, vcc
    v_cndmask_b32 v{T1}, 16, 32, vcc
    L_b_w0:
    buffer_load_dword v{T2}, v{T0}, {WSR}, 0 offen sc1
    """)
    spin(a)
    a(f"""
    s_waitcnt vmcnt(0)
    v_cmp_ne_u32 vcc, v{T1}, v{T2}
    s_cbranch_vccnz L_b_w0
    v_readlane_b32 s{sNXT}, v{V_TAB}, s{S_TASK}
    s_add_u32 s{S_TASK}, s{S_TASK}, 1
    s_mov_b32 s{sPEND}, 4
    v_readlane_b32 s{sNX2}, v{V_TAB}, s{S_TASK}
    s_barrier
    """)
    stamp(a, 13)
    if OPTS.get("bprof"):
        for k in (86, 88, 89, 90, 91): a(f"s_mov_b32 s{k}, 0")
    dma_setup(a, sNXT)
    for pre, ld in dma_ops(): a.emit(pre); a(ld)
    a.emit(kvm_loads(sNXT))
    a.emit(flip())
    a(f"s_waitcnt vmcnt(0)\ns_barrier\nv_sub_f32 v{GT}, 1.0, v{GTN}")
    dma_setup(a, sNX2)
    for pre, ld in dma_ops(): a.emit(pre); a(ld)
    a.emit(flip())
    a("L_b_chk:")
    a.emit(kvm_check())
    a("s_cbranch_vccnz L_b_late")
    xb_alone(a)
    a("s_waitcnt vmcnt(0)")
    a(f"""
    L_b_join:
    s_mov_b32 s{sSEG}, s{sNXT}
    s_mov_b32 s{sNXT}, s{sNX2}
    s_bitcmp1_b32 s{sNXT}, 2
    s_cselect_b32 s{sT0}, 0, 1
    s_add_u32 s{S_TASK}, s{S_TASK}, s{sT0}
    v_sub_f32 v{GT}, 1.0, v{GTN}
    v_readlane_b32 s{sNX2}, v{V_TAB}, s{S_TASK}
    s_mul_i32 s{sP0}, s{sSEG}, {PART_T // 8}
    s_add_u32 s{sP0}, s{sP0}, s{sPB}
    """)
    dma_setup(a, sNX2)
    a.emit(kvm_check())
    a(f"""
    s_bitcmp1_b32 s{sNXT}, 2
    s_waitcnt lgkmcnt(0)
    s_barrier
    s_cbranch_scc1 L_b_alone
    s_cbranch_vccnz L_b_alone
    """)
    if OPTS.get("nomerge"): a("s_branch L_b_alone")
    a(f"s_sub_u32 s{sT2}, 0, s{sT2}")
    bp = OPTS.get("bprof")
    if bp: a("s_memtime s[80:81]")
    k = gemm(a, True)
    a.emit(flip())
    if bp: a("s_memtime s[82:83]")
    a(f"s_waitcnt vmcnt({k})")
    if bp:
        a("""s_memtime s[84:85]
        s_waitcnt lgkmcnt(0)
        s_sub_u32 s4, s80, s86
        s_cmp_lt_u32 s4, 6000
        s_cselect_b32 s4, s4, 0
        s_add_u32 s88, s88, s4
        s_sub_u32 s4, s82, s80
        s_add_u32 s89, s89, s4
        s_sub_u32 s4, s84, s82
        s_add_u32 s90, s90, s4
        s_add_u32 s91, s91, 1
        s_mov_b32 s86, s84""")
    signal(a, sPEND)
    a(f"s_mov_b32 s{sPEND}, s{sSEG}\ns_branch L_b_join\nL_b_alone:")
    gemm(a, False)
    a.emit(flip())
    a("s_waitcnt vmcnt(0)")
    signal(a, sSEG)
    signal(a, sPEND)
    a(f"s_mov_b32 s{sPEND}, 4\ns_bitcmp1_b32 s{sNXT}, 2\ns_cbranch_scc0 L_b_chk\ns_barrier")
    stamp(a, 14)
    if OPTS.get("bprof"):
        a(f"s_lshl_b32 s92, s{S_CU}, 5\ns_add_u32 s92, s92, {hex(WS_STAMP + 0x30000)}")
        for k in range(4): a(f"v_mov_b32 v{T0}, s{88+k}\nbuffer_store_dword v{T0}, v{ZERO}, {WSR}, s92 offen offset:{4*k}")
    a(f"s_branch {next_label}")
    a(f"L_b_late:\ns_sleep {OPTS.get('slpb', 2)}")
    a.emit(kvm_loads(sNXT))
    spin(a)
    a("s_waitcnt vmcnt(0)\ns_branch L_b_chk")
    a.emit(OUTL)

SEL, RD, RING, OA_ = 8, 16, 64, 24
sCUR, sSTG, sLO, sOO, sBC = 61, 62, 64, 65, 66
def gen_red(a, next_label):
    w = S_WAVE
    a("L_red:")
    set_srd(a, S_SRD1, S_OUT, 2048 * 512 * 2)
    a(f"""
    v_lshlrev_b32 v{A16}, 4, v0
    v_mov_b32 v{ZERO}, 0
    s_mov_b32 s{sSPIN}, 0
    v_and_b32 v{T0}, 4, v{V_TAB}
    v_cmp_ne_u32 vcc, 0, v{T0}
    v_bfe_u32 v{T0}, v{V_TAB}, 4, 6
    v_lshrrev_b32 v{T1}, 3, v{T0}
    s_lshr_b32 s{sT0}, vcc_lo, s{S_TASK}
    s_ff1_i32_b32 s{sT0}, s{sT0}
    s_bfm_b32 s{sT0}, s{sT0}, s{S_TASK}
    s_cmp_eq_u32 s{sSTG}, 0
    s_cselect_b32 s{sT1}, s{sT0}, 0
    v_lshlrev_b32 v{T1}, 7, v{T1}
    v_add_u32 v{T1}, {hex(CNT_CTX)}, v{T1}
    v_lshlrev_b32 v{T0}, 7, v{T0}
    v_add_u32 v{T0}, {hex(CNT_B)}, v{T0}
    v_cmp_gt_u32 vcc, 32, v0
    v_and_b32 v{T2}, 15, v0
    v_lshrrev_b32 v{T3}, 4, v0
    v_cndmask_b32 v{T0}, v{T0}, v{T1}, vcc
    v_cndmask_b32 v{T1}, 16, 32, vcc
    buffer_load_dword v{RD}, v{T0}, {WSR}, 0 offen sc1
    v_lshlrev_b32 v{OA_}, 10, v{T2}
    v_lshl_add_u32 v{OA_}, v{T3}, 4, v{OA_}
    """)
    a(f"""
    v_bfe_u32 v{RD+1}, v0, 2, 1
    v_lshlrev_b32 v{RD+1}, 1, v{RD+1}
    v_sub_u32 v{RD+1}, v{T3}, v{RD+1}
    v_bfe_u32 v{RD+2}, v0, 3, 1
    v_bfe_u32 v{RD+3}, v0, 1, 1
    v_lshl_add_u32 v{RD+2}, v{RD+2}, 1, v{RD+3}
    v_lshl_add_u32 v{RD+1}, v{RD+1}, 2, v{RD+2}
    v_and_b32 v{RD+2}, 1, v0
    v_lshlrev_b32 v{RD+2}, 4, v{RD+2}
    v_mov_b32 v{RD+3}, 0x3f80
    v_lshlrev_b32 v{RD+2}, v{RD+2}, v{RD+3}
    """)
    for i in range(8): a(f"v_cmp_eq_u32 vcc, {i}, v{RD+1}\ns_nop 1\nv_cndmask_b32 v{SEL+i}, 0, v{RD+2}, vcc")
    a(f"""
    v_readlane_b32 s{sNXT}, v{V_TAB}, s{S_TASK}
    L_r_wait:
    s_waitcnt vmcnt(0)
    v_cmp_gt_u32 vcc, v{T1}, v{RD}
    s_nop 0
    s_and_b64 vcc, vcc, s[{sT0}:{sT1}]
    s_cbranch_scc0 L_r_go
    s_sleep {OPTS.get('slp', 4)}
    buffer_load_dword v{RD}, v{T0}, {WSR}, 0 offen sc1
    """)
    spin(a)
    a("s_branch L_r_wait\nL_r_go:")
    stamp(a, 15)
    def decode():
        return [f"s_bfe_u32 s{sT0}, s{sNXT}, 0x60004", f"s_bfe_u32 s{sT1}, s{sNXT}, 0x1000e", f"s_lshl1_add_u32 s{sT0}, s{sT0}, s{sT1}",
                f"s_mul_i32 s{sLO}, s{sT0}, {PART_T}", f"s_bfe_u32 s{sT1}, s{sNXT}, 0x2000c", f"s_lshl2_add_u32 s{sT1}, s{sT1}, s{w}",
                f"s_lshl_b32 s{sT0}, s{sT0}, 14", f"s_lshl_b32 s{sP0}, s{sT1}, 6", f"s_add_u32 s{sP0}, s{sP0}, s{sT0}",
                f"s_lshl_b32 s{sT1}, s{sT1}, 10", f"s_add_u32 s{sLO}, s{sLO}, s{sT1}", f"s_add_u32 s{sLO}, s{sLO}, {hex(WS_PART)}",
                f"s_bitcmp1_b32 s{sNXT}, 2", f"s_cselect_b32 s{sLO}, {hex(OOB)}, s{sLO}"]
    ld = lambda p: [f"buffer_load_dwordx4 {vr(RING + 4*(p % 24), 4)}, v{A16}, {WSR}, s{sLO} offen sc1", f"s_add_u32 s{sLO}, s{sLO}, 0x4000"]
    a.emit(decode())
    LD = OPTS.get('rdepth', 8)
    for p in range(LD): a.emit(ld(p))
    a(f"""
    L_r_loop:
    s_mov_b32 s{sCUR}, s{sNXT}
    s_mov_b32 s{sOO}, s{sP0}
    s_add_u32 s{S_TASK}, s{S_TASK}, 1
    s_nop 0
    v_readlane_b32 s{sNXT}, v{V_TAB}, s{S_TASK}
    """)
    for p in range(24):
        if p == NPA - LD: a(f"s_cmp_lg_u32 s{sSTG}, 0\ns_cbranch_scc1 L_r_stage\nL_r_stageback:")
        if p == 24 - LD: a.emit(decode())
        a.emit(ld(p + LD))
        a(f"s_waitcnt vmcnt({LD})")
        for x in range(2):
            d = vr(RD + 4*x, 4)
            a(mf(d, vr(SEL + 4*x, 4), vr(RING + 4*(p % 24), 4), "0" if p == 0 else d))
    a("s_nop 6")
    for i in range(4): a(f"v_cvt_pk_bf16_f32 v{RD+16+i}, v{RD+2*i}, v{RD+2*i+1}")
    a(f"""
    buffer_store_dwordx4 {vr(RD+16,4)}, v{OA_}, s[48:51], s{sOO} offen
    s_bitcmp1_b32 s{sNXT}, 2
    s_cbranch_scc0 L_r_loop
    s_waitcnt vmcnt(1)
    """)
    stamp(a, 16)
    a(f"""
    s_branch {next_label}
    L_r_stage:
    s_bfe_u32 s{sBC}, s{sCUR}, 0x60004
    s_lshl_b32 s{sBC}, s{sBC}, 7
    s_add_u32 s{sBC}, s{sBC}, {hex(CNT_B)}
    L_r_st2:
    buffer_load_dword v{T0}, v{ZERO}, {WSR}, s{sBC} offen sc1
    """)
    spin(a)
    a(f"s_waitcnt vmcnt(0)\nv_cmp_gt_u32 vcc, 16, v{T0}\ns_cbranch_vccz L_r_stageback\ns_sleep {OPTS.get('slp', 4)}\ns_branch L_r_st2")
```

```python
from common import *

A16, T0, T1, T2, ZERO, FV = 2, 3, 4, 5, 6, 7
XD, RA, WD, RB = 8, 16, 20, 24
SENT = 36
XF, ACC, SQ = 64, 128, 192
sH, sJ, sT0, sT1, sM0, sXO, sOUT, sI, sFA, sOB, sSLOT, sN, sSPIN, sSC, sXI, sXB, sMAT, sORD, sVT, sWO, sGA, sGO, sROT, sKV, sEARLY = range(56, 81)

def mf(D, A, B, Cc): return f"v_mfma_f32_16x16x32_bf16 {D}, {A}, {B}, {Cc}"
def acc(par, vtype, tt, ct):
    piece, sub = (ct, tt) if vtype else (2*(ct >> 1) + tt, ct & 1)
    return ACC + 32*par + 8*piece + 4*sub
def xrd(g, j):
    s, tt = 4*g + (j >> 1), j & 1
    return f"ds_read_b128 {vr(XF + 32*(g & 1) + 4*j, 4)}, v{RA + (s & 3)} offset:{tt*16384 + (s >> 2)*256}"
def xdma(i):
    return [f"s_add_u32 m0, s{sSLOT}, {i*1024}", f"s_add_u32 s{sT0}, s{sXO}, {i*1024}", f"buffer_load_dwordx4 v{XD+i}, s[52:55], s{sT0} offen lds"]
def seg_of(dst, idx):
    return [f"s_lshr_b32 s{dst}, s{idx}, 3", f"s_lshl_b32 s{dst}, s{dst}, 2", f"s_lshr_b32 s{dst}, s{sORD}, s{dst}", f"s_and_b32 s{dst}, s{dst}, 7",
            f"s_and_b32 s{sT1}, s{idx}, 7", f"s_lshl3_add_u32 s{dst}, s{dst}, s{sT1}"]
def xadv():
    return [f"s_add_u32 s{sXI}, s{sXI}, 1"] + seg_of(sXO, sXI) + [f"s_lshl_b32 s{sXO}, s{sXO}, 15", f"s_add_u32 s{sXO}, s{sXO}, s{sXB}",
            f"s_add_u32 s{sSLOT}, s{sSLOT}, 0x8000", f"s_and_b32 s{sSLOT}, s{sSLOT}, 0x1ffff"]
def epi(par, scale):
    l = []
    for p in range(4):
        b = ACC + 32*par + 8*p; q = SQ + 4*p
        l.append(([f"v_mul_f32 v{b+i}, s{sSC}, v{b+i}" for i in range(8)] if scale else []) + [f"v_cvt_pk_bf16_f32 v{q+i}, v{b+2*i}, v{b+2*i+1}" for i in range(4)] +
                 [f"buffer_store_dwordx4 {vr(q,4)}, v{A16}, {WSR}, s{sOUT} offen offset:{p*1024} sc1"])
    return l

OUTL = []
def prewrite(lbl):
    return [f"s_cmp_lg_u32 s{sJ}, 6", f"s_cbranch_scc1 {lbl}", f"buffer_store_dwordx4 {vr(SENT,4)}, v{A16}, {WSR}, s{sKV} offen sc1",
            f"s_add_u32 s{sKV}, s{sKV}, 0x20000", f"{lbl}:"]
def body(a, par, vtype, first=False):
    a(f"L_f_{vtype}{par}{'f' if first else ''}:")
    ms = []
    for g in range(4):
        for ct in range(4):
            for tt in range(2):
                d = vr(acc(par, vtype, tt, ct), 4)
                for k in range(4):
                    x = vr(XF + 32*(g & 1) + 8*k + 4*tt, 4); wv = ar((ct*16 + 4*g + k)*4, 4)
                    A, B = (x, wv) if vtype else (wv, x)
                    ms.append(mf(d, A, B, "0" if g == 0 and k == 0 else d))
    G = Gaps(ms)
    if first: G.add(96, "s_waitcnt vmcnt(16)")
    else:
        l = a.newlabel("f_e")
        G.add(96, "s_waitcnt vmcnt(20)", f"s_cbranch_scc1 {l}", f"{l}b:")
        OUTL.append(f"{l}:\nv_mov_b32 v{FV}, s{sI}\ns_waitcnt vmcnt(8)\ns_branch {l}b")
    G.add(97, "s_barrier")
    for g in range(4):
        for j in range(8): G.add(32*g + 2 + 2*j, xrd((g + 1) & 3, j))
        G.add(32*g + 31, "s_waitcnt lgkmcnt(0)")
    G.add(3, *prewrite(a.newlabel('f_pw')))
    g = 9
    for e in ([] if first else epi(1 - par, not vtype)):
        k = 0
        while k < len(e):
            busy = any(x.startswith("ds_") for x in G.g[g])
            if e[k].startswith("buffer"):
                if not busy: G.add(g, e[k]); k += 1
            else:
                n = 1 if busy or e[k+1].startswith("buffer") else 2
                G.add(g, *e[k:k+n]); k += n
            g += 1
    assert g <= 50, g
    for k, x in enumerate(seg_of(sOUT, sI) + [f"s_lshl_b32 s{sOUT}, s{sOUT}, 13", f"s_add_u32 s{sOUT}, s{sOUT}, s{sOB}"]): G.g[100 + k].insert(0, x)
    if first:
        for t in range(2):
            for i in range(8): G.add(5 + 23*t + 2*i - (t and i >= 3), *xdma(i))
            for k, x in enumerate(xadv()): G.add(21 + 23*t + k//2, x)
    for i in range(8):
        d = xdma(i); g = 51 + 4*i
        G.add(g, *d[:2]); G.add(g + 2, d[2])
    for k, x in enumerate(xadv()): G.g[108 + k].insert(0, x)
    for j in range(4):
        G.add(84 + 2*j, f"v_add_u32 v{RA+j}, 0x8000, v{RA+j}"); G.add(85 + 2*j, f"v_and_b32 v{RA+j}, 0x1ffff, v{RA+j}")
    G.add(92, f"s_sub_u32 s{sT1}, s{sI}, 1", f"s_max_i32 s{sT1}, s{sT1}, 0"); G.add(93, f"v_mov_b32 v{FV}, s{sT1}")
    G.add(94, f"s_cmp_lt_u32 s{sI}, s{sEARLY}")
    G.add(99, f"buffer_store_dword v{FV}, v{ZERO}, {WSR}, s{sFA} offen sc1")
    if first and OPTS.get("fwo", 0):
        G.add(121, f"s_mov_b32 s48, s{S_WOA}", f"s_and_b32 s49, s{S_WOA+1}, 0xffff", f"v_lshlrev_b32 v{T0}, 3, v{A16}")
        G.add(122, "s_mov_b32 s50, 0x400000", f"s_lshl2_add_u32 s{sT0}, s{S_CU}, s{S_WAVE}", f"s_lshl_b32 s{sT0}, s{sT0}, 13")
        G.add(123, f"buffer_load_dword v31, v{T0}, s[48:51], s{sT0} offen")
    if par and not vtype:
        G.add(121, "s_mov_b64 exec, 1", f"buffer_atomic_add v33, v{ZERO}, {WSR}, s{sGA} offen", "s_mov_b64 exec, -1")
        G.add(122, f"s_mov_b32 s{sGA}, {hex(OOB)}")
    G.add(120, f"s_add_u32 s{sI}, s{sI}, 1"); G.add(126, f"s_cmp_lt_u32 s{sI}, s{sN}")
    G.emit(a)
    if par: a(f"s_cbranch_scc1 L_f_{vtype}0\ns_branch L_f_done")
    if first: a(f"s_branch L_f_{vtype}1")

def gen_feed(a, next_label):
    w = S_WAVE
    a("L_feed:")
    stamp(a, 4)
    a(f"""
    s_cmp_lt_u32 s{sJ}, 4
    s_cselect_b64 s[52:53], s[{S_C}:{S_C+1}], s[{S_X}:{S_X+1}]
    s_cselect_b64 s[48:49], s[{S_WUK}:{S_WUK+1}], s[{S_WQA}:{S_WQA+1}]
    s_cselect_b64 s[4:5], s[{S_WUV}:{S_WUV+1}], s[{S_WQB}:{S_WQB+1}]
    s_cselect_b32 s{sMAT}, 0x21, 0x30
    s_cselect_b32 s{sN}, 16, 32
    s_cselect_b32 s{sSC}, 1.0, {fbits(SM_SCALE)}
    s_cselect_b32 s{sVT}, 2, 4
    s_cmp_eq_u32 s{sJ}, 6
    s_cselect_b64 s[48:49], s[{S_WKB}:{S_WKB+1}], s[48:49]
    s_cselect_b64 s[4:5], s[{S_WVB}:{S_WVB+1}], s[4:5]
    s_cselect_b32 s{sMAT}, 0x54, s{sMAT}
    s_cselect_b32 s{sN}, 64, s{sN}
    s_cselect_b32 s{sEARLY}, {OPTS.get('fearly', 4)}, 0
    s_cselect_b32 s{sSC}, 1.0, s{sSC}
    s_cselect_b32 s{sVT}, 2, s{sVT}
    v_readlane_b32 s{sORD}, v{V_TAB}, s{S_TASK}
    s_add_u32 s{S_TASK}, s{S_TASK}, 1
    s_and_b32 s53, s53, 0xffff
    s_mov_b32 s54, 0x200000
    s_mov_b32 s55, 0x20000
    s_cmp_lt_u32 s{w}, 2
    s_cselect_b64 s[48:49], s[48:49], s[4:5]
    s_cselect_b32 s{sT0}, 0, 4
    s_lshr_b32 s{sMAT}, s{sMAT}, s{sT0}
    s_and_b32 s{sMAT}, s{sMAT}, 15
    s_and_b32 s49, s49, 0xffff
    s_mov_b32 s50, 0x400000
    s_mov_b32 s51, 0x20000
    v_lshlrev_b32 v{A16}, 4, v0
    v_mov_b32 v{ZERO}, 0
    v_lshrrev_b32 v{T0}, 3, v0
    v_lshlrev_b32 v{WD}, 13, v{T0}
    v_and_b32 v{T0}, 2, v{T0}
    v_and_b32 v{T1}, 7, v0
    v_xor_b32 v{T0}, v{T0}, v{T1}
    v_lshl_add_u32 v{WD}, v{T0}, 4, v{WD}
    v_xor_b32 v{WD+1}, 64, v{WD}
    s_lshl_b32 s{sM0}, s{w}, 14
    s_add_u32 s{sM0}, s{sM0}, 0x18000
    s_and_b32 s{sT1}, s{w}, 1
    s_lshl1_add_u32 s{sWO}, s{sH}, s{sT1}
    s_lshl_b32 s{sWO}, s{sWO}, 7
    s_lshl_b32 s{sT0}, s{sJ}, 2
    s_lshr_b32 s{sROT}, {OPTS.get('rot', 0)}, s{sT0}
    s_and_b32 s{sROT}, s{sROT}, 15
    s_lshl_b32 s{sT0}, s{sROT}, 20
    s_or_b32 s{sWO}, s{sWO}, s{sT0}
    """)
    def wdma(c):
        l = a.newlabel("f_w")
        a(f"s_cmp_lt_u32 s{sMAT}, {OPTS.get('ntm', 3)}\ns_cbranch_scc1 {l}")
        for nt in ("", "nt"):
            for p in range(4):
                a(f"s_add_u32 m0, s{sM0}, {(c & 3)*4096 + p*1024}\ns_xor_b32 s{sT0}, s{sWO}, {(32*c + 8*p)*8192}\nbuffer_load_dwordx4 v{WD+(p&1)}, s[48:51], s{sT0} offen {nt} lds")
            a(f"s_branch {l}e\n{l}:" if not nt else f"{l}e:")
    for c in range(4): wdma(c)
    GR = 32
    a(f"""
    s_mov_b32 s{sGA}, {hex(OOB)}
    v_and_b32 v{GR}, 15, v0
    v_mov_b32 v{GR+1}, 1
    s_lshl2_add_u32 s{sT0}, s{w}, s{sJ}
    s_cmp_ge_u32 s{sT0}, 4
    s_cbranch_scc1 L_f_nogate
    s_mov_b64 s[4:5], s[{S_X}:{S_X+1}]
    s_mov_b64 s[6:7], s[{S_GATEW}:{S_GATEW+1}]
    v_lshrrev_b32 v{T1}, 4, v0
    v_lshlrev_b32 v{T1}, 4, v{T1}
    v_lshl_add_u32 v{T2}, v{GR}, 10, v{T1}
    s_lshl2_add_u32 s{sGO}, s{sH}, s{sJ}
    s_lshl_b32 s{sT0}, s{sGO}, 14
    v_add_u32 v{T2}, s{sT0}, v{T2}
    """)
    for s in range(16):
        a(f"global_load_dwordx4 {vr(64+4*s,4)}, v{T2}, s[4:5] offset:{64*s}")
        a(f"global_load_dwordx4 {vr(128+4*s,4)}, v{T1}, s[6:7] offset:{64*s}")
    a(f"""
    v_lshlrev_b32 v{GR}, 2, v{GR}
    s_lshl_b32 s{sGO}, s{sGO}, 6
    s_add_u32 s{sGO}, s{sGO}, {hex(WS_GATE)}
    s_lshr_b32 s{sGA}, s{sH}, 2
    s_lshl_b32 s{sGA}, s{sGA}, 7
    s_add_u32 s{sGA}, s{sGA}, {hex(CNT_GATE)}
    L_f_nogate:
    """)
    a(f"""
    v_lshrrev_b32 v{T0}, 4, v0
    v_lshl_add_u32 v{RB}, v{T0}, 10, s{sM0}
    v_bfe_u32 v{T1}, v0, 2, 2
    v_lshl_add_u32 v{RB}, v{T1}, 7, v{RB}
    v_bfe_u32 v{T1}, v0, 3, 2
    v_lshl_add_u32 v{RB}, v{T1}, 5, v{RB}
    v_and_b32 v{T1}, 3, v0
    v_lshl_add_u32 v{RB}, v{T1}, 3, v{RB}
    v_and_b32 v{T1}, 15, v0
    v_xor_b32 v{T0}, v{T0}, v{T1}
    v_lshlrev_b32 v{T0}, 4, v{T0}
    v_lshl_add_u32 v{RA}, v{T1}, 10, v{T0}
    s_lshl1_add_u32 s{sT0}, s{sROT}, s{sT1}
    s_lshl_b32 s{sT0}, s{sT0}, 7
    v_xor_b32 v{XD}, s{sT0}, v{A16}
    s_lshl_b32 s{sOUT}, s{sMAT}, 24
    s_lshl_b32 s{sT0}, s{sH}, 19
    s_add_u32 s{sOUT}, s{sOUT}, s{sT0}
    s_lshl_b32 s{sT0}, s{sT1}, 12
    s_add_u32 s{sOUT}, s{sOUT}, s{sT0}
    s_add_u32 s{sOB}, s{sOUT}, {hex(WS_PROJ)}
    s_mov_b32 s{sOUT}, {hex(OOB)}
    s_lshl_b32 s{sT0}, s{sJ}, 2
    s_cmp_eq_u32 s{sJ}, 6
    s_cselect_b32 s{sT0}, {hex(FLAG_F - WS_FLAG)}, s{sT0}
    s_lshl_b32 s{sFA}, s{sH}, 7
    s_add_u32 s{sFA}, s{sFA}, s{sT0}
    s_add_u32 s{sFA}, s{sFA}, {hex(WS_FLAG)}
    s_cmp_eq_u32 s{w}, 0
    s_cselect_b32 s{sFA}, s{sFA}, {hex(OOB)}
    """)
    for c in range(1, 4): a(f"v_xor_b32 v{RB+c}, {c*32}, v{RB}\nv_xor_b32 v{RA+c}, {c << 6}, v{RA}")
    for i in range(1, 8): a(f"v_xor_b32 v{XD+i}, {i*16}, v{XD}")
    a(f"""
    s_lshl_b32 s{sSLOT}, s{w}, 13
    s_mov_b32 s{sXB}, s{sSLOT}
    s_and_b32 s{sXO}, s{sORD}, 7
    s_lshl_b32 s{sXO}, s{sXO}, 18
    s_add_u32 s{sXO}, s{sXO}, s{sXB}
    s_mov_b32 s{sXI}, 0
    s_mov_b32 s{sI}, 0
    s_mov_b32 s{sSPIN}, 0
    s_lshl2_add_u32 s{sKV}, s{sH}, s{w}
    s_lshl_b32 s{sKV}, s{sKV}, 10
    s_add_u32 s{sKV}, s{sKV}, {hex(WS_KVM)}
    v_mov_b64 {vr(SENT,2)}, -1
    v_mov_b64 {vr(SENT+2,2)}, -1
    """)
    for c in range(16):
        if c == 0: stamp(a, 5)
        a(f"s_waitcnt vmcnt({12 if c < 13 else (17, 13, 9)[c - 13]})")
        if c in (0, 8, 15): stamp(a, {0: 6, 8: 7, 15: 17}[c])
        for ct in range(4):
            for x in range(2):
                a(f"ds_read_b64_tr_b16 {ar((ct*16 + c)*4 + 2*x, 2)}, v{RB+ct} offset:{(c & 3)*4096 + x*512}")
        if c + 4 < 16:
            a("s_waitcnt lgkmcnt(0)"); wdma(c + 4)
        if c == 5:
            a(f"s_cmp_eq_u32 s{sGA}, {hex(OOB)}\ns_cbranch_scc1 L_f_nogate2")
            for s in range(16): a(mf(vr(SQ,4), vr(128+4*s,4), vr(64+4*s,4), vr(SQ,4) if s else "0"))
            a(f"""
            s_nop 7
            v_mul_f32 v{SQ}, {fbits(-1.4426950408889634)}, v{SQ}
            v_exp_f32 v{SQ}, v{SQ}
            s_nop 0
            v_add_f32 v{SQ}, 1.0, v{SQ}
            v_rcp_f32 v{SQ}, v{SQ}
            s_nop 0
            buffer_store_dword v{SQ}, v{GR}, {WSR}, s{sGO} offen sc1
            L_f_nogate2:
            """)
        elif c == 12:
            if c == 12:
                set_srd(a, S_SRD1, S_DBG, 256)
                a(f"buffer_load_dwordx2 {vr(T1,2)}, v{ZERO}, s[48:51], 0 offen sc1")
            for i in range(8): a.emit(xdma(i))
            a.emit(xadv())
    a(f"""
    s_waitcnt vmcnt(0) lgkmcnt(0)
    L_f_init:
    v_sad_u8 v{T0}, v{T1}, 0, 0
    v_sad_u8 v{T0}, v{T2}, 0, v{T0}
    v_cmp_gt_u32 vcc, 32, v{T0}
    s_cbranch_vccz L_f_go
    buffer_load_dwordx2 {vr(T1,2)}, v{ZERO}, s[48:51], 0 offen sc1
    s_add_u32 s{sSPIN}, s{sSPIN}, 1
    s_cmp_gt_u32 s{sSPIN}, {SPIN_MAX}
    s_cbranch_scc1 L_exit
    s_waitcnt vmcnt(0)
    s_branch L_f_init
    L_f_go:
    s_barrier
    """)
    stamp(a, 1)
    for j in range(8): a(xrd(0, j))
    a(f"s_cmp_lt_u32 s{w}, s{sVT}\ns_waitcnt lgkmcnt(0)\ns_cbranch_scc0 L_f_10f")
    OUTL.clear()
    body(a, 0, 0, True); body(a, 0, 1, True)
    body(a, 0, 0); body(a, 1, 0); body(a, 0, 1); body(a, 1, 1)
    a.emit(OUTL)
    a("L_f_done:\ns_nop 7")
    for e in epi(1, True): a.emit(e)
    a(f"""
    v_mov_b32 v{FV}, s{sN}
    s_waitcnt vmcnt(0) lgkmcnt(0)
    s_barrier
    buffer_store_dword v{FV}, v{ZERO}, {WSR}, s{sFA} offen sc1
    """)
    stamp(a, 3)
    a(f"s_branch {next_label}")
```

```python
from common import OPTS

END = 4
def blocks(j):
    if j < 4: return [2 * j, 2 * j + 1]
    if j == 6: return list(range(8))
    if OPTS.get("sched", 0) == 0: return [6, 7, 2, 3] if j == 4 else [4, 5, 0, 1]
    if OPTS.get("sched", 0) == 2: return [7, 5, 4, 1] if j == 4 else [6, 3, 2, 0]
    return [0, 3, 7, 4] if j == 4 else [1, 2, 6, 5]
def ATT(h, qb):
    j = 4 if qb in blocks(4) else 5
    return [4 | 1 | (h << 4) | (qb << 12) | (j << 16) | ((8 * blocks(j).index(qb) + 8) << 20)]
def FEED(h, j): return [4 | 1 | 8 | (h << 4) | (j << 12), sum(b << (4 * i) for i, b in enumerate(blocks(j)))]
def BRUN(hp, segs): return [4 | 2 | (hp << 4)] + [s << 4 for s in segs]
def RRUN(ents, staged=0): return [4 | 2 | 8 | (staged << 4)] + [(s << 4) | (k << 12) for s, k in ents]

def tasks(cu):
    if OPTS.get("btest"):
        ar, k16, sl, k = cu >> 4, cu & 15, cu >> 3, cu & 7
        segs = list(range(sl, 64, 28))
        return BRUN(k16, list(range(ar, 64, 14))) + RRUN([(s, k) for s in segs[:-1]]) + RRUN([(segs[-1], k)], 1)
    h, j = 4 * ((cu >> 2) // 7) + (cu & 3), (cu >> 2) % 7
    t = FEED(h, j)
    if OPTS.get("ponly"): return t
    hs, k = h >> 3, h & 7
    if OPTS.get("sched", 0) == 0:
        for qb in ((7,), (6,), (5, 0), (4, 1), (3,), (2,), ())[j]: t += ATT(h, qb)
        if j in (1, 4, 5):
            bi = {5: 0, 1: 2, 4: 4}[j] + (h >> 4)
            t += BRUN(h & 15, list(range(bi, 64, 6)))
        elif j == 6:
            t += RRUN([(s, k) for s in range(48 + hs, 64, 4)], 1)
        else:
            ri = 3 * hs + (j - 1 if j else 0)
            t += RRUN([(s, k) for s in (ri, ri + 12)]) + RRUN([(s, k) for s in (ri + 24, ri + 36)], 1)
        return t
    if OPTS.get("sched", 0) == 2:
        sw = OPTS.get("bsw", 36)
        for qb in ((7,), (6, 0), (5, 1), (3, 2), (4,), (), ())[j]: t += ATT(h, qb)
        ar = h >> 4
        if j == 5: t += BRUN(h & 15, list(range(ar, sw, 2)) + list(range(sw + ar, 64, 4)))
        elif j == 0: t += BRUN(h & 15, list(range(sw + 2 + ar, 64, 4)))
        else:
            ri = 4 * {1: 0, 2: 1, 3: 2, 4: 3, 6: 4}[j] + hs
            first = {3: [16, 24], 4: [20, 28, 32], 6: [36, 40], 1: [0, 4], 2: [8, 12]}[j]
            t += RRUN([(s + hs, k) for s in first], 1)
            t += RRUN([(44 + ri, k)], 1)
        return t
    if j < 4:
        t += ATT(h, j) + ATT(h, 7 - j)
        ri = 4 * hs + j
        t += RRUN([(s, k) for s in range(32 + ri, 60, 16)], 1)
    elif j == 6:
        t += RRUN([(60 + hs, k)], 1)
    else:
        ar = 2 * (j - 4) + (h >> 4)
        if ar < 3: t += BRUN(h & 15, list(range(ar, 64, 3)))
        else:
            for b in range(4): t += RRUN([(s, k) for s in range(8 * b + (hs & 1), 8 * b + 8, 2)], 1)
    return t

def tables():
    rows = []
    for cu in range(224):
        row = tasks(cu)
        assert len(row) <= 31, len(row)
        rows.append(row + [END] * (32 - len(row)))
    if not (OPTS.get("ponly") or OPTS.get("btest")):
        check(rows)
    return rows

def check(rows):
    att, b, r = [], [], []
    for row in rows:
        i = 0; mode = None
        while row[i] != END:
            x = row[i]
            if x & 4:
                if x & 3 == 1 and x & 8: i += 1
                elif x & 3 == 1: att.append(((x >> 4) & 31, (x >> 12) & 7))
                else: mode = ("r", 0) if x & 8 else ("b", (x >> 4) & 15)
            elif mode[0] == "b": b.append((mode[1], x >> 4))
            else: r.append(((x >> 4) & 63, x >> 12))
            i += 1
    assert sorted(att) == [(h, q) for h in range(32) for q in range(8)]
    assert sorted(b) == [(p, s) for p in range(16) for s in range(64)]
    assert sorted(r) == [(s, k) for s in range(64) for k in range(8)]
```
